```python
import torch

def _softmax(x, axis=-1):
    return torch.softmax(x, dim=axis)

def _gelu(x):
    return torch.nn.functional.gelu(x, approximate='tanh')

def _silu(x):
    return torch.nn.functional.silu(x)

def _sigmoid(x):
    return torch.sigmoid(x)

def _layernorm(x, axis=-1, eps=1e-05):
    m = x.mean(dim=axis, keepdim=True)
    v = x.var(dim=axis, keepdim=True, unbiased=False)
    return (x - m) / torch.sqrt(v + eps)

def _scatter_add(tgt, idx, src, axis=0):
    return tgt.clone().index_add_(axis, idx, src)

def _segment_sum(src, seg, n):
    out = torch.zeros((n,) + src.shape[1:], dtype=src.dtype)
    return out.index_add_(0, seg, src)

def _pad(x, pw):
    flat = tuple((v for pair in reversed(pw) for v in pair))
    return torch.nn.functional.pad(x, flat)
kernel_name = 'concat_heads__mha_block__memory_aug_recurrent_mem_tr__prompt'

def setup_inputs():

    _w = lambda a: (lambda t: t.to(torch.bfloat16) if t.is_floating_point() else t)(torch.as_tensor(a))

    def _A_setup():
        B, S, D, H = (1, 2048, 576, 32)
        return {'x': _w((lambda *s: torch.randn(*s, dtype=torch.bfloat16) * 0.2)(B, S, D)), 'wqkv': _w((lambda *s: torch.randn(*s, dtype=torch.bfloat16) * 0.2)(D, 3 * D)), 'wo': _w((lambda *s: torch.randn(*s, dtype=torch.bfloat16) * 0.05)(D, D))}
    _A_in = _A_setup()

    def _B_setup():
        B, S, Dm = (1, 2048, 576)
        H, Dh = (32, 128)
        M, seg = (8, 32)
        seg = min(seg, S)
        S = S // seg * seg
        return {'x': _w((lambda *s: torch.randn(*s, dtype=torch.bfloat16) * 0.05)(B, S, Dm)), 'mem0': _w((lambda *s: torch.randn(*s, dtype=torch.bfloat16) * 0.8)(B, M, Dm)), 'Wq': _w((lambda *s: torch.randn(*s, dtype=torch.bfloat16) * 1.6)(Dm, H, Dh) * Dm ** (-0.5)), 'Wk': _w((lambda *s: torch.randn(*s, dtype=torch.bfloat16) * 1.6)(Dm, H, Dh) * Dm ** (-0.5)), 'Wv': _w((lambda *s: torch.randn(*s, dtype=torch.bfloat16) * 0.8)(Dm, H, Dh) * Dm ** (-0.5)), 'Wo': _w((lambda *s: torch.randn(*s, dtype=torch.bfloat16) * 0.8)(H, Dh, Dm) * (H * Dh) ** (-0.5)), 'seg_len': seg}
    _B_in = _B_setup()
    return {'A_x': _A_in['x'], 'A_wqkv': _A_in['wqkv'], 'A_wo': _A_in['wo'], 'B_x': _B_in['x'], 'B_mem0': _B_in['mem0'], 'B_Wq': _B_in['Wq'], 'B_Wk': _B_in['Wk'], 'B_Wv': _B_in['Wv'], 'B_Wo': _B_in['Wo'], 'B_seg_len': _B_in['seg_len']}

def reference(A_x, A_wqkv, A_wo, B_x, B_mem0, B_Wq, B_Wk, B_Wv, B_Wo, B_seg_len):

    def _A_ref(x, wqkv, wo):
        B, S, D = x.shape
        H = 32
        Dh = D // H
        qkv = (lambda x, *d: x.permute(*d))((x @ wqkv).reshape(B, S, 3, H, Dh), 2, 0, 3, 1, 4)
        q, k, v = (qkv[0], qkv[1], qkv[2])
        scores = torch.einsum('bhqd,bhkd->bhqk', q, k) * Dh ** (-0.5)
        p = _softmax(scores, axis=-1)
        o = torch.einsum('bhqk,bhkd->bhqd', p, v)
        return (lambda x, *d: x.permute(*d))(o, 0, 2, 1, 3).reshape(B, S, D) @ wo

    def _B_ref(x, mem0, Wq, Wk, Wv, Wo, seg_len):
        B, S, Dm = x.shape
        H, Dh = (Wq.shape[1], Wq.shape[2])
        M = mem0.shape[1]
        scale = Dh ** (-0.5)
        n_seg = S // seg_len
        L = M + seg_len
        idx = torch.arange(L)
        mask = (idx[:, None] < M) | (idx[:, None] >= idx[None, :])
        mem = mem0
        outs = []
        for s in range(n_seg):
            xs = x[:, s * seg_len:(s + 1) * seg_len, :].clone()
            h = torch.concatenate([mem, xs], axis=1)
            q = torch.einsum('btd,dhe->bhte', h, Wq)
            k = torch.einsum('btd,dhe->bhte', h, Wk)
            v = torch.einsum('btd,dhe->bhte', h, Wv)
            scores = torch.einsum('bhqe,bhke->bhqk', q, k) * scale
            scores = torch.where(mask[None, None], scores, -1000000000.0)
            p = _softmax(scores, axis=-1)
            o = torch.einsum('bhqk,bhke->bhqe', p, v)
            o = torch.einsum('bhte,hed->btd', o, Wo)
            mem = o[:, :M, :].clone()
            outs.append(o[:, M:, :])
        return torch.concatenate(outs, axis=1)
    a = _A_ref(A_x, A_wqkv, A_wo)
    b = _B_ref(B_x, B_mem0, B_Wq, B_Wk, B_Wv, B_Wo, B_seg_len)
    return torch.concatenate([a, b], axis=-1)
```

```python
class Asm:
    def __init__(self):
        self.lines = []
        self.uid = 0
    def __call__(self, s):
        for l in s.split('\n'):
            l = l.strip()
            if l:
                self.lines.append(('' if l.endswith(':') else '  ') + l)
    def c(self, s):
        self.lines.append('  ; ' + s)
    def label(self, l):
        self.lines.append(l + ':')
    def newlabel(self, p='L'):
        self.uid += 1
        return f'.{p}{self.uid}'
    def text(self):
        return '\n'.join(self.lines) + '\n'

def vr(b, n=1):
    return f'v{b}' if n == 1 else f'v[{b}:{b+n-1}]'
def ar(b, n=1):
    return f'a{b}' if n == 1 else f'a[{b}:{b+n-1}]'
def sr(b, n=1):
    return f's{b}' if n == 1 else f's[{b}:{b+n-1}]'

def header(name):
    return f""".globl {name}
.p2align 8
.type {name},@function
{name}:
"""
def descriptor(name, vgpr=512, accum=256, sgpr=102, kernarg=104):
    return f""".amdhsa_kernel {name}
  .amdhsa_next_free_vgpr {vgpr}
  .amdhsa_next_free_sgpr {sgpr}
  .amdhsa_accum_offset {accum}
  .amdhsa_group_segment_fixed_size 0
  .amdhsa_kernarg_size {kernarg}
  .amdhsa_user_sgpr_count 2
  .amdhsa_user_sgpr_kernarg_segment_ptr 1
  .amdhsa_system_sgpr_workgroup_id_x 1
.end_amdhsa_kernel
"""
```

```python
import struct
from asmlib import *
MB=1<<20
XKV_OFF=0
QX_OFF=32*MB
KMVM_OFF=48*MB
P_OFF=64*MB
M_OFF=65*MB
FLG_OFF=66*MB
OX_OFF=68*MB
QA_OFF=84*MB
QA_TILE=1152
KVA_OFF=88*MB
KVA_TILE=2496
OA_OFF=94*MB
WS_BYTES=268435456
OUT_BYTES=2048*1152*2
def f2u(x): return struct.unpack('<I',struct.pack('<f',x))[0]
LOG2E=1.4426950408889634
sAX=4; sWQKV=6; sAWO=8; sBX=10; sMEM=12; sWq=14; sWk=16; sWv=18; sWo=20; sOUT=22; sDBG=24; sWS=26
sW=28
sTASK=29
vLANE=1
def load_ptrs(a):
    offs={sAX:0,sWQKV:8,sAWO:16,sBX:24,sMEM:32,sWq:40,sWk:48,sWv:56,sWo:64,sOUT:80,sDBG:88,sWS:96}
    for s,o in offs.items():
        a(f"s_load_dwordx2 s[{s}:{s+1}], s[0:1], {o}")
    a(f"""
  v_lshrrev_b32 v2, 6, v0
  v_and_b32 v{vLANE}, 63, v0
  v_readfirstlane_b32 s{sW}, v2
  s_waitcnt lgkmcnt(0)
""")
def srd(a,d,base,nbytes):
    a(f"""
  s_mov_b32 s{d}, s{base}
  s_mov_b32 s{d+1}, s{base+1}
  s_mov_b32 s{d+2}, {nbytes}
  s_mov_b32 s{d+3}, 0x00020000
""")
def wrap(kernels, launches, hdr_comment=''):
    t=hdr_comment
    for n,g,l in launches:
        t+=f"; @launch kernel={n} grid=({g},1,1) block=(256,1,1) lds={l}\n"
    t+='.amdgcn_target "amdgcn-amd-amdhsa--gfx950"\n.text\n'
    for n,body in kernels:
        t+=header(n)+body
    t+='.section .rodata,"a"\n.p2align 6\n'
    for n,body in kernels:
        t+=descriptor(n,512,256,102,104)
    return t
def interleave(a, mfmas, fillers):
    for i,m in enumerate(mfmas):
        a(m)
        for f in fillers.get(i,[]): a(f)
```

```python
import re
def regs_of(tok):
    tok=tok.strip()
    m=re.fullmatch(r'([vas])\[(\d+):(\d+)\]',tok)
    if m: return {(m.group(1),i) for i in range(int(m.group(2)),int(m.group(3))+1)}
    m=re.fullmatch(r'([vas])(\d+)',tok)
    if m: return {(m.group(1),int(m.group(2)))}
    if tok=='vcc': return {('s','vcc')}
    if tok=='exec': return {('s','exec')}
    if tok=='m0': return {('s','m0')}
    return set()
MF4=('v_mfma_f32_16x16x32_bf16','v_smfmac_f32_16x16x64_bf16','v_mfma_f32_16x16x16_bf16')
MF8=('v_mfma_f32_32x32x8_bf16','v_mfma_f32_32x32x16_bf16','v_smfmac_f32_32x32x32_bf16')
TRANS=('v_exp_f32','v_log_f32','v_rcp_f32','v_rsq_f32','v_sqrt_f32','v_sin_f32','v_cos_f32')
class I: pass
def parse(line):
    s=line.split(';')[0].strip()
    if not s or s.endswith(':') or s.startswith('.'): return None
    p=s.split(None,1)
    op=p[0]; rest=p[1] if len(p)>1 else ''
    ops=[o.strip() for o in re.split(r',\s*(?![^\[]*\])',rest)] if rest else []
    mods=''
    if ops:
        q=ops[-1].split(None,1)
        ops[-1]=q[0]
        if len(q)>1: mods=q[1]
    i=I(); i.op=op; i.ops=ops; i.mods=mods; i.text=s
    i.w=1; i.kind='other'; i.dst=set(); i.src=set(); i.srcC=set(); i.srcAB=set(); i.passes=0
    i.dpp = ('_dpp' in op) or ('row_' in mods) or ('quad_perm' in mods)
    base=op.replace('_e32','').replace('_e64','').replace('_dpp','')
    if op=='s_nop': i.w=int(ops[0])+1; i.kind='nop'; return i
    if base in MF4 or base in MF8:
        i.kind='mfma'; i.passes=4 if base in MF4 else 8
        i.dst=regs_of(ops[0]); i.srcAB=regs_of(ops[1])|regs_of(ops[2])
        if 'smfmac' in base:
            i.srcC=set(i.dst); i.srcAB|=regs_of(ops[3]); i.sm=True
        else:
            i.srcC=regs_of(ops[3]); i.sm=False
        i.src=i.srcAB|i.srcC
        return i
    if base.startswith('v_'):
        i.kind='valu'
        i.trans = base in TRANS
        if base.startswith('v_cmp'):
            i.dst=regs_of(ops[0]); i.src=set().union(*[regs_of(o) for o in ops[1:]])
        elif base.startswith('v_permlane') and 'swap' in base:
            i.dst=regs_of(ops[0])|regs_of(ops[1]); i.src=set(i.dst); i.perm=True
        elif base in ('v_readfirstlane_b32','v_readlane_b32'):
            i.dst=regs_of(ops[0]); i.src=set().union(*[regs_of(o) for o in ops[1:]]); i.rl=True
        else:
            i.dst=regs_of(ops[0]); i.src=set().union(*[regs_of(o) for o in ops[1:]]) if len(ops)>1 else set()
            if base in ('v_cndmask_b32',) and len(ops)==3: i.src|={('s','vcc')}
            if base in ('v_fmac_f32','v_mac_f32') or i.dpp: i.src|=i.dst
            if base.startswith('v_accvgpr_write'): pass
        return i
    if base.startswith('ds_'):
        i.kind='ds'
        if base.startswith('ds_read'):
            i.dst=regs_of(ops[0]); i.src=regs_of(ops[1])
        else:
            i.src=set().union(*[regs_of(o) for o in ops]); i.data=set().union(*[regs_of(o) for o in ops[1:]])
        return i
    if base.startswith('global_') or base.startswith('buffer_'):
        i.kind='vmem'
        allr=[regs_of(o) for o in ops]
        isload = ('load' in base) and not ('lds' in base or ' lds' in (' '+mods))
        atomic_ret = ('atomic' in base and 'sc0' in mods)
        if base.startswith('buffer_inv') or base.startswith('buffer_wbl2'): return i
        if isload or atomic_ret:
            i.dst=allr[0]; i.src=set().union(*allr[1:])
        else:
            i.src=set().union(*allr)
            if 'store' in base:
                i.wide = ('x3' in base or 'x4' in base)
                if base.startswith('global_'): i.data=allr[1]
                else: i.data=allr[0]
        return i
    if base.startswith('s_'):
        i.kind='salu'
        if base in ('s_waitcnt','s_barrier','s_branch','s_endpgm','s_sleep','s_setprio') or base.startswith('s_cbranch'): return i
        if base.startswith('s_cmp'):
            i.src=set().union(*[regs_of(o) for o in ops]); return i
        if ops:
            i.dst=regs_of(ops[0]); i.src=set().union(*[regs_of(o) for o in ops[1:]]) if len(ops)>1 else set()
        return i
    return i
def vonly(s): return {r for r in s if r[0] in 'va'}
def sonly(s): return {r for r in s if r[0]=='s'}
def check(lines, wrap=False, verbose=True):
    ins=[x for x in (parse(l) for l in lines) if x]
    if wrap: ins=ins+ins
    errs=[]
    n=len(ins)
    for j,c in enumerate(ins):
        dist=0
        k=j-1
        while k>=0 and dist<24:
            p=ins[k]
            need=0; why=''
            def req(nn,w):
                nonlocal need,why
                if nn>need: need=nn; why=w
            if p.kind=='valu':
                pv=vonly(p.dst); ps=sonly(p.dst)
                if c.kind=='mfma' and pv & vonly(c.src): req(2,'valu->mfma')
                if c.kind=='valu' and (getattr(c,'perm',False)) and pv & vonly(c.src): req(2,'valu->permlane')
                if c.kind=='valu' and c.dpp and pv & vonly(c.src): req(2,'valu->dpp')
                if c.kind=='valu' and getattr(c,'rl',False) and pv & vonly(c.src): req(1,'valu->readlane')
                if getattr(p,'trans',False) and c.kind=='valu' and not getattr(c,'trans',False) and pv & vonly(c.src): req(1,'trans->valu')
                if getattr(p,'trans',False) and c.kind=='mfma' and pv & vonly(c.src): req(2,'trans->mfma')
                if ps and c.kind=='valu' and ps & sonly(c.src): req(2,'valu sgpr->valu const')
                if ps and c.kind=='vmem' and ps & sonly(c.src): req(5,'valu sgpr->vmem')
            if p.kind=='mfma':
                D=p.dst
                big = 8 if p.passes==4 else 12
                if c.kind=='mfma':
                    if D & c.srcAB: req(big,'mfma D->mfma AB')
                    if D & c.srcC and not (c.srcC==D and c.passes==p.passes): req(6 if p.passes==4 else 10,'mfma D->mfma C overlap')
                    if D & c.dst and not (c.dst==D) : req(6 if p.passes==4 else 10,'mfma D waw overlap')
                elif c.kind=='valu':
                    if D & (vonly(c.src)|vonly(c.dst)): req(big,'mfma D->valu')
                    if p.srcC & vonly(c.dst): req(3 if p.passes==4 else 7,'mfma C war valu')
                elif c.kind in('ds','vmem'):
                    if D & (vonly(c.src)|vonly(c.dst)): req(big,'mfma D->mem')
            if p.kind=='vmem' and getattr(p,'wide',False):
                if c.kind=='valu' and vonly(p.data)&vonly(c.dst): req(2,'wide store war valu')
                elif c.kind in('ds','vmem','mfma') and vonly(p.data)&vonly(c.dst): req(1,'wide store war')
            if p.kind=='salu' and ('s','m0') in p.dst and c.kind=='vmem' and ('lds' in c.op or 'lds' in c.mods): req(1,'m0->lds dma')
            if need>dist:
                errs.append((j,p.text,c.text,need,dist,why))
            dist+=p.w
            k-=1
    if verbose:
        seen=set()
        for e in errs:
            key=(e[1],e[2])
            if key in seen: continue
            seen.add(key)
            print('HAZARD need %d have %d (%s): [%s] -> [%s]'%(e[3],e[4],e[5],e[1],e[2]))
    return errs

def fix(lines, verbose=False):
    lines=list(lines)
    total=0
    for it in range(2000):
        idx=[i for i,l in enumerate(lines) if parse(l)]
        errs=check(lines,verbose=False)
        if not errs: break
        errs.sort(key=lambda e:e[0])
        j=errs[0][0]
        need=max(e[3]-e[4] for e in errs if e[0]==j)
        if verbose: print('fix: +%d before [%s] (%s)'%(need,errs[0][2],errs[0][5]))
        lines.insert(idx[j],f"  s_nop {need-1}")
        total+=1
    return lines
```

```python
from common import *
import r1
def r1_params(a,var):
    if var=='kv':
        NTG=7
        srd(a,32,sBX,2048*1152); srd(a,36,sWk,576*8192); srd(a,40,sWv,576*8192); srd(a,44,sWS,WS_BYTES)
        a(f"""
  s_and_b32 s60, s{sTASK}, 31
  s_lshr_b32 s61, s{sTASK}, 5       ; tg
  s_mov_b32 s59, 8192
  s_lshl_b32 s57, s60, 8
  s_lshl_b32 s62, s{sW}, 6
  s_add_u32 s57, s57, s62
  s_mov_b32 s58, s57
  s_mul_i32 s48, s61, 36864
  s_mov_b32 s49, {NTG*36864}
  s_cmp_eq_u32 s61, 0
  s_cselect_b32 s50, 10, 9
  s_lshl_b32 s51, s61, 19           ; tg*32*16384
  s_lshl_b32 s62, s60, 14
  s_add_u32 s51, s51, s62
  s_lshl_b32 s62, s{sW}, 11
  s_add_u32 s51, s51, s62
  s_add_u32 s51, s51, {XKV_OFF}
  s_add_u32 s52, s51, 8192
  s_mov_b32 s53, {NTG<<19}
""")
        return 'TN',('kt','kt'),224
    if var=='qq':
        NTG=14
        srd(a,32,sBX,2048*1152); srd(a,36,sWq,576*8192); srd(a,40,sWq,576*8192); srd(a,44,sWS,WS_BYTES)
        a(f"""
  s_and_b32 s60, s{sTASK}, 15
  s_lshr_b32 s61, s{sTASK}, 4       ; tg
  s_mov_b32 s59, 8192
  s_lshl_b32 s57, s60, 9
  s_lshl_b32 s62, s{sW}, 6
  s_add_u32 s57, s57, s62
  s_add_u32 s58, s57, 256
  s_mul_i32 s48, s61, 36864
  s_mov_b32 s49, {NTG*36864}
  s_cmp_lt_u32 s61, 8
  s_cselect_b32 s50, 5, 4
  s_lshl_b32 s51, s61, 18           ; tg*32*8192
  s_lshl_b32 s62, s60, 14
  s_add_u32 s51, s51, s62
  s_lshl_b32 s62, s{sW}, 11
  s_add_u32 s51, s51, s62
  s_add_u32 s51, s51, {QX_OFF}
  s_add_u32 s52, s51, 8192
  s_mov_b32 s53, {NTG<<18}
""")
        return 'TT',('kt','kt'),224
    if var=='aqk':
        NTG=8
        srd(a,32,sAX,2048*1152); srd(a,36,sWQKV,576*3456); srd(a,40,sWQKV,576*3456); srd(a,44,sWS,WS_BYTES)
        a(f"""
  s_and_b32 s60, s{sTASK}, 7
  s_lshl_b32 s60, s60, 2
  s_add_u32 s60, s60, s{sW}          ; h
  s_lshr_b32 s61, s{sTASK}, 3       ; tg
  s_mov_b32 s59, 3456
  s_mul_i32 s57, s60, 36
  s_add_u32 s58, s57, 1152
  s_mul_i32 s48, s61, 36864
  s_mov_b32 s49, {NTG*36864}
  s_mov_b32 s50, {64//NTG}
  s_lshl_b32 s62, s60, 6
  s_add_u32 s62, s62, s61            ; h*64+tg
  s_mul_i32 s51, s62, {QA_TILE}
  s_add_u32 s51, s51, {QA_OFF}
  s_mul_i32 s52, s62, {KVA_TILE}
  s_add_u32 s52, s52, {KVA_OFF}
  s_mov_b32 s53, {NTG*QA_TILE}
  s_mov_b32 s71, {NTG*KVA_TILE}
""")
        return 'TT',('aq','ak'),8*NTG
    if var=='avv':
        NTG=8
        srd(a,32,sAX,2048*1152); srd(a,36,sWQKV,576*3456); srd(a,40,sWQKV,576*3456); srd(a,44,sWS,WS_BYTES)
        a(f"""
  s_and_b32 s60, s{sTASK}, 3
  s_lshl_b32 s60, s60, 3
  s_lshl_b32 s62, s{sW}, 1
  s_add_u32 s60, s60, s62          ; h0
  s_lshr_b32 s61, s{sTASK}, 2       ; tg
  s_mov_b32 s59, 3456
  s_mul_i32 s57, s60, 36
  s_add_u32 s57, s57, 2304
  s_add_u32 s58, s57, 36
  s_mul_i32 s48, s61, 36864
  s_mov_b32 s49, {NTG*36864}
  s_mov_b32 s50, {64//NTG}
  s_lshl_b32 s62, s60, 6
  s_add_u32 s62, s62, s61            ; h*64+tg
  s_mul_i32 s51, s62, {KVA_TILE}
  s_add_u32 s51, s51, {KVA_OFF}
  s_add_u32 s52, s51, {64*KVA_TILE}
  s_mov_b32 s53, {NTG*KVA_TILE}
""")
        return 'NN',('av','av'),4*NTG
    if var=='aout':
        NTG=8
        srd(a,36,sAWO,576*1152); srd(a,40,sAWO,576*1152); srd(a,44,sOUT,OUT_BYTES)
        a(f"""
  s_add_u32 s32, s{sWS}, {OA_OFF}
  s_addc_u32 s33, s{sWS+1}, 0
  s_mov_b32 s34, {2048*1152}
  s_mov_b32 s35, 0x00020000
  s_mul_i32 s61, s{sTASK}, 43691
  s_lshr_b32 s61, s61, 17
  s_mul_i32 s60, s61, 3
  s_sub_u32 s60, s{sTASK}, s60       ; cg
  s_lshl_b32 s60, s60, 3
  s_lshl_b32 s62, s{sW}, 1
  s_add_u32 s60, s60, s62            ; ct0
  s_mov_b32 s59, 1152
  s_lshl_b32 s57, s60, 6
  s_add_u32 s58, s57, 64
  s_mul_i32 s48, s61, 36864
  s_mov_b32 s49, {NTG*36864}
  s_mov_b32 s50, {64//NTG}
  s_mul_i32 s51, s61, {32*2304}
  s_add_u32 s51, s51, s57
  s_add_u32 s52, s51, 64
  s_mov_b32 s53, {NTG*32*2304}
  s_cmp_lt_u32 s60, 18
  s_cselect_b32 s51, s51, {r1.NULLOFF}
  s_cselect_b32 s52, s52, {r1.NULLOFF}
  s_cselect_b32 s53, s53, 0
  s_cselect_b32 s57, s57, 0
  s_cselect_b32 s58, s58, 0
""")
        return 'TT',('out','out'),3*NTG
def r1_task(a,var,lab,stflag='',timing=False):
    if timing: a("s_memtime s[80:81]\n s_memrealtime s[86:87]")
    o,k,n=r1_params(a,var)
    if var!='aqk': a("s_mov_b32 s71, s53")
    r1.r1_setup(a); r1.epi_setup(a,k)
    r1.r1_load_w(a)
    if timing: a("s_memtime s[82:83]")
    r1.r1_main(a,o,k,lab,stflag)
    if timing:
        a(f"""
  s_memtime s[84:85]
  s_memrealtime s[88:89]
  s_waitcnt lgkmcnt(0)
  s_sub_u32 s82, s88, s86
  s_sub_u32 s84, s84, s80
  s_lshl_b32 s60, s{sTASK}, 2
  s_add_u32 s60, s60, s{sW}
  s_lshl_b32 s60, s60, 3
  s_add_u32 s60, s60, {FLG_OFF}
  v_mov_b32 v2, s60
  v_mov_b32 v4, s82
  v_mov_b32 v5, s84
  s_mov_b64 exec, 1
  global_store_dwordx2 v2, v[4:5], s[{sWS}:{sWS+1}]
  s_mov_b64 exec, -1
""")
    return n
def r1_kernel(name,var,timing=False):
    a=Asm()
    load_ptrs(a)
    a(f"s_mov_b32 s{sTASK}, s2")
    b=Asm()
    n=r1_task(b,var,'.L'+name,timing=timing)
    a(f"s_cmp_ge_u32 s2, {n}\n s_cbranch_scc1 .L{name}_end")
    a.lines+=b.lines
    a(f".L{name}_end:\n s_endpgm")
    return a,n
```

```python
from common import *
NULLOFF=0x40000000
R=6
XR=20
ET=44
ACC=60
W1V=124
def wfrag(t,ks):
    if t==0: return f"a[{4*ks}:{4*ks+3}]", 'a', 4*ks
    if ks<28: return f"a[{144+4*ks}:{144+4*ks+3}]", 'a', 144+4*ks
    b=W1V+4*(ks-28); return f"v[{b}:{b+3}]", 'v', b
def acc(set_,t): return ACC+32*set_+16*t

def r1_setup(a):
    a(f"""
  s_mul_i32 s54, s{sW}, 36864
  v_lshrrev_b32 v19, 3, v{vLANE}
  s_lshl_b32 s60, s{sW}, 3
  v_add_u32 v19, s60, v19            ; token
  v_lshrrev_b32 v2, 1, v19
  v_and_b32 v2, 7, v2
  v_and_b32 v3, 7, v{vLANE}
  v_xor_b32 v2, v2, v3
  v_lshlrev_b32 v2, 4, v2
  v_mul_u32_u24 v19, 1152, v19
  v_add_u32 v2, v2, v19
  v_lshrrev_b32 v19, 2, v{vLANE}
  v_mul_lo_u32 v19, v19, s59
  v_and_b32 v3, 3, v{vLANE}
  v_lshlrev_b32 v3, 4, v3
  v_add_u32 v3, v3, v19              ; v3
  v_lshrrev_b32 v19, 5, v{vLANE}     ; hi
  v_lshlrev_b32 v4, 9, v19
  v_bfe_u32 v5, v{vLANE}, 2, 2       ; r
  v_lshlrev_b32 v5, 6, v5
  v_add_u32 v4, v4, v5
  v_bfe_u32 v5, v{vLANE}, 4, 1       ; ch
  v_lshlrev_b32 v5, 5, v5
  v_add_u32 v4, v4, v5
  v_and_b32 v5, 3, v{vLANE}
  v_lshlrev_b32 v5, 3, v5
  v_add_u32 v4, v4, v5
  v_add_u32 v4, s54, v4              ; v4
  v_and_b32 v9, 31, v{vLANE}         ; token
  v_lshrrev_b32 v10, 3, v9
  v_mul_u32_u24 v10, 36864, v10
  v_and_b32 v11, 7, v9
  v_lshlrev_b32 v11, 7, v11
  v_add_u32 v10, v10, v11
  v_lshrrev_b32 v11, 1, v9
  v_and_b32 v11, 7, v11              ; sw
""")
    for q in range(4):
        a(f"""
  v_add_u32 v12, {2*q}, v19
  v_xor_b32 v12, v12, v11
  v_lshlrev_b32 v12, 4, v12
  v_add_u32 v{5+q}, v10, v12
""")

def epi_setup(a,kinds):
    for t,k in enumerate(kinds):
        d=17+t
        if k=='kt':
            a(f"""
  v_bfe_u32 v19, v{vLANE}, 4, 1
  v_lshlrev_b32 v{d}, 10, v19
  v_and_b32 v19, 15, v{vLANE}
  v_lshlrev_b32 v19, 4, v19
  v_add_u32 v{d}, v{d}, v19
  v_lshrrev_b32 v19, 5, v{vLANE}
  v_lshlrev_b32 v19, 8, v19
  v_add_u32 v{d}, v{d}, v19
""")
        elif k in('aq','ak'):
            a(f"v_lshlrev_b32 v{d}, 4, v{vLANE}")
        elif k=='av':
            a(f"""
  v_and_b32 v19, 31, v{vLANE}
  v_lshlrev_b32 v{d}, 4, v19
  v_lshrrev_b32 v19, 5, v{vLANE}
  v_mul_u32_u24 v19, 304, v19
  v_add_u32 v{d}, v{d}, v19
""")
        elif k=='out':
            a(f"""
  v_and_b32 v19, 31, v{vLANE}
  v_mul_u32_u24 v{d}, 2304, v19
  v_lshrrev_b32 v19, 5, v{vLANE}
  v_lshlrev_b32 v19, 4, v19
  v_add_u32 v{d}, v{d}, v19
""")
    if 'av' in kinds:
        a(f"""
  v_and_b32 v19, 31, v{vLANE}
  v_cmp_eq_u32 s[66:67], 18, v19
  s_mov_b32 s68, 0x0007ffff
  s_mov_b32 s69, 0x0007ffff
  v_mov_b32 v156, 0x3f803f80
""")
    if 'aq' in kinds:
        a(f"s_mov_b32 s70, {f2u(18**-0.5*LOG2E):#x}")
    if 'ak' in kinds:
        a(f"v_lshlrev_b32 v157, 3, v{vLANE}\n v_lshlrev_b32 v158, 2, v{vLANE}")

def epilogue(kind,A,T,vo,so,stflag=''):
    o=[]
    cv=lambda d,x,y: f"v_cvt_pk_bf16_f32 v{d}, v{x}, v{y}"
    st=lambda n,data,off,vv=None: f"buffer_store_dword{n} {data}, v{vv if vv is not None else vo}, s[44:47], s{so} offen offset:{off} {stflag}"
    if kind=='kt':
        order=[0,2,8,10,4,6,12,14]
        for i,r in enumerate(order): o.append(cv(T+i,A+r,A+r+1))
        o.insert(4,st('x4',f"v[{T}:{T+3}]",0))
        o.append(st('x4',f"v[{T+4}:{T+7}]",512))
    elif kind=='aq':
        for i in range(5):
            o.append(f"v_mul_f32 v{A+2*i}, s70, v{A+2*i}\n v_mul_f32 v{A+2*i+1}, s70, v{A+2*i+1}")
        for i in range(5): o.append(cv(T+i,A+2*i,A+2*i+1))
        o.append(st('x4',f"v[{T}:{T+3}]",0))
        o.append("s_mov_b64 exec, 0xffffffff\n"+st('',f"v{T+4}",1024,158)+"\n s_mov_b64 exec, -1")
    elif kind=='ak':
        for i in range(5): o.append(cv(T+i,A+2*i,A+2*i+1))
        o.append(f"v_mov_b32 v{T+5}, 0x3f803f80")
        o.append(st('x4',f"v[{T}:{T+3}]",0))
        o.append("s_mov_b64 exec, 0xffffffff\n"+st('x2',f"v[{T+4}:{T+5}]",1024,157)+"\n s_mov_b64 exec, -1")
    elif kind=='av':
        for i in range(8):
            o.append(cv(T+i,A+2*i,A+2*i+1))
        for i in range(8):
            o.append(f"v_cndmask_b32 v{T+i}, v{T+i}, v156, s[66:67]")
        o.append("s_mov_b64 exec, s[68:69]\n"+st('x4',f"v[{T}:{T+3}]",1280)+"\n"+st('x4',f"v[{T+4}:{T+7}]",1280+608)+"\n s_mov_b64 exec, -1")
    elif kind=='out':
        for i in range(8): o.append(cv(T+i,A+2*i,A+2*i+1))
        o.append("s_nop 1")
        for g in (0,4):
            o.append(f"v_permlane32_swap_b32 v{T+g}, v{T+g+2}")
            o.append(f"v_permlane32_swap_b32 v{T+g+1}, v{T+g+3}")
        o.append(st('x4',f"v[{T}:{T+3}]",0))
        o.append(st('x4',f"v[{T+4}:{T+7}]",32))
    return o

def xdma(c):
    return [f"s_add_u32 m0, s55, {c*896}", f"buffer_load_dwordx4 v2, s[32:35], s48 offen offset:{c*128} lds"]
def xdma_next():
    return f"""s_add_u32 s48, s48, s49
  s_sub_u32 s64, s64, 1
  s_cmp_gt_i32 s64, 0
  s_cselect_b32 s48, s48, {NULLOFF}
  s_add_u32 s65, s65, 9216
  s_cmp_eq_u32 s65, 36864
  s_cselect_b32 s65, 0, s65
  s_add_u32 s55, s54, s65"""

def r1_load_w(a):
    a(f"s_mov_b32 s64, s50\n s_mov_b32 s65, 0\n s_mov_b32 s55, s54\n s_mul_i32 s63, s59, 16")
    def wdma(u):
        t=u>>2; qq=u&3
        srd_=36 if t==0 else 40
        a(f"s_mul_i32 s62, s59, {144*qq}\n s_add_u32 s62, s62, s{57+t}")
        for j in range(9):
            a(f"s_add_u32 m0, s54, {(u&3)*9216+j*1024}")
            if j>0: a("s_add_u32 s62, s62, s63")
            else: a("s_nop 0")
            a(f"buffer_load_dwordx4 v3, s[{srd_}:{srd_+3}], s62 offen lds")
    for u in range(4): wdma(u)
    for u in range(8):
        a(f"s_waitcnt vmcnt(27)")
        t=u>>2; qq=u&3
        for k in range(9):
            ks=9*qq+k
            _,f,b=wfrag(t,ks)
            for i in range(2):
                a(f"ds_read_b64_tr_b16 {f}[{b+2*i}:{b+2*i+1}], v4 offset:{(u&3)*9216+k*1024+i*256}")
        a("s_waitcnt lgkmcnt(0)")
        if u<4: wdma(u+4)
        elif u<7:
            for c in range(9):
                m,l=xdma(c); a(m); a("s_nop 0"); a(l)
            a(xdma_next())

def r1_main(a,orient,kinds,lab,stflag=''):
    a(f"""
  s_mov_b32 s61, s51
  s_mov_b32 s62, s52
  s_mov_b32 s51, {NULLOFF}
  s_mov_b32 s52, {NULLOFF}
  s_mov_b32 s56, 0
  v_mov_b32 v9, v5
  v_mov_b32 v10, v6
  v_mov_b32 v11, v7
  v_mov_b32 v12, v8
  s_waitcnt vmcnt(9)
  s_barrier
""")
    def rd(ks,aset):
        if ks>=36: k=ks-36; st=1-aset
        else: k=ks; st=aset
        c=k>>2; q=k&3
        ar_=(9 if st==0 else 13)+q
        slot=XR+4*(ks%R)
        return f"ds_read_b128 v[{slot}:{slot+3}], v{ar_} offset:{c*1024}"
    for ks in range(R-1): a(rd(ks,0))
    def body(st):
        mf=[]; fl={}
        def add(i,s): fl.setdefault(i,[]).append(s)
        for ks in range(36):
            x=f"v[{XR+4*(ks%R)}:{XR+4*(ks%R)+3}]"
            for t in range(2):
                w=wfrag(t,ks)[0]
                d=acc(st,t); D=f"v[{d}:{d+15}]"
                C='0' if ks==0 else D
                A_,B_=(w,x) if orient[t]=='T' else (x,w)
                ins=f"v_mfma_f32_32x32x16_bf16 {D}, {A_}, {B_}, {C}"
                if t==0:
                    ins=rd(ks+R-1,st)+f"\n s_waitcnt lgkmcnt({R-1})\n"+ins
                mf.append(ins)
        o=13 if st==0 else 9
        add(0,"s_add_u32 s56, s56, 9216\n s_cmp_eq_u32 s56, 36864\n s_cselect_b32 s56, 0, s56")
        for q in range(4): add(1+q,f"v_add_u32 v{o+q}, s56, v{5+q}")
        pos=5
        for t in range(2):
            ep=epilogue(kinds[t],acc(1-st,t),ET+8*t,17+t,51+t,stflag)
            for s in ep:
                add(pos,s); pos+=1
        assert pos<44
        add(44,"s_mov_b32 s51, s61\n s_mov_b32 s52, s62\n s_add_u32 s61, s61, s53\n s_add_u32 s62, s62, s71")
        add(45,"s_waitcnt vmcnt(17)\n s_barrier")
        for c in range(9):
            m,l=xdma(c); add(47+2*c,m); add(48+2*c,l)
        add(66,xdma_next())
        interleave(a,mf,fl)
    a(f"{lab}_loop:")
    body(0)
    a(f"s_sub_u32 s50, s50, 1\n s_cmp_eq_u32 s50, 0\n s_cbranch_scc1 {lab}_tail0")
    body(1)
    a(f"s_sub_u32 s50, s50, 1\n s_cmp_lg_u32 s50, 0\n s_cbranch_scc1 {lab}_loop")
    for st in (1,0):
        a(f"{lab}_tail{st}:")
        a("s_nop 7\n s_nop 7")
        for t in range(2):
            for s in epilogue(kinds[t],acc(st,t),ET+8*t,17+t,51+t,stflag): a(s)
        if st==1: a(f"s_branch {lab}_done")
    a(f"{lab}_done:")
    a("s_waitcnt vmcnt(0) lgkmcnt(0)\n s_barrier")
```

```python
from common import *
def r3_task(a,lab,stflag='',pre=None,timing=False):
    Q1=[8,12]; Q2=[16,18]; MX=[20,21]; K1=[24,28]; K2=[32,34]; V=[36,44]
    D=lambda s,q: 52+32*s+16*q
    P=[116,124]; O=[132,148]
    srd(a,32,sWS,WS_BYTES)
    a(f"""
  s_lshr_b32 s60, s{sTASK}, 3        ; h
  s_and_b32 s61, s{sTASK}, 7         ; qb
  s_mul_i32 s62, s60, {64*KVA_TILE}
  s_add_u32 s62, s62, {KVA_OFF}
  s_mul_i32 s63, s{sW}, {39*1024}
  s_add_u32 s62, s62, s63            ; src
  v_lshlrev_b32 v2, 4, v{vLANE}
""")
    if pre: pre(a)
    for i in range(39):
        a(f"s_add_u32 m0, s63, {i*1024}\n s_add_u32 s64, s62, {i*1024}\n buffer_load_dwordx4 v2, s[32:35], s64 offen lds")
    a(f"""
  s_lshl_b32 s64, s60, 6
  s_lshl_b32 s65, s61, 3
  s_add_u32 s64, s64, s65
  s_lshl_b32 s65, s{sW}, 1
  s_add_u32 s64, s64, s65            ; h*64 + tile0
  s_mul_i32 s64, s64, {QA_TILE}
  s_add_u32 s64, s64, {QA_OFF}
  s_add_u32 s65, s64, {QA_TILE}
  v_and_b32 v5, 31, v{vLANE}
  v_lshlrev_b32 v6, 2, v5
  buffer_load_dwordx4 v[{Q1[0]}:{Q1[0]+3}], v2, s[32:35], s64 offen
  buffer_load_dwordx4 v[{Q1[1]}:{Q1[1]+3}], v2, s[32:35], s65 offen
  buffer_load_dword v{Q2[0]}, v6, s[32:35], s64 offen offset:1024
  buffer_load_dword v{Q2[1]}, v6, s[32:35], s65 offen offset:1024
  v_lshlrev_b32 v3, 3, v5
  v_add_u32 v3, 1024, v3             ; K2
  v_min_u32 v4, 18, v5
  v_lshlrev_b32 v4, 4, v4
  v_lshrrev_b32 v7, 5, v{vLANE}
  v_mul_u32_u24 v7, 304, v7
  v_add_u32 v4, v4, v7
  v_add_u32 v4, 1280, v4             ; V
  v_mov_b32 v{MX[0]}, 0xff800000
  v_mov_b32 v{MX[1]}, 0xff800000
  v_mov_b32 v{Q2[0]+1}, 0
  v_mov_b32 v{Q2[1]+1}, 0
""")
    for q in range(2):
        for r in range(16): a(f"v_mov_b32 v{D(1,q)+r}, 0xff800000")
    a(f"""
  s_waitcnt vmcnt(0)
  s_barrier
  v_cmp_gt_u32 vcc, 32, v{vLANE}
  v_cndmask_b32 v{Q2[0]}, 0, v{Q2[0]}, vcc
  v_cndmask_b32 v{Q2[1]}, 0, v{Q2[1]}, vcc
""")
    def rdK(b,off): return f"ds_read_b128 v[{K1[b]}:{K1[b]+3}], v2 offset:{off}\n ds_read_b64 v[{K2[b]}:{K2[b]+1}], v3 offset:{off}"
    def rdV(b,off): return f"ds_read_b128 v[{V[b]}:{V[b]+3}], v4 offset:{off}\n ds_read_b128 v[{V[b]+4}:{V[b]+7}], v4 offset:{off+608}"
    def smf(s,b):
        o=[]
        for q in range(2):
            o.append(f"v_mfma_f32_32x32x16_bf16 v[{D(s,q)}:{D(s,q)+15}], v[{K1[b]}:{K1[b]+3}], v[{Q1[q]}:{Q1[q]+3}], 0")
        for q in range(2):
            o.append(f"v_mfma_f32_32x32x8_bf16 v[{D(s,q)}:{D(s,q)+15}], v[{K2[b]}:{K2[b]+1}], v[{Q2[q]}:{Q2[q]+1}], v[{D(s,q)}:{D(s,q)+15}]")
        return o
    T=KVA_TILE
    if timing: a('s_memtime s[82:83]')
    a(rdK(0,0)); a(rdK(1,T))
    a("s_mov_b32 s66, 32")
    a(f"{lab}_p1:")
    for b in range(2):
        m=smf(b,b)
        mx=[]
        for q in range(2):
            for k in range(8):
                mx.append(f"v_max3_f32 v{MX[q]}, v{MX[q]}, v{D(1-b,q)+2*k}, v{D(1-b,q)+2*k+1}")
        a("s_waitcnt lgkmcnt(2)")
        a(m[0]); a(m[1])
        for s in mx[0:6]: a(s)
        a(m[2])
        for s in mx[6:12]: a(s)
        a(m[3])
        a(rdK(b,(2+b)*T))
        for s in mx[12:16]: a(s)
    a(f"""
  v_add_u32 v2, {2*T}, v2
  v_add_u32 v3, {2*T}, v3
  s_sub_u32 s66, s66, 1
  s_cmp_lg_u32 s66, 0
  s_cbranch_scc1 {lab}_p1
  s_nop 7
  s_nop 7
""")
    for q in range(2):
        for k in range(8):
            a(f"v_max3_f32 v{MX[q]}, v{MX[q]}, v{D(1,q)+2*k}, v{D(1,q)+2*k+1}")
    a(f"""
  v_subrev_u32 v2, {64*T}, v2
  v_subrev_u32 v3, {64*T}, v3
  s_waitcnt lgkmcnt(0)
""")
    if timing: a('s_memtime s[86:87]\n s_waitcnt lgkmcnt(0)')
    a(rdK(0,0)); a(rdK(1,T)); a(rdV(0,0))
    for q in range(2):
        m=MX[q]
        a(f"""
  v_mov_b32 v5, v{m}
  s_nop 1
  v_permlane32_swap_b32 v{m}, v5
  v_max_f32 v{m}, v{m}, v5
  v_sub_f32 v{m}, 0, v{m}
  v_cvt_pk_bf16_f32 v5, v{m}, v{m}
  v_lshlrev_b32 v5, 16, v5
  v_sub_f32 v5, v{m}, v5
  v_cvt_pk_bf16_f32 v5, v{m}, v5
  v_cndmask_b32 v{Q2[q]+1}, 0, v5, vcc
""")
    for q in range(2):
        for r in range(16): a(f"v_mov_b32 v{O[q]+r}, 0")
    a("s_waitcnt lgkmcnt(4)")
    for s in smf(0,0): a(s)
    a(rdK(0,2*T))
    a("s_mov_b32 s66, 32\n s_nop 7\n s_nop 3")
    a(f"{lab}_p2:")
    for b in range(2):
        m=smf(1-b,1-b)
        seq=[]
        for q in range(2):
            d=D(b,q)
            e=[f"v_exp_f32 v{d+r}, v{d+r}" for r in range(16)]
            c=[f"v_cvt_pk_bf16_f32 v{P[q]+k}, v{d+2*k}, v{d+2*k+1}" for k in range(8)]
            s=[]
            for k in range(8):
                s+= [e[2*k],e[2*k+1]]
                if k>=1: s.append(c[k-1])
            s.append(c[7])
            seq.append(s)
        pv=lambda q,mf: f"v_mfma_f32_32x32x16_bf16 v[{O[q]}:{O[q]+15}], v[{V[b]+4*mf}:{V[b]+4*mf+3}], v[{P[q]+4*mf}:{P[q]+4*mf+3}], v[{O[q]}:{O[q]+15}]"
        it=seq[0]+seq[1]
        ins={5:"s_waitcnt lgkmcnt(4)\n"+m[0]+"\n"+rdV(1-b,(1+b)*T), 11:m[1], 17:"s_waitcnt lgkmcnt(4)\n"+pv(0,0), 23:m[2], 29:pv(0,1),
             35:m[3]+"\n"+rdK(1-b,(3+b)*T), 41:pv(1,0), 48:"s_nop 1\n"+pv(1,1)}
        for k in range(49):
            if k in ins: a(ins[k])
            if k<48: a(it[k])
    a(f"""
  v_add_u32 v2, {2*T}, v2
  v_add_u32 v3, {2*T}, v3
  v_add_u32 v4, {2*T}, v4
  s_sub_u32 s66, s66, 1
  s_cmp_lg_u32 s66, 0
  s_cbranch_scc1 {lab}_p2
  s_nop 7
  s_nop 7
""")
    if timing: a('s_memtime s[88:89]')
    a(f"""
  s_add_u32 s36, s{sWS}, {OA_OFF}
  s_addc_u32 s37, s{sWS+1}, 0
  s_mov_b32 s38, {2048*1152}
  s_mov_b32 s39, 0x00020000
  s_lshl_b32 s64, s61, 3
  s_lshl_b32 s65, s{sW}, 1
  s_add_u32 s64, s64, s65
  s_mul_i32 s64, s64, {32*1152}
  s_mul_i32 s65, s60, 36
  s_add_u32 s64, s64, s65
  s_add_u32 s65, s64, {32*1152}
  v_and_b32 v5, 31, v{vLANE}
  v_mul_u32_u24 v5, 1152, v5
  v_lshrrev_b32 v6, 5, v{vLANE}
  v_lshlrev_b32 v6, 4, v6
  v_add_u32 v6, v5, v6
""")
    for q in range(2):
        o=O[q]; p=P[q]
        a(f"""
  v_mov_b32 v7, v{o+10}
  s_nop 1
  v_permlane32_swap_b32 v{o+10}, v7
  v_rcp_f32 v7, v{o+10}
  s_nop 0
""")
        for r in range(10): a(f"v_mul_f32 v{o+r}, v{o+r}, v7")
        for k in range(5): a(f"v_cvt_pk_bf16_f32 v{p+k}, v{o+2*k}, v{o+2*k+1}")
        a(f"""
  s_nop 1
  v_permlane32_swap_b32 v{p}, v{p+2}
  v_permlane32_swap_b32 v{p+1}, v{p+3}
  buffer_store_dwordx4 v[{p}:{p+3}], v6, s[36:39], s{64+q} offen {stflag}
  s_mov_b64 exec, 0xffffffff
  buffer_store_dword v{p+4}, v5, s[36:39], s{64+q} offen offset:32 {stflag}
  s_mov_b64 exec, -1
""")
    a("s_waitcnt vmcnt(0) lgkmcnt(0)\n s_barrier")
def r3_kernel(name,timing=True):
    a=Asm(); load_ptrs(a)
    a(f"s_mov_b32 s{sTASK}, s2\n s_cmp_ge_u32 s2, 256\n s_cbranch_scc1 .L{name}_end")
    if timing: a("s_memtime s[80:81]")
    r3_task(a,'.L'+name,timing=timing)
    if timing:
        a(f"""
  s_memtime s[84:85]
  s_waitcnt lgkmcnt(0)
  s_sub_u32 s84, s84, s80
  s_lshl_b32 s60, s{sTASK}, 2
  s_add_u32 s60, s60, s{sW}
  s_lshl_b32 s60, s60, 4
  s_add_u32 s60, s60, {FLG_OFF}
  s_sub_u32 s82, s82, s80
  s_sub_u32 s86, s86, s80
  s_sub_u32 s88, s88, s80
  v_mov_b32 v2, s60
  v_mov_b32 v4, s82
  v_mov_b32 v5, s86
  v_mov_b32 v6, s88
  v_mov_b32 v7, s84
  s_mov_b64 exec, 1
  global_store_dwordx4 v2, v[4:7], s[{sWS}:{sWS+1}]
  s_mov_b64 exec, -1
    """)
    a(f".L{name}_end:\n s_endpgm")
    return a,256
```

```python
from common import *
SCALE=128**-0.5
Q=8
K=40
V=72
KM=104
VM=120
SX=136
SM=148
PX=156
PM=164
OT=168
TM=232
def r4_consts(a):
    a(f"""
  v_lshlrev_b32 v2, 4, v{vLANE}          ; lane*16
  v_and_b32 v3, 15, v{vLANE}             ; q
  v_lshrrev_b32 v4, 4, v{vLANE}          ; g
  v_lshrrev_b32 v5, 1, v4
  v_lshlrev_b32 v5, 10, v5
  v_and_b32 v6, 1, v4
  v_lshlrev_b32 v6, 9, v6
  v_add_u32 v5, v5, v6
  v_lshlrev_b32 v6, 4, v3
  v_add_u32 v5, v5, v6                   ; v5
  v_lshlrev_b32 v6, 2, v4
""")
    for r in range(4):
        a(f"v_add_u32 v7, {r}, v6\n v_cmp_le_u32 s[{40+2*r}:{41+2*r}], v7, v3")
    a(f"""
  s_mov_b32 s48, {f2u(SCALE*LOG2E):#x}
  v_mov_b32 v6, 0xff800000
  v_cmp_gt_u32 s[50:51], 32, v{vLANE}     ; lanes g<2
""")
def r4_loads(a,sU,ld='',kmld=''):
    a(f"""
  s_lshl_b32 s52, s{sU}, 13
  s_add_u32 s53, s52, {QX_OFF}
  s_add_u32 s54, s52, {KMVM_OFF}
  s_lshl_b32 s55, s{sU}, 14
  s_add_u32 s55, s55, {XKV_OFF}
""")
    def grp(dst,sreg,n,base):
        for i in range(n):
            off=base+i*1024
            if off%4096==0 and off>0 or (i==0 and base>0 and False): pass
            so=off//4096
            if so>0:
                a(f"s_add_u32 s56, s{sreg}, {so*4096}")
                a(f"buffer_load_dwordx4 v[{dst+4*i}:{dst+4*i+3}], v2, s[32:35], s56 offen offset:{off%4096} {ld}")
            else:
                a(f"buffer_load_dwordx4 v[{dst+4*i}:{dst+4*i+3}], v2, s[32:35], s{sreg} offen offset:{off} {ld}")
    grp(Q,53,8,0); grp(K,55,8,0); grp(V,55,8,8192)
    for w in range(4):
        so=w*2048
        a(f"s_add_u32 s56, s54, {so}")
        a(f"buffer_load_dwordx4 v[{KM+4*w}:{KM+4*w+3}], v2, s[32:35], s56 offen {kmld}")
        a(f"buffer_load_dwordx4 v[{VM+4*w}:{VM+4*w+3}], v2, s[32:35], s56 offen offset:1024 {kmld}")
def red4(a,op,r,t):
    a(f"""
  v_mov_b32 v{t}, v{r}
  s_nop 1
  v_permlane16_swap_b32 v{r}, v{t}
  {op} v{r}, v{r}, v{t}
  v_mov_b32 v{t}, v{r}
  s_nop 1
  v_permlane32_swap_b32 v{r}, v{t}
  {op} v{r}, v{r}, v{t}
""")
def r4_compute(a,sU,stflag=''):
    q=lambda w,qt: f"v[{Q+(w*2+qt)*4}:{Q+(w*2+qt)*4+3}]"
    k=lambda w,kt: f"v[{K+(w*2+kt)*4}:{K+(w*2+kt)*4+3}]"
    sx={(0,0):SX,(0,1):SX+4,(1,1):SX+8}
    a("s_waitcnt vmcnt(16)")
    for w in range(4):
        for (kt,qt),d in sx.items():
            C='0' if w==0 else f"v[{d}:{d+3}]"
            a(f"v_mfma_f32_16x16x32_bf16 v[{d}:{d+3}], {k(w,kt)}, {q(w,qt)}, {C}")
    a("s_waitcnt vmcnt(0)")
    for w in range(4):
        for qt in range(2):
            d=SM+4*qt
            C='0' if w==0 else f"v[{d}:{d+3}]"
            a(f"v_mfma_f32_16x16x32_bf16 v[{d}:{d+3}], v[{KM+4*w}:{KM+4*w+3}], {q(w,qt)}, {C}")
    a("s_nop 7")
    for d in (sx[(0,0)],sx[(1,1)]):
        for r in range(4): a(f"v_cndmask_b32 v{d+r}, v6, v{d+r}, s[{40+2*r}:{41+2*r}]")
    for qt in range(2):
        tiles=[SM+4*qt]+([sx[(0,0)]] if qt==0 else [sx[(0,1)],sx[(1,1)]])
        m=TM+qt; t=TM+2+qt; l=TM+4+qt
        regs=[x+r for x in tiles for r in range(4)]
        a(f"v_max3_f32 v{m}, v{regs[0]}, v{regs[1]}, v{regs[2]}")
        i=3
        while i<len(regs):
            if i+1<len(regs): a(f"v_max3_f32 v{m}, v{m}, v{regs[i]}, v{regs[i+1]}"); i+=2
            else: a(f"v_max_f32 v{m}, v{m}, v{regs[i]}"); i+=1
        red4(a,'v_max_f32',m,t)
        a(f"v_mul_f32 v{m}, s48, v{m}")
        for x in regs: a(f"v_fma_f32 v{x}, v{x}, s48, -v{m}")
        for x in regs: a(f"v_exp_f32 v{x}, v{x}")
        sm=SM+4*qt
        a(f"v_add_f32 v{l}, v{sm}, v{sm+1}\n v_add_f32 v{t}, v{sm+2}, v{sm+3}\n v_add_f32 v{l}, v{l}, v{t}")
        a(f"v_cndmask_b32 v{l}, 0, v{l}, s[50:51]")
        for x in regs[4:]: a(f"v_add_f32 v{l}, v{l}, v{x}")
        red4(a,'v_add_f32',l,t)
        a(f"v_rcp_f32 v{l}, v{l}")
        a(f"v_cvt_pk_bf16_f32 v{PM+2*qt}, v{sm}, v{sm+1}\n v_cvt_pk_bf16_f32 v{PM+2*qt+1}, v{sm+2}, v{sm+3}")
        p=PX+4*qt
        d0=sx[(0,qt)]
        a(f"v_cvt_pk_bf16_f32 v{p}, v{d0}, v{d0+1}\n v_cvt_pk_bf16_f32 v{p+1}, v{d0+2}, v{d0+3}")
        if qt==0: a(f"v_mov_b32 v{p+2}, 0\n v_mov_b32 v{p+3}, 0")
        else:
            d1=sx[(1,1)]
            a(f"v_cvt_pk_bf16_f32 v{p+2}, v{d1}, v{d1+1}\n v_cvt_pk_bf16_f32 v{p+3}, v{d1+2}, v{d1+3}")
    a("s_nop 1")
    for qt in range(2):
        for w in range(4):
            for t in range(2):
                d=OT+qt*32+(w*2+t)*4
                a(f"v_mfma_f32_16x16x32_bf16 v[{d}:{d+3}], v[{V+(w*2+t)*4}:{V+(w*2+t)*4+3}], v[{PX+4*qt}:{PX+4*qt+3}], 0")
        for w in range(4):
            for t in range(2):
                d=OT+qt*32+(w*2+t)*4
                a(f"v_mfma_f32_16x16x16_bf16 v[{d}:{d+3}], v[{VM+4*w+2*t}:{VM+4*w+2*t+1}], v[{PM+2*qt}:{PM+2*qt+1}], v[{d}:{d+3}]")
    a(f"s_lshl_b32 s52, s{sU}, 13\n s_add_u32 s52, s52, {OX_OFF}\n s_nop 6")
    for qt in range(2):
        l=TM+4+qt
        for w in range(4):
            b=OT+qt*32+w*8
            for r in range(8): a(f"v_mul_f32 v{b+r}, v{b+r}, v{l}")
            o=TM+8+4*(w&1)
            for k2 in range(4): a(f"v_cvt_pk_bf16_f32 v{o+k2}, v{b+2*k2}, v{b+2*k2+1}")
            off=w*2048+qt*256
            if off>=4096:
                a(f"s_add_u32 s56, s52, 4096\n buffer_store_dwordx4 v[{o}:{o+3}], v5, s[32:35], s56 offen offset:{off-4096} {stflag}")
            else:
                a(f"buffer_store_dwordx4 v[{o}:{o+3}], v5, s[32:35], s52 offen offset:{off} {stflag}")
def r4_kernel(name,nwg=256):
    a=Asm(); load_ptrs(a)
    a(f"s_cmp_ge_u32 s2, {nwg}\n s_cbranch_scc1 .L{name}_end")
    srd(a,32,sWS,WS_BYTES)
    r4_consts(a)
    a(f"s_lshl_b32 s60, s2, 2\n s_add_u32 s60, s60, s{sW}\n.L{name}_loop:")
    r4_loads(a,60)
    r4_compute(a,60)
    a(f"s_add_u32 s60, s60, {4*nwg}\n s_cmp_lt_u32 s60, 2048\n s_cbranch_scc1 .L{name}_loop")
    a(f".L{name}_end:\n s_endpgm")
    return a,nwg
```

```python
from common import *
NULLOFF=0x40000000
RING=64
ACC=16
def r5_setup(a):
    srd(a,32,sWS,WS_BYTES); srd(a,36,sWo,4096*1152); srd(a,44,sOUT,OUT_BYTES)
    a(f"""
  s_mul_i32 s54, s{sW}, 36864
  v_lshlrev_b32 v2, 4, v{vLANE}
  v_lshrrev_b32 v5, 2, v{vLANE}
  v_mul_u32_u24 v5, 1152, v5
  v_and_b32 v3, 3, v{vLANE}
  v_lshlrev_b32 v3, 4, v3
  v_add_u32 v3, v3, v5
  v_lshrrev_b32 v5, 5, v{vLANE}
  v_lshlrev_b32 v4, 8, v5
  v_bfe_u32 v5, v{vLANE}, 2, 2
  v_lshlrev_b32 v5, 6, v5
  v_add_u32 v4, v4, v5
  v_bfe_u32 v5, v{vLANE}, 4, 1
  v_lshlrev_b32 v5, 5, v5
  v_add_u32 v4, v4, v5
  v_and_b32 v5, 3, v{vLANE}
  v_lshlrev_b32 v5, 3, v5
  v_add_u32 v4, v4, v5
  v_add_u32 v4, s54, v4
  s_mul_i32 s55, s{sW}, {1024*1152}
  s_lshl_b32 s56, s60, 6
  s_add_u32 s55, s55, s56
  v_and_b32 v5, 31, v{vLANE}
  v_mul_u32_u24 v5, 2304, v5
  v_lshrrev_b32 v6, 5, v{vLANE}
  v_lshlrev_b32 v6, 3, v6
  v_add_u32 v5, v5, v6
  s_lshl_b32 s57, s{sW}, 4
  s_add_u32 s57, s57, 1152
  v_add_u32 v5, s57, v5
  s_lshl_b32 s57, s{sW}, 12
  v_add_u32 v6, s57, v2
  s_lshl_b32 s57, s{sW}, 10
  v_add_u32 v7, s57, v2
""")
    def wdma(u):
        for j in range(8):
            a(f"s_add_u32 m0, s54, {(u&3)*8192+j*1024}\n s_add_u32 s58, s55, {(u*128+j*16)*1152}\n buffer_load_dwordx4 v3, s[36:39], s58 offen lds")
    for u in range(4): wdma(u)
    for u in range(8):
        a(f"s_waitcnt vmcnt({8*min(3,7-u)})")
        for we in range(4):
            for mf in range(2):
                f=u*8+we*2+mf
                for i in range(2):
                    a(f"ds_read_b64_tr_b16 a[{4*f+2*i}:{4*f+2*i+1}], v4 offset:{(u&3)*8192+(32*we+16*i+8*mf)*64}")
        a("s_waitcnt lgkmcnt(0)")
        if u<4: wdma(u+4)
    a("s_barrier")
def oload(f,sreg):
    sl=RING+4*(f%32)
    return f"s_add_u32 s59, s{sreg}, {(f>>2)*4096}\n buffer_load_dwordx4 v[{sl}:{sl+3}], v2, s[32:35], s59 offen offset:{(f&3)*1024}"
def r5_seg(a,sCur,sNext,sOut,buf,stflag='',ld=''):
    for f in range(64):
        sl=RING+4*(f%32)
        d=ACC+16*(f&1)
        C='0' if f<2 else f"v[{d}:{d+15}]"
        a("s_waitcnt vmcnt(31)")
        a(f"v_mfma_f32_32x32x16_bf16 v[{d}:{d+15}], a[{4*f}:{4*f+3}], v[{sl}:{sl+3}], {C}")
        if f<32: a(oload(f+32,sCur)+' '+ld)
        else: a(oload(f-32,sNext)+' '+ld)
    a("s_nop 7\n s_nop 3")
    for r in range(16): a(f"v_add_f32 v{ACC+r}, v{ACC+r}, v{ACC+16+r}")
    for q in range(4): a(f"ds_write_b128 v6, v[{ACC+4*q}:{ACC+4*q+3}] offset:{buf*16384+q*1024}")
    a("s_waitcnt lgkmcnt(0)\n s_barrier")
    for w in range(4): a(f"ds_read_b128 v[{48+4*w}:{48+4*w+3}], v7 offset:{buf*16384+w*4096}")
    a("s_waitcnt lgkmcnt(0)")
    for r in range(4):
        a(f"v_add_f32 v{48+r}, v{48+r}, v{52+r}\n v_add_f32 v{56+r}, v{56+r}, v{60+r}")
    for r in range(4): a(f"v_add_f32 v{48+r}, v{48+r}, v{56+r}")
    a(f"v_cvt_pk_bf16_f32 v48, v48, v49\n v_cvt_pk_bf16_f32 v49, v50, v51")
    a(f"buffer_store_dwordx2 v[48:49], v5, s[44:47], s{sOut} offen {stflag}")
def r5_kernel(name,nrep=14):
    a=Asm(); load_ptrs(a)
    n=18*nrep
    a(f"s_cmp_ge_u32 s2, {n}\n s_cbranch_scc1 .L{name}_end")
    a(f"""
  s_mul_i32 s61, s2, 3641
  s_lshr_b32 s61, s61, 16
  s_mul_i32 s60, s61, 18
  s_sub_u32 s60, s2, s60       ; ct
""")
    r5_setup(a)
    a(f"""
  s_mov_b32 s62, s61                 ; seg
  s_lshl_b32 s63, s62, 18
  s_lshl_b32 s57, s{sW}, 16
  s_add_u32 s63, s63, s57
  s_add_u32 s63, s63, {OX_OFF}
""")
    for f in range(32): a(oload(f,63))
    a(f".L{name}_loop:")
    a(f"""
  s_add_u32 s64, s62, {nrep}
  s_cmp_lt_u32 s64, 64
  s_cselect_b32 s65, 1, 0
  s_add_u32 s66, s63, {nrep<<18}
  s_cmp_lt_u32 s64, 64
  s_cselect_b32 s66, s66, {NULLOFF}
  s_mul_i32 s67, s62, {32*2304}
  s_lshl_b32 s57, s60, 6
  s_add_u32 s67, s67, s57
""")
    r5_seg(a,63,66,67,0)
    a(f"""
  s_barrier
  s_mov_b32 s62, s64
  s_mov_b32 s63, s66
  s_cmp_lg_u32 s65, 0
  s_cbranch_scc1 .L{name}_loop
""")
    a(f".L{name}_end:\n s_endpgm")
    return a,n
```

```python
import sys
sys.path.insert(0,'gen')
from asmlib import *

MB=1<<20
XKV_OFF=0
QX_OFF=32*MB
KMVM_OFF=48*MB
P_OFF=64*MB
PSLOT=32*9216
M_OFF=65*MB
MSLOT=9216
DBG_OFF=66*MB
LDS_M=147456
LDS_O=LDS_M+9216
LDS_SX=LDS_O+2048
LDS_SM=LDS_SX+4096
LDS_END=163840
assert LDS_SM+1024==LDS_END
WROW=8192
SCALE=128**-0.5
LOG2E=1.4426950408889634
import struct
def f2u(x): return struct.unpack('<I',struct.pack('<f',x))[0]

def chunk_list(lds_set):
    allc=[('q',k) for k in range(9)]+[('k',k) for k in range(9)]+[('v',k) for k in range(9)]
    allc+=[('o',k,u) for k in range(2) for u in range(4)]+[('o8',)]
    regc=[c for c in allc if c not in lds_set]
    assert len(regc)==27 and len(lds_set)==9
    return regc+list(lds_set)
def frag_key(c,t):
    if c[0] in 'qkv' and len(c)==2: return (c[0],c[1],t)
    if c[0]=='o': return ('o',c[1],2*c[2]+t)
    return ('o',t,8)

vL16=0; vFR=1; vMB=2; vIdx=3; vSel=4
vPst=6; vP8=7; vPld=8; vOw=9; vSm=10; vT1=11; vPub=11
MA=12
ACC=24
KX=48; VX=56; WB=64
sWS=28; sDBG=30; sMEM=32; sH=34; sW=35; sSTEP=36; sJOB=37
sPST=40
sPLD=44
sPUB=52
sMRS=54
sMLD=56
sXKV=58
sKM=60
sPRS=62
sMASK8=70
sRETRY=72
sT=74
sC=80
sJM=82
sJM8=84
sTM=86
sMLD2=88

class Rec:
    def __init__(self, lds_set, dbg=False, stflag='', steps=64, timing=False):
        self.lds_set=list(lds_set)
        self.chunks=chunk_list(self.lds_set)
        self.dbg=dbg; self.stflag=stflag; self.steps=steps; self.timing=timing
        self.frag={}
        n=0
        for ci,c in enumerate(self.chunks[:27]):
            for t in range(2):
                if n<22: base=('v',80+8*n)
                else: base=('a',8*(n-22))
                self.frag[frag_key(c,t)]=('reg',base); n+=1
        for k,c in enumerate(self.chunks[27:]):
            for t in range(2):
                self.frag[frag_key(c,t)]=('lds',k*4096+t*2048)


    def startup(self,a):
        a(f"""
  s_load_dwordx2 s[4:5], s[0:1], 40
  s_load_dwordx2 s[6:7], s[0:1], 48
  s_load_dwordx2 s[8:9], s[0:1], 56
  s_load_dwordx2 s[10:11], s[0:1], 64
  s_load_dwordx2 s[{sMEM}:{sMEM+1}], s[0:1], 32
  s_load_dwordx2 s[{sWS}:{sWS+1}], s[0:1], 96
  s_load_dwordx2 s[{sDBG}:{sDBG+1}], s[0:1], 88
  v_lshrrev_b32 v12, 6, v0
  v_and_b32 v31, 63, v0
  v_readfirstlane_b32 s{sW}, v12
  s_waitcnt lgkmcnt(0)
""")
        for i,b in enumerate((12,16,20,24)):
            a(f"""
  s_mov_b32 s{b}, s{4+2*i}
  s_mov_b32 s{b+1}, s{5+2*i}
  s_mov_b32 s{b+2}, {576*8192}
  s_mov_b32 s{b+3}, 0x00020000
""")
        a(f"""
  v_lshrrev_b32 v12, 4, v31         ; rr / g
  v_and_b32 v13, 15, v31            ; c16 / n
  v_and_b32 v14, 1, v12
  v_lshlrev_b32 v14, 1, v14         ; 2*(rr&1)
  v_xor_b32 v14, v13, v14           ; c16 ^ 2(rr&1)
""")
        for q in range(4):
            a(f"""
  v_xor_b32 v15, {4*q}, v14
  v_add_u32 v28, {4*q}, v12
  v_lshlrev_b32 v29, 13, v28
  v_lshlrev_b32 v30, 4, v15
  v_add_u32 v{16+q}, v29, v30
  v_mul_u32_u24 v29, 1152, v28
  v_add_u32 v{20+q}, v29, v30
  v_lshrrev_b32 v36, 1, v15
  v_and_b32 v36, 1, v36             ; t
  v_mul_u32_u24 v36, {64*1152}, v36
  v_add_u32 v29, v29, v36
  v_lshrrev_b32 v36, 2, v15         ; w'
  v_lshlrev_b32 v36, 1, v36
  v_and_b32 v37, 1, v15
  v_add_u32 v36, v36, v37
  v_lshlrev_b32 v36, 4, v36
  v_add_u32 v29, v29, v36
  v_add_u32 v{24+q}, 1024, v29
""")
        a(f"""
  s_lshl_b32 s74, s{sW}, 17         ; 16w*8192
  s_lshl_b32 s75, s{sH}, 8
  s_add_u32 s74, s74, s75           ; qkv scalar base
  s_mul_i32 s75, s{sH}, 147456
  s_mul_i32 s76, s{sW}, {16*1152}
  s_add_u32 s75, s75, s76
  s_mul_i32 s76, s{sW}, 36864
""")
        D=8
        def dma(ci):
            c=self.chunks[ci]; slot=ci%9
            if c[0] in 'qkv' and len(c)==2:
                srd={'q':12,'k':16,'v':20}[c[0]]; vb=16; so=f"s_add_u32 s78, s74, {c[1]*64*8192}"
            elif c[0]=='o':
                srd=24; vb=20; so=f"s_add_u32 s78, s75, {c[1]*64*1152+c[2]*256}"
            else:
                srd=24; vb=24; so="s_mov_b32 s78, s75"
            a(so)
            for q in range(4):
                a(f"s_add_u32 m0, s76, {slot*4096+q*1024}")
                a("s_nop 0")
                a(f"buffer_load_dwordx4 v{vb+q}, s[{srd}:{srd+3}], s78 offen lds")
        for ci in range(D): dma(ci)
        a(f"""
  v_lshrrev_b32 v36, 2, v13         ; r = p>>2
  v_and_b32 v47, 3, v13             ; c
  v_lshrrev_b32 v38, 1, v12         ; gb>>1
  v_and_b32 v39, 1, v12             ; gb&1
  v_mul_u32_u24 v40, 36864, v38
  v_lshrrev_b32 v41, 1, v36         ; r>>1
  v_and_b32 v42, 1, v36             ; r&1
  v_lshlrev_b32 v43, 3, v41
  v_lshlrev_b32 v44, 2, v39
  v_add_u32 v43, v43, v44
  v_add_u32 v43, v43, v42
  v_lshlrev_b32 v43, 8, v43
  v_add_u32 v40, v40, v43
  v_lshlrev_b32 v43, 1, v42
  v_add_u32 v43, v43, v44
  v_lshlrev_b32 v45, 3, v41
  v_add_u32 v43, v43, v45           ; s
  v_lshrrev_b32 v45, 1, v47         ; c>>1
  s_lshl_b32 s77, s{sW}, 2
  v_add_u32 v45, s77, v45           ; 4w + (c>>1)
  v_xor_b32 v45, v45, v43
  v_lshlrev_b32 v45, 4, v45
  v_and_b32 v46, 1, v47
  v_lshlrev_b32 v46, 3, v46
  v_add_u32 v45, v45, v46
  v_add_u32 v32, v40, v45
  v_xor_b32 v45, 32, v45
  v_add_u32 v33, v40, v45
  v_add_u32 v34, 73728, v32
  v_add_u32 v35, 73728, v33
""")
        self.consts(a)
        self.init_nan(a)
        for ci,c in enumerate(self.chunks):
            slot=ci%9
            nleft=min(len(self.chunks)-1-ci, D-1)
            a(f"s_waitcnt vmcnt({4*nleft}) lgkmcnt(0)")
            a("s_barrier")
            if ci+D<len(self.chunks): dma(ci+D)
            for t in range(2):
                f=self.frag[frag_key(c,t)]
                for i in range(4):
                    av=32+t+2*(i>>1)
                    off=slot*4096+(i&1)*512
                    if f[0]=='reg':
                        b=f[1]; d=f"{b[0]}[{b[1]+2*i}:{b[1]+2*i+1}]"
                    else:
                        d=f"v[{48+8*t+2*i}:{48+8*t+2*i+1}]"
                    a(f"ds_read_b64_tr_b16 {d}, v{av} offset:{off}")
            if ci>=27:
                a("s_waitcnt lgkmcnt(0)\n s_barrier")
                for t in range(2):
                    for hf in range(2):
                        a(f"ds_write_b128 v{vFR}, v[{48+8*t+4*hf}:{48+8*t+4*hf+3}] offset:{slot*4096+t*2048+hf*1024}")
        a("s_waitcnt lgkmcnt(0)")

    def consts(self,a):
        a(f"""
  v_lshlrev_b32 v{vL16}, 4, v31
  v_add_u32 v{vFR}, s76, v{vL16}
  v_add_u32 v{vMB}, {LDS_M}, v{vL16}
  v_mov_b32 v36, 0x4444
  v_mov_b32 v38, 0xeeee
  v_cmp_gt_u32 vcc, 8, v13
  s_mov_b32 s{sMASK8}, 0x00ff00ff
  s_mov_b32 s{sMASK8+1}, 0x00ff00ff
  v_cndmask_b32 v{vIdx}, v38, v36, vcc
  v_and_b32 v36, 7, v13             ; n&7
  v_and_b32 v38, 1, v12
  v_lshlrev_b32 v38, 2, v38         ; 4*(gb&1)
  v_sub_u32 v38, v36, v38
  v_mov_b32 v39, 0x3f80
  v_mov_b32 v40, 0x3f800000
  v_cmp_eq_u32 vcc, 0, v38
  v_cndmask_b32 v{vSel}, 0, v39, vcc
  v_cmp_eq_u32 vcc, 1, v38
  v_cndmask_b32 v{vSel}, v{vSel}, v40, vcc
  v_cmp_eq_u32 vcc, 2, v38
  v_cndmask_b32 v{vSel+1}, 0, v39, vcc
  v_cmp_eq_u32 vcc, 3, v38
  v_cndmask_b32 v{vSel+1}, v{vSel+1}, v40, vcc
  v_and_b32 v38, 1, v12
  v_lshlrev_b32 v38, 4, v38
  v_lshrrev_b32 v39, 1, v12
  v_lshlrev_b32 v39, 1, v39
  v_add_u32 v38, v38, v39
  v_lshrrev_b32 v39, 3, v13
  v_add_u32 v38, v38, v39
  s_lshl_b32 s77, s{sW}, 2
  v_add_u32 v38, s77, v38
  v_lshlrev_b32 v38, 7, v38
  v_lshlrev_b32 v36, 4, v36         ; (n&7)*16
  v_add_u32 v{vPst}, v38, v36
  ; pattern = (n&7)*16 + {{0,8,4,12}}[g]
  v_and_b32 v38, 1, v12
  v_lshlrev_b32 v38, 3, v38
  v_lshrrev_b32 v39, 1, v12
  v_lshlrev_b32 v39, 2, v39
  v_add_u32 v38, v38, v39
  v_add_u32 v38, v38, v36           ; pattern
  v_lshrrev_b32 v39, 3, v13
  s_lshl_b32 s77, s{sW}, 1
  s_add_u32 s77, s77, 64
  v_add_u32 v39, s77, v39
  v_lshlrev_b32 v39, 7, v39
  v_add_u32 v{vP8}, v39, v38
  s_lshl_b32 s77, s{sW}, 5
  s_add_u32 s77, s77, s{sH}
  s_cmp_lt_u32 s77, 72
  s_cselect_b32 s{sJOB}, 1, 0
  s_cselect_b64 s[{sJM}:{sJM+1}], -1, 0
  s_cselect_b32 s77, s77, 0
  s_and_b64 s[{sJM8}:{sJM8+1}], s[{sJM}:{sJM+1}], s[{sMASK8}:{sMASK8+1}]
  s_lshl_b32 s79, s77, 7             ; J*128
  v_add_u32 v{vPub}, s79, v38
  v_lshrrev_b32 v39, 3, v31
  v_mul_u32_u24 v39, 9216, v39
  v_add_u32 v39, v39, v36
  v_add_u32 v{vPld}, s79, v39
  v_lshrrev_b32 v39, 1, v12
  v_lshlrev_b32 v39, 7, v39
  v_and_b32 v38, 1, v12
  v_lshlrev_b32 v38, 3, v38
  v_add_u32 v39, v39, v38
  v_add_u32 v39, v39, v36
  v_add_u32 v{vOw}, {LDS_O}, v39
  v_and_b32 v38, 1, v12
  v_lshlrev_b32 v38, 7, v38
  v_add_u32 v38, v38, v36
  v_add_u32 v{vSm}, {LDS_SM}, v38
  s_mov_b32 s{sC}, {f2u(SCALE*LOG2E):#x}
""")

    def init_nan(self,a):
        a(f"""
  v_mov_b32 v64, -1
  v_mov_b32 v65, -1
  v_mov_b32 v66, -1
  v_mov_b32 v67, -1
  s_add_u32 s4, s{sWS}, {P_OFF}
  s_addc_u32 s5, s{sWS+1}, 0
  s_cmp_eq_u32 s{sJOB}, 0
  s_cbranch_scc1 .Lnan_skip{id(self)%100000}
""")
        for sl in range(2):
            for i in range(4):
                a(f"v_add_u32 v68, {sl*PSLOT+i*73728}, v{vPld}")
                a(f"global_store_dwordx4 v68, v[64:67], s[4:5] {self.stflag}")
        a(f"""
  s_add_u32 s4, s{sWS}, {M_OFF}
  s_addc_u32 s5, s{sWS+1}, 0
  v_add_u32 v68, {MSLOT}, v{vPub}
  s_mov_b64 exec, s[{sMASK8}:{sMASK8+1}]
  global_store_dword v{vPub}, v64, s[4:5] {self.stflag}
  global_store_dword v68, v64, s[4:5] {self.stflag}
  s_mov_b64 exec, -1
.Lnan_skip{id(self)%100000}:
""")

    def start_sync(self,a,xcc_sgpr):
        a(f"""
  s_waitcnt vmcnt(0)
  s_barrier
  s_lshl_b32 s74, s{xcc_sgpr}, 2
  s_add_u32 s74, s74, 32
  v_mov_b32 v12, s74
  v_mov_b32 v13, 1
  s_cmp_lg_u32 s{sW}, 0
  s_cbranch_scc1 .Lrs_skip
  s_mov_b64 exec, 1
  global_atomic_add v12, v13, s[{sDBG}:{sDBG+1}]
  s_mov_b32 s75, 2000000
.Lrs_poll:
  global_load_dword v14, v12, s[{sDBG}:{sDBG+1}] sc1
  s_waitcnt vmcnt(0)
  v_readfirstlane_b32 s76, v14
  s_sub_u32 s75, s75, 1
  s_cmp_eq_u32 s75, 0
  s_cbranch_scc1 .Lrs_done
  s_cmp_lt_u32 s76, 32
  s_cbranch_scc1 .Lrs_poll
.Lrs_done:
  s_mov_b64 exec, -1
.Lrs_skip:
  s_barrier
""")
        a(f"""
  v_lshrrev_b32 v24, 4, v{vL16}      ; lane
  v_and_b32 v25, 7, v24
  v_mul_u32_u24 v25, 1152, v25
  v_lshrrev_b32 v24, 3, v24
  v_lshlrev_b32 v24, 4, v24
  v_add_u32 v24, v24, v25            ; r8*1152 + (lane>>3)*16
  s_lshl_b32 s74, s{sW}, 7
  v_add_u32 v25, s74, v24
  global_load_dwordx4 v[{MA}:{MA+3}], v25, s[{sMEM}:{sMEM+1}]
  global_load_dwordx4 v[{MA+4}:{MA+7}], v25, s[{sMEM}:{sMEM+1}] offset:512
  s_lshl_b32 s74, s{sW}, 5
  s_add_u32 s74, s74, 1024
  v_add_u32 v25, s74, v24
  s_mov_b64 exec, 0xffff
  global_load_dwordx4 v[{MA+8}:{MA+11}], v25, s[{sMEM}:{sMEM+1}]
  s_mov_b64 exec, -1
""")
        a(f"""
  s_mov_b32 s{sSTEP}, 0
  s_mul_i32 s74, s{sH}, 9216
  s_add_u32 s74, s74, {P_OFF}
  s_add_u32 s{sPST}, s{sWS}, s74
  s_addc_u32 s{sPST+1}, s{sWS+1}, 0
  s_add_u32 s{sPST+2}, s{sPST}, 4096
  s_addc_u32 s{sPST+3}, s{sPST+1}, 0
""")
        for i in range(4):
            a(f"""
  s_add_u32 s{sPLD+2*i}, s{sWS}, {P_OFF+i*73728}
  s_addc_u32 s{sPLD+2*i+1}, s{sWS+1}, 0
  s_add_u32 s{sPRS+2*i}, s{sWS}, {P_OFF+PSLOT+i*73728}
  s_addc_u32 s{sPRS+2*i+1}, s{sWS+1}, 0
""")
        a(f"""
  s_add_u32 s{sPUB}, s{sWS}, {M_OFF+MSLOT}
  s_addc_u32 s{sPUB+1}, s{sWS+1}, 0
  s_add_u32 s{sMRS}, s{sWS}, {M_OFF}
  s_addc_u32 s{sMRS+1}, s{sWS+1}, 0
  s_lshl_b32 s74, s{sW}, 10
  s_add_u32 s74, s74, {M_OFF+MSLOT}
  s_add_u32 s{sMLD}, s{sWS}, s74
  s_addc_u32 s{sMLD+1}, s{sWS+1}, 0
  s_lshl_b32 s74, s{sW}, 8
  s_add_u32 s74, s74, {M_OFF+MSLOT+8192}
  s_add_u32 s{sMLD2}, s{sWS}, s74
  s_addc_u32 s{sMLD2+1}, s{sWS+1}, 0
  s_lshl_b32 s74, s{sH}, 14
  s_lshl_b32 s75, s{sW}, 11
  s_add_u32 s74, s74, s75
  s_add_u32 s74, s74, {XKV_OFF}
  s_add_u32 s{sXKV}, s{sWS}, s74
  s_addc_u32 s{sXKV+1}, s{sWS+1}, 0
  s_lshl_b32 s74, s{sH}, 13
  s_lshl_b32 s75, s{sW}, 11
  s_add_u32 s74, s74, s75
  s_add_u32 s74, s74, {KMVM_OFF}
  s_add_u32 s{sKM}, s{sWS}, s74
  s_addc_u32 s{sKM+1}, s{sWS+1}, 0
  s_waitcnt vmcnt(0)
""")
```

```python
import sys
sys.path.insert(0,'gen')
from asmlib import *
import rec
from rec import *
sPM=40
sWSR=44
sPS=48
sMP=49
sPst=50; sPst2=51
sPl=52
sPr=56
sMR=60
sMg=61
sXK=64
sXV=65
sKMo=66
sHP=67
sCNT=68
sR1=69; sR2=73
MREL=M_OFF-P_OFF
class Q:
    def __init__(s,a,name,maxv): s.a=a; s.name=name; s.maxv=maxv; s.n=0; s.pos={}
    def issue(s,tag=None,k=1):
        s.n+=k
        if tag is not None: s.pos[tag]=s.n
    def wait(s,tag):
        c=min(s.n-s.pos[tag],s.maxv)
        s.a(f"s_waitcnt {s.name}({c})")
    def reset(s): s.n=0; s.pos={}
def nops(cyc):
    out=[]; n=cyc//4
    while n>0:
        k=min(n,8); out.append(f"s_nop {k-1}"); n-=k
    return "\n".join(out)

class Rec2(Rec):
    def __init__(self, lds_set, d1=240, d2j=200, d2n=900, stflag='', kmflag='', steps=64, dbgM=False, timing=False):
        super().__init__(lds_set,stflag=stflag)
        self.d1=d1; self.d2j=d2j; self.d2n=d2n; self.stflag=stflag; self.kmflag=kmflag; self.steps=steps; self.dbgM=dbgM; self.timing=timing
    def fr(self,key):
        return self.frag[key]
    def regstr(self,b): return f"{b[0]}[{b[1]}:{b[1]+7}]"
    def scalars(self,a):
        a(f"""
  s_mov_b32 s{sSTEP}, 0
  s_add_u32 s{sPM}, s{sWS}, {P_OFF}
  s_addc_u32 s{sPM+1}, s{sWS+1}, 0
  s_mov_b32 s{sPM+2}, {2*1024*1024}
  s_mov_b32 s{sPM+3}, 0x00020000
  s_mov_b32 s{sWSR}, s{sWS}
  s_mov_b32 s{sWSR+1}, s{sWS+1}
  s_mov_b32 s{sWSR+2}, 0x10000000
  s_mov_b32 s{sWSR+3}, 0x00020000
  s_mov_b32 s{sPS}, 0
  s_mov_b32 s{sMP}, {MREL+MSLOT}
  s_mul_i32 s{sHP}, s{sH}, 9216
  s_lshl_b32 s74, s{sH}, 14
  s_lshl_b32 s75, s{sW}, 11
  s_add_u32 s{sXK}, s74, s75
  s_add_u32 s{sXK}, s{sXK}, {XKV_OFF}
  s_add_u32 s{sXV}, s{sXK}, 8192
  s_lshl_b32 s74, s{sH}, 13
  s_add_u32 s{sKMo}, s74, s75
  s_add_u32 s{sKMo}, s{sKMo}, {KMVM_OFF}
  s_mov_b32 s{sR1}, 0
  s_mov_b32 s{sR2}, 0
""")
    def step_scalars(self,a):
        a(f"""
  s_add_u32 s{sPst}, s{sPS}, s{sHP}
  s_add_u32 s{sPst2}, s{sPst}, 4096
  s_xor_b32 s74, s{sPS}, {PSLOT}
""")
        for i in range(4):
            a(f"s_add_u32 s{sPl+i}, s{sPS}, {i*73728}\n s_add_u32 s{sPr+i}, s74, {i*73728}")
        a(f"""
  s_xor_b32 s{sMR}, s{sMP}, {(MREL+MSLOT)^MREL}
  s_lshl_b32 s74, s{sW}, 10
  s_add_u32 s{sMg}, s{sMP}, s74
  s_add_u32 s{sMg+1}, s{sMg}, 4096
  s_lshl_b32 s74, s{sW}, 8
  s_add_u32 s74, s74, 8192
  s_add_u32 s{sMg+2}, s{sMP}, s74
""")
    def load_m0(self,a):
        a(f"""
  v_lshrrev_b32 v24, 4, v{vL16}      ; lane
  v_and_b32 v25, 7, v24
  v_mul_u32_u24 v25, 1152, v25
  v_lshrrev_b32 v24, 3, v24
  v_lshlrev_b32 v24, 4, v24
  v_add_u32 v24, v24, v25            ; r8*1152 + (lane>>3)*16
  s_lshl_b32 s74, s{sW}, 7
  v_add_u32 v25, s74, v24
  global_load_dwordx4 v[{MA}:{MA+3}], v25, s[{sMEM}:{sMEM+1}]
  global_load_dwordx4 v[{MA+4}:{MA+7}], v25, s[{sMEM}:{sMEM+1}] offset:512
  s_lshl_b32 s74, s{sW}, 5
  s_add_u32 s74, s74, 1024
  v_add_u32 v25, s74, v24
  s_mov_b64 exec, 0xffff
  global_load_dwordx4 v[{MA+8}:{MA+11}], v25, s[{sMEM}:{sMEM+1}]
  s_mov_b64 exec, -1
  s_waitcnt vmcnt(0)
""")
    def local_barrier(self,a,xcc_sgpr,lab):
        a(f"""
  s_waitcnt vmcnt(0)
  s_barrier
  s_lshl_b32 s74, s{xcc_sgpr}, 2
  s_add_u32 s74, s74, 32
  v_mov_b32 v12, s74
  v_mov_b32 v13, 1
  s_cmp_lg_u32 s{sW}, 0
  s_cbranch_scc1 {lab}_skip
  s_mov_b64 exec, 1
  global_atomic_add v12, v13, s[{sDBG}:{sDBG+1}]
  s_mov_b32 s75, 2000000
{lab}_poll:
  global_load_dword v14, v12, s[{sDBG}:{sDBG+1}] sc1
  s_waitcnt vmcnt(0)
  v_readfirstlane_b32 s76, v14
  s_sub_u32 s75, s75, 1
  s_cmp_eq_u32 s75, 0
  s_cbranch_scc1 {lab}_done
  s_cmp_lt_u32 s76, 32
  s_cbranch_scc1 {lab}_poll
{lab}_done:
  s_mov_b64 exec, -1
{lab}_skip:
  s_barrier
""")
    def loop(self,a,w,lab):
        L=Q(a,'lgkmcnt',15)
        sm=lambda d,A,B: f"v_smfmac_f32_16x16x64_bf16 v[{d}:{d+3}], v[{A}:{A+3}], {B}, v{vIdx}"
        Q0,Q1,K0,K1,V0,V1=24,28,32,36,40,44
        accs={('q',0):Q0,('q',1):Q1,('k',0):K0,('k',1):K1,('v',0):V0,('v',1):V1}
        own=[w,4+w]
        rest=[k for k in [8]+list(range(8)) if k not in own]
        order=own+rest
        mats=[('q',0),('k',0),('v',0),('q',1),('k',1),('v',1)]
        ops=[(m,t,ks) for ks in order for (m,t) in mats]
        ldsops=[i for i,(m,t,ks) in enumerate(ops) if self.frag[(m,ks,t)][0]=='lds']
        WBS=[64,72]
        slot_of={}
        for j,i in enumerate(ldsops): slot_of[i]=WBS[j%2]
        def rdfrag(key,slot,tag):
            off=self.frag[key][1]
            a(f"ds_read_b128 v[{slot}:{slot+3}], v{vFR} offset:{off}")
            a(f"ds_read_b128 v[{slot+4}:{slot+7}], v{vFR} offset:{off+1024}")
            L.issue(tag,2)
        for j in range(2):
            i=ldsops[j]; mm,tt,kk=ops[i]
            rdfrag((mm,kk,tt),slot_of[i],None)
        a("s_waitcnt lgkmcnt(0)"); L.reset()
        a(f"{lab}_top:")
        self.step_scalars(a)
        for r in range(24): a(f"v_mov_b32 v{24+r}, 0")
        a(f"ds_write_b128 v{vMB}, v[{MA}:{MA+3}] offset:{w*1024}"); L.issue()
        a(f"ds_write_b128 v{vMB}, v[{MA+4}:{MA+7}] offset:{(4+w)*1024}"); L.issue()
        a(f"s_mov_b64 exec, 0xffff\n ds_write_b128 v{vMB}, v[{MA+8}:{MA+11}] offset:{8192+w*256}\n s_mov_b64 exec, -1"); L.issue('mw')
        a(f"buffer_load_dwordx4 v[{KX}:{KX+3}], v{vL16}, s[{sWSR}:{sWSR+3}], s{sXK} offen {self.xld}")
        a(f"buffer_load_dwordx4 v[{KX+4}:{KX+7}], v{vL16}, s[{sWSR}:{sWSR+3}], s{sXK} offen offset:1024 {self.xld}")
        a(f"buffer_load_dwordx4 v[{VX}:{VX+3}], v{vL16}, s[{sWSR}:{sWSR+3}], s{sXV} offen {self.xld}")
        a(f"buffer_load_dwordx4 v[{VX+4}:{VX+7}], v{vL16}, s[{sWSR}:{sWSR+3}], s{sXV} offen offset:1024 {self.xld}")
        abuf={own[0]:MA,own[1]:MA+4}
        ring=[MA+8,MA,MA+4]
        nxt=2
        rdA=0
        def issueA():
            nonlocal rdA
            if rdA<len(rest):
                ks=rest[rdA]; b=ring[rdA%3]; abuf[ks]=b
                a(f"ds_read_b128 v[{b}:{b+3}], v{vMB} offset:{ks*1024}"); L.issue(('A',ks)); rdA+=1
        resets=[]
        if self.isjob(w):
            resets=[f"s_mov_b64 exec, s[{sJM}:{sJM+1}]\n buffer_store_dwordx4 v[60:63]X"]
        for i,(m,t,ks) in enumerate(ops):
            if i==6:
                L.wait('mw'); a("s_barrier")
                issueA(); issueA()
            if i==12: issueA()
            if i>=18 and i%6==0: issueA_now=True
            else: issueA_now=False
            if i%6==0 and ks not in own: L.wait(('A',ks))
            f=self.frag[(m,ks,t)]
            if f[0]=='reg': B=self.regstr(f[1])
            else:
                s_=slot_of[i]; B=f"v[{s_}:{s_+7}]"
                if ('W',i) in L.pos: L.wait(('W',i))
            a(sm(accs[(m,t)],abuf[ks],B))
            if f[0]=='lds' and nxt<len(ldsops):
                j=ldsops[nxt]; mm,tt,kk=ops[j]
                rdfrag((mm,kk,tt),slot_of[j],('W',j)); nxt+=1
            if issueA_now: issueA()
            if self.isjob(w) and i in (20,26,32,38):
                k=(i-20)//6
                a(f"s_mov_b64 exec, s[{sJM}:{sJM+1}]\n buffer_store_dwordx4 v[76:79], v{vPld}, s[{sPM}:{sPM+3}], s{sPr+k} offen\n s_mov_b64 exec, -1") if False else None
        a("s_nop 7")
        cv=lambda d,x,y: a(f"v_cvt_pk_bf16_f32 v{d}, v{x}, v{y}")
        for k,src in enumerate([Q0,Q1,K0,K1,V0,V1]):
            cv(12+2*k,src,src+1); cv(13+2*k,src+2,src+3)
        oorder=[(k,T) for T in range(9) for k in range(2)]
        olds=[(k,T) for (k,T) in oorder if self.frag[('o',k,T)][0]=='lds']
        oslots=[64,72,56]
        oslot={}
        for j,kt in enumerate(olds): oslot[kt]=oslots[j%3]
        onxt=0
        def rdO():
            nonlocal onxt
            if onxt<len(olds):
                k,T=olds[onxt]; rdfrag(('o',k,T),oslot[(k,T)],('O',k,T)); onxt+=1
        rdO(); rdO()
        tm=lambda d,A: a(f"v_mfma_f32_16x16x16_bf16 v[{d}:{d+3}], v[{A}:{A+1}], v[{vSel}:{vSel+1}], 0")
        a("s_nop 0")
        tm(24,12); tm(28,14); tm(32,16); tm(36,18)
        a("s_nop 5")
        cv(12,24,25); cv(13,26,27); cv(14,28,29); cv(15,30,31)
        cv(16,32,33); cv(17,34,35); cv(18,36,37); cv(19,38,39)
        a(f"buffer_store_dwordx4 v[16:19], v{vL16}, s[{sWSR}:{sWSR+3}], s{sKMo} offen {self.kmflag}")
        a(f"buffer_store_dwordx4 v[20:23], v{vL16}, s[{sWSR}:{sWSR+3}], s{sKMo} offen offset:1024 {self.kmflag}")
        a(f"s_cmp_eq_u32 s{sSTEP}, {self.steps-1}\n s_cbranch_scc1 {lab}_exit")
        a("s_waitcnt vmcnt(2)")
        a(f"v_mfma_f32_16x16x32_bf16 v[24:27], v[16:19], v[12:15], 0")
        a(f"v_mfma_f32_16x16x32_bf16 v[28:31], v[{KX}:{KX+3}], v[12:15], 0")
        a(f"v_mfma_f32_16x16x32_bf16 v[32:35], v[{KX+4}:{KX+7}], v[12:15], 0")
        a("s_nop 7")
        for r in range(4): a(f"v_cndmask_b32 v{28+r}, v{32+r}, v{28+r}, s[{sMASK8}:{sMASK8+1}]")
        a(f"ds_write_b128 v{vMB}, v[28:31] offset:{LDS_SX-LDS_M+w*1024}"); L.issue()
        a(f"s_mov_b64 exec, 0x00ff00ff\n ds_write_b128 v{vSm}, v[24:27] offset:{w*256}\n s_mov_b64 exec, -1"); L.issue('sw')
        L.wait('sw'); a("s_barrier")
        for k in range(4):
            a(f"ds_read_b128 v[{24+4*k}:{24+4*k+3}], v{vMB} offset:{LDS_SX-LDS_M+k*1024}"); L.issue(('sx',k))
        for k in range(4):
            a(f"ds_read_b128 v[{40+4*k}:{40+4*k+3}], v{vSm} offset:{k*256}"); L.issue(('sm',k))
        L.wait(('sx',3))
        for r in range(4): a(f"v_add_f32 v{24+r}, v{24+r}, v{28+r}\n v_add_f32 v{32+r}, v{32+r}, v{36+r}")
        for r in range(4): a(f"v_add_f32 v{24+r}, v{24+r}, v{32+r}")
        L.wait(('sm',3))
        for r in range(4): a(f"v_add_f32 v{40+r}, v{40+r}, v{44+r}\n v_add_f32 v{48+r}, v{48+r}, v{52+r}")
        for r in range(4): a(f"v_add_f32 v{40+r}, v{40+r}, v{48+r}")
        a(f"""
  v_max3_f32 v12, v24, v25, v26
  v_max3_f32 v13, v27, v40, v41
  v_max3_f32 v12, v12, v42, v43
  v_max_f32 v12, v12, v13
  s_nop 1
  v_max_f32_dpp v12, v12, v12 row_ror:8 row_mask:0xf bank_mask:0xf
  v_mov_b32 v13, v12
  s_nop 1
  v_permlane16_swap_b32 v12, v13
  v_max_f32 v12, v12, v13
  v_mov_b32 v13, v12
  s_nop 1
  v_permlane32_swap_b32 v12, v13
  v_max_f32 v12, v12, v13
  v_mul_f32 v12, s{sC}, v12
""")
        for r in range(4):
            a(f"v_fma_f32 v{24+r}, v{24+r}, s{sC}, -v12\n v_fma_f32 v{40+r}, v{40+r}, s{sC}, -v12")
        for r in range(4): a(f"v_exp_f32 v{24+r}, v{24+r}")
        for r in range(4): a(f"v_exp_f32 v{40+r}, v{40+r}")
        a(f"""
  v_cvt_pk_bf16_f32 v16, v24, v25
  v_cvt_pk_bf16_f32 v17, v26, v27
  v_cvt_pk_bf16_f32 v14, v40, v41
  v_cvt_pk_bf16_f32 v15, v42, v43
  v_mov_b32_dpp v18, v16 row_ror:8 row_mask:0xf bank_mask:0xf
  v_mov_b32_dpp v19, v17 row_ror:8 row_mask:0xf bank_mask:0xf
  v_add_f32 v12, v24, v25
  v_add_f32 v13, v26, v27
  v_add_f32 v44, v40, v41
  v_add_f32 v45, v42, v43
  v_mfma_f32_16x16x16_bf16 v[28:31], v[20:21], v[14:15], 0
  v_mfma_f32_16x16x16_bf16 v[32:35], v[22:23], v[14:15], 0
  v_add_f32 v12, v12, v13
  v_add_f32 v44, v44, v45
  v_fmac_f32 v12, 0x3e800000, v44
  v_mfma_f32_16x16x32_bf16 v[28:31], v[{VX}:{VX+3}], v[16:19], v[28:31]
  v_mfma_f32_16x16x32_bf16 v[32:35], v[{VX+4}:{VX+7}], v[16:19], v[32:35]
  v_add_f32_dpp v12, v12, v12 row_ror:8 row_mask:0xf bank_mask:0xf
  v_mov_b32 v13, v12
  s_nop 1
  v_permlane16_swap_b32 v12, v13
  v_add_f32 v12, v12, v13
  v_mov_b32 v13, v12
  s_nop 1
  v_permlane32_swap_b32 v12, v13
  v_add_f32 v12, v12, v13
  v_rcp_f32 v12, v12
""")
        rdO()
        a("s_nop 1")
        for r in range(8): a(f"v_mul_f32 v{28+r}, v{28+r}, v12")
        cv(36,28,29); cv(37,30,31); cv(38,32,33); cv(39,34,35)
        a(f"s_mov_b64 exec, s[{sMASK8}:{sMASK8+1}]")
        a(f"ds_write_b64 v{vOw}, v[36:37] offset:{(4*w)*128}"); L.issue()
        a(f"ds_write_b64 v{vOw}, v[38:39] offset:{(4*w+2)*128}"); L.issue('ow')
        a("s_mov_b64 exec, -1")
        L.wait('ow'); a("s_barrier")
        a(f"ds_read_b128 v[48:51], v{vMB} offset:{LDS_O-LDS_M}"); L.issue('oa0')
        a(f"ds_read_b128 v[52:55], v{vMB} offset:{LDS_O-LDS_M+1024}"); L.issue('oa1')
        for r in range(36): a(f"v_mov_b32 v{12+r}, 0")
        L.wait('oa1')
        for (k,T) in oorder:
            f=self.frag[('o',k,T)]
            if f[0]=='reg': B=self.regstr(f[1])
            else:
                s_=oslot[(k,T)]; B=f"v[{s_}:{s_+7}]"; L.wait(('O',k,T))
            a(sm(12+4*T,48+4*k,B))
            if f[0]=='lds': rdO()
        L2=[]
        for j in range(2):
            i=ldsops[j]; mm,tt,kk=ops[i]
            rdfrag((mm,kk,tt),slot_of[i],('W',i))
        a("s_nop 3")
        def pack4(T0,c):
            A_,B_,C_,D_=[12+4*(T0+x) for x in range(4)]
            for r in range(4): a(f"v_permlane32_swap_b32 v{A_+r}, v{B_+r}")
            for r in range(4): a(f"v_permlane32_swap_b32 v{C_+r}, v{D_+r}")
            for r in range(4): a(f"v_add_f32 v{A_+r}, v{A_+r}, v{B_+r}")
            for r in range(4): a(f"v_add_f32 v{C_+r}, v{C_+r}, v{D_+r}")
            cv(c,A_,A_+1); cv(c+1,A_+2,A_+3); cv(c+2,C_,C_+1); cv(c+3,C_+2,C_+3)
            a("s_nop 1")
            a(f"v_permlane16_swap_b32 v{c}, v{c+2}\n v_permlane16_swap_b32 v{c+1}, v{c+3}")
        pack4(0,48)
        a(f"buffer_store_dwordx4 v[48:51], v{vPst}, s[{sPM}:{sPM+3}], s{sPst} offen {self.stflag}")
        pack4(4,52)
        a(f"buffer_store_dwordx4 v[52:55], v{vPst}, s[{sPM}:{sPM+3}], s{sPst2} offen {self.stflag}")
        a(f"""
  v_permlane32_swap_b32 v44, v46
  v_permlane32_swap_b32 v45, v47
  v_add_f32 v44, v44, v46
  v_add_f32 v45, v45, v47
  v_cvt_pk_bf16_f32 v44, v44, v45
  buffer_store_dword v44, v{vP8}, s[{sPM}:{sPM+3}], s{sPst} offen {self.stflag}
""")
        a(f"""
  s_add_u32 s{sXK}, s{sXK}, {32*16384}
  s_add_u32 s{sXV}, s{sXV}, {32*16384}
  s_add_u32 s{sKMo}, s{sKMo}, {32*8192}
  s_mov_b32 s{sCNT}, 400000
""")
        if self.isjob(w):
            a(f"""
  s_cmp_eq_u32 s{sJOB}, 0
  s_cbranch_scc1 {lab}_nojob
  v_mov_b32 v56, v{vSel}
  v_mov_b32 v57, v{vSel+1}
  v_mov_b32 v58, v{vSel}
  v_mov_b32 v59, v{vSel+1}
  v_mov_b32 v60, -1
  v_mov_b32 v61, -1
  v_mov_b32 v62, -1
  v_mov_b32 v63, -1
  v_permlane16_swap_b32 v56, v58
  v_permlane16_swap_b32 v57, v59
""")
            for k in range(4):
                a(f"buffer_store_dwordx4 v[60:63], v{vPld}, s[{sPM}:{sPM+3}], s{sPr+k} offen {self.stflag}")
            a(nops(self.d1))
            a(f"{lab}_poll1:")
            for k in range(4):
                a(f"buffer_load_dwordx4 v[{12+4*k}:{12+4*k+3}], v{vPld}, s[{sPM}:{sPM+3}], s{sPl+k} offen sc1")
            a(f"""
  s_waitcnt vmcnt(3)
  v_mfma_f32_16x16x32_bf16 v[28:31], v[12:15], v[56:59], 0
  s_waitcnt vmcnt(2)
  v_mfma_f32_16x16x32_bf16 v[32:35], v[16:19], v[56:59], 0
  s_waitcnt vmcnt(1)
  v_mfma_f32_16x16x32_bf16 v[28:31], v[20:23], v[56:59], v[28:31]
  s_waitcnt vmcnt(0)
  v_mfma_f32_16x16x32_bf16 v[32:35], v[24:27], v[56:59], v[32:35]
  s_nop 7
  v_add_f32 v28, v28, v32
  v_add_f32 v29, v29, v33
  v_add_f32 v30, v30, v34
  v_add_f32 v31, v31, v35
  s_nop 1
  v_permlane32_swap_b32 v28, v30
  v_permlane32_swap_b32 v29, v31
  v_add_f32 v28, v28, v30
  v_add_f32 v29, v29, v31
  v_cmp_u_f32 vcc, v28, v29
  v_cvt_pk_bf16_f32 v28, v28, v29
  s_cbranch_vccz {lab}_got1
  s_add_u32 s{sR1}, s{sR1}, 1
  s_sub_u32 s{sCNT}, s{sCNT}, 1
  s_cmp_lg_u32 s{sCNT}, 0
  s_cbranch_scc1 {lab}_poll1
  s_branch {lab}_exit
{lab}_got1:
  s_mov_b64 exec, s[{sMASK8}:{sMASK8+1}]
  buffer_store_dword v60, v{vPub}, s[{sPM}:{sPM+3}], s{sMR} offen {self.stflag}
  buffer_store_dword v28, v{vPub}, s[{sPM}:{sPM+3}], s{sMP} offen {self.stflag}
""")
            if self.dbgM:
                a(f"""
  s_mul_i32 s74, s{sSTEP}, 9216
  s_add_u32 s74, s74, {DBG_OFF}
  buffer_store_dword v28, v{vPub}, s[{sWSR}:{sWSR+3}], s74 offen
""")
            a("s_mov_b64 exec, -1")
            a(nops(self.d2j))
            a(f"s_branch {lab}_p2\n{lab}_nojob:")
        a(nops(self.d2n))
        b=MA
        a(f"""
{lab}_p2:
  buffer_load_dwordx4 v[{b}:{b+3}], v{vL16}, s[{sPM}:{sPM+3}], s{sMg} offen sc1
  buffer_load_dwordx4 v[{b+4}:{b+7}], v{vL16}, s[{sPM}:{sPM+3}], s{sMg+1} offen sc1
  s_mov_b64 exec, 0xffff
  buffer_load_dwordx4 v[{b+8}:{b+11}], v{vL16}, s[{sPM}:{sPM+3}], s{sMg+2} offen sc1
  s_mov_b64 exec, -1
  s_waitcnt vmcnt(0)
  v_max_u32 v24, v{b}, v{b+1}
  v_max3_u32 v24, v24, v{b+2}, v{b+3}
  v_max3_u32 v24, v24, v{b+4}, v{b+5}
  v_max3_u32 v24, v24, v{b+6}, v{b+7}
  v_max3_u32 v25, v{b+8}, v{b+9}, v{b+10}
  v_max_u32 v25, v25, v{b+11}
  v_cmp_eq_u32 vcc, -1, v24
  v_cmp_eq_u32 s[74:75], -1, v25
  s_and_b64 s[74:75], s[74:75], 0xffff
  s_or_b64 vcc, vcc, s[74:75]
  s_cbranch_vccz {lab}_got2
  s_add_u32 s{sR2}, s{sR2}, 1
  s_sub_u32 s{sCNT}, s{sCNT}, 1
  s_cmp_lg_u32 s{sCNT}, 0
  s_cbranch_scc1 {lab}_p2
  s_branch {lab}_exit
{lab}_got2:
  s_add_u32 s{sSTEP}, s{sSTEP}, 1
  s_xor_b32 s{sPS}, s{sPS}, {PSLOT}
  s_xor_b32 s{sMP}, s{sMP}, {(MREL+MSLOT)^MREL}
  s_waitcnt lgkmcnt(0)
  s_branch {lab}_top
""")
    def isjob(self,w): return w<3
    xld=''

def rec_role(a,R,xcc_sgpr,lab='.Lrec'):
    R.startup(a)
    R.scalars(a)
    R.local_barrier(a,xcc_sgpr,lab+'_lb')
    R.load_m0(a)
    for w in range(1,4):
        a(f"s_cmp_eq_u32 s{sW}, {w}\n s_cbranch_scc1 {lab}_w{w}")
    for w in range(4):
        a(f"{lab}_w{w}:")
        R.loop(a,w,f"{lab}_w{w}")
        a(f"{lab}_w{w}_exit:")
        if w<3: a(f"s_branch {lab}_done")
    a(f"{lab}_done:")
def rec_kernel(name,R,stats=True):
    a=Asm()
    a(f"""
  s_load_dwordx2 s[6:7], s[0:1], 88
  s_getreg_b32 s20, hwreg(HW_REG_XCC_ID, 0, 4)
  s_cmp_ge_u32 s2, 256
  s_cbranch_scc1 .L{name}_end
  s_waitcnt lgkmcnt(0)
  s_lshl_b32 s21, s20, 2
  v_mov_b32 v1, s21
  v_mov_b32 v2, 1
  v_cmp_eq_u32 vcc, 0, v0
  s_and_saveexec_b64 s[30:31], vcc
  global_atomic_add v3, v1, v2, s[6:7] sc0
  s_waitcnt vmcnt(0)
  ds_write_b32 v0, v3
  s_waitcnt lgkmcnt(0)
  s_mov_b64 exec, s[30:31]
  s_barrier
  v_mov_b32 v9, 0
  ds_read_b32 v3, v9
  s_waitcnt lgkmcnt(0)
  v_readfirstlane_b32 s{sH}, v3
  s_cmp_lg_u32 s20, 0
  s_cbranch_scc1 .L{name}_end
  s_cmp_ge_u32 s{sH}, 32
  s_cbranch_scc1 .L{name}_end
  s_mov_b32 s90, s20
  s_barrier
  s_memtime s[92:93]
  s_waitcnt lgkmcnt(0)
""")
    rec_role(a,R,90,'.L'+name)
    if stats:
        a(f"""
  s_memtime s[94:95]
  s_waitcnt lgkmcnt(0)
  s_sub_u32 s94, s94, s92
  s_lshl_b32 s74, s{sH}, 2
  s_add_u32 s74, s74, s{sW}
  s_lshl_b32 s74, s74, 4
  s_add_u32 s74, s74, {DBG_OFF+1024*1024}
  v_mov_b32 v12, s94
  v_mov_b32 v13, s{sSTEP}
  v_mov_b32 v14, s{sR1}
  v_mov_b32 v15, s{sR2}
  v_mov_b32 v16, s74
  s_mov_b64 exec, 1
  buffer_store_dwordx4 v[12:15], v16, s[{sWSR}:{sWSR+3}], 0 offen
  s_mov_b64 exec, -1
""")
    a(f".L{name}_end:\n s_endpgm")
    return a
```

```python
import sys
sys.path.insert(0,'gen')
from common import *
import k_r1, r3, r4, r5, rec2, hazard
NAME='concat_heads__mha_block__memory_aug_recurrent_mem_tr__prompt'
ref=open(f'cdna_kernels/{NAME}.s.ref').read().split('\n')
hdr='\n'.join(l for l in ref if l.startswith(';') and '@launch' not in l and 'Override launch' not in l and 'grid=ceil' not in l and not l.startswith('    '))
hdr='\n'.join(l for l in ref[:ref.index([l for l in ref if l.startswith('; Override')][0])])+'\n'
LDSSET=[('q',5),('q',6),('q',7),('q',8),('k',8),('o',0,0),('o',1,0),('o',0,2),('o',1,2)]
ks=[];ls=[]
def add(n,a,g):
    a.lines=hazard.fix(a.lines); ks.append((n,a.text())); ls.append((n,g,163840))
for v in ['kv','qq','aqk','avv']:
    n=(NAME+"_kernel" if v=="kv" else f"v1{v}_kernel"); a,g=k_r1.r1_kernel(n,v); add(n,a,g)
n='v1rec_kernel'; add(n,rec2.rec_kernel(n,rec2.Rec2(LDSSET),stats=False),256)
n='v1att_kernel'; a,g=r3.r3_kernel(n,timing=False); add(n,a,g)
n='v1xatt_kernel'; a,g=r4.r4_kernel(n); add(n,a,g)
n='v1bout_kernel'; a,g=r5.r5_kernel(n); add(n,a,g)
n='v1aout_kernel'; a,g=k_r1.r1_kernel(n,'aout'); add(n,a,g)
t=wrap(ks,ls,hdr)
open(sys.argv[1] if len(sys.argv)>1 else f'cdna_kernels/{NAME}.s','w').write(t)
print('bytes',len(t))
```

```python
class Asm:
    def __init__(self):
        self.lines = []
        self.uid = 0
    def __call__(self, s):
        for l in s.split('\n'):
            l = l.strip()
            if l:
                self.lines.append(('' if l.endswith(':') else '  ') + l)
    def c(self, s):
        self.lines.append('  ; ' + s)
    def label(self, l):
        self.lines.append(l + ':')
    G = [0]
    def newlabel(self, p='L'):
        Asm.G[0] += 1
        return f'.{p}{Asm.G[0]}'
    def text(self):
        return '\n'.join(self.lines) + '\n'

def vr(b, n=1):
    return f'v{b}' if n == 1 else f'v[{b}:{b+n-1}]'
def ar(b, n=1):
    return f'a{b}' if n == 1 else f'a[{b}:{b+n-1}]'
def sr(b, n=1):
    return f's{b}' if n == 1 else f's[{b}:{b+n-1}]'

def header(name):
    return f""".globl {name}
.p2align 8
.type {name},@function
{name}:
"""
def descriptor(name, vgpr=512, accum=256, sgpr=102, kernarg=104):
    return f""".amdhsa_kernel {name}
  .amdhsa_next_free_vgpr {vgpr}
  .amdhsa_next_free_sgpr {sgpr}
  .amdhsa_accum_offset {accum}
  .amdhsa_group_segment_fixed_size 0
  .amdhsa_kernarg_size {kernarg}
  .amdhsa_user_sgpr_count 2
  .amdhsa_user_sgpr_kernarg_segment_ptr 1
  .amdhsa_system_sgpr_workgroup_id_x 1
.end_amdhsa_kernel
"""
```

```python
import struct
from asmlib import *
MB=1<<20
XKV_OFF=0
QX_OFF=32*MB
KMVM_OFF=48*MB
P_OFF=64*MB
M_OFF=65*MB
FLG_OFF=66*MB
OX_OFF=68*MB
QA_OFF=84*MB
QA_TILE=1152
KVA_OFF=88*MB
KVA_TILE=2496
OA_OFF=94*MB
WS_BYTES=268435456
OUT_BYTES=2048*1152*2
def f2u(x): return struct.unpack('<I',struct.pack('<f',x))[0]
LOG2E=1.4426950408889634
sAX=4; sWQKV=6; sAWO=8; sBX=10; sMEM=12; sWq=14; sWk=16; sWv=18; sWo=20; sOUT=22; sDBG=24; sWS=26
sW=28
sTASK=29
vLANE=1
def load_ptrs(a):
    offs={sAX:0,sWQKV:8,sAWO:16,sBX:24,sMEM:32,sWq:40,sWk:48,sWv:56,sWo:64,sOUT:80,sDBG:88,sWS:96}
    for s,o in offs.items():
        a(f"s_load_dwordx2 s[{s}:{s+1}], s[0:1], {o}")
    a(f"""
  v_lshrrev_b32 v2, 6, v0
  v_and_b32 v{vLANE}, 63, v0
  v_readfirstlane_b32 s{sW}, v2
  s_waitcnt lgkmcnt(0)
""")
def srd(a,d,base,nbytes):
    a(f"""
  s_mov_b32 s{d}, s{base}
  s_mov_b32 s{d+1}, s{base+1}
  s_mov_b32 s{d+2}, {nbytes}
  s_mov_b32 s{d+3}, 0x00020000
""")
def wrap(kernels, launches, hdr_comment='', single=False):
    t=hdr_comment
    if len(launches)==1 and single:
        n,g,l=launches[0]
        t+=f"; @launch grid=({g},1,1) block=(256,1,1) lds={l}\n"
    else:
      for n,g,l in launches:
        t+=f"; @launch kernel={n} grid=({g},1,1) block=(256,1,1) lds={l}\n"
    t+='.amdgcn_target "amdgcn-amd-amdhsa--gfx950"\n.text\n'
    for n,body in kernels:
        t+=header(n)+body
    t+='.section .rodata,"a"\n.p2align 6\n'
    for n,body in kernels:
        t+=descriptor(n,512,256,102,104)
    return t
def interleave(a, mfmas, fillers):
    for i,m in enumerate(mfmas):
        a(m)
        for f in fillers.get(i,[]): a(f)

FL_OFF=FLG_OFF+768*1024
F_KV=FL_OFF; F_Q=FL_OFF+8192; F_KM=FL_OFF+16384; F_OX=FL_OFF+24576; F_AP=FL_OFF+32768; F_AT=FL_OFF+33280
FL_BYTES=36864
TS_OFF=FLG_OFF+1536*1024
D_HOME=64; D_RANK=68; D_INIT=72; D_LBAR=76; D_LBAR2=80
P2_OFF=100*MB
NULLOFF=0x40000000
sRANK=90
def stamp(a,k,slot=sRANK,on=True,base=sWS,w=sW):
    if not on: return
    l=a.newlabel('st')
    a(f"""
  s_cmp_lg_u32 s{w}, 0
  s_cbranch_scc1 {l}
  s_memrealtime s[92:93]
  s_lshl_b32 s94, s{slot}, 6
  s_add_u32 s94, s94, {TS_OFF+4*k}
  s_waitcnt lgkmcnt(0)
  s_mov_b64 exec, 1
  v_mov_b32 v254, s94
  v_mov_b32 v255, s92
  global_store_dword v254, v255, s[{base}:{base+1}]
  s_mov_b64 exec, -1
{l}:
""")
def wait_word(a,base,off,vt=(250,251),lim=4000000,glob=True,sleep=1):
    l=a.newlabel('ww')
    a(f"""
  v_mov_b32 v{vt[0]}, {off}
  s_mov_b32 s95, {lim}
{l}:
  global_load_dword v{vt[1]}, v{vt[0]}, s[{base}:{base+1}] sc1
  s_waitcnt vmcnt(0)
  v_readfirstlane_b32 s94, v{vt[1]}
  s_cmp_lg_u32 s94, 0
  s_cbranch_scc1 {l}_ok
  s_sleep {sleep}
  s_sub_u32 s95, s95, 1
  s_cmp_lg_u32 s95, 0
  s_cbranch_scc1 {l}
{l}_ok:
""")
def wait_words(a,vaddr,mask,base=sWS,vt=251,lim=4000000,sleep=1):
    l=a.newlabel('wm')
    lo=mask&0xffffffff; hi=mask>>32
    a(f"""
  s_mov_b32 s95, {lim}
  s_mov_b32 exec_lo, {lo:#x}
  s_mov_b32 exec_hi, {hi:#x}
{l}:
  global_load_dword v{vt}, v{vaddr}, s[{base}:{base+1}] sc1
  s_waitcnt vmcnt(0)
  v_cmp_eq_u32 vcc, 0, v{vt}
  s_cbranch_vccz {l}_ok
  s_sleep {sleep}
  s_sub_u32 s95, s95, 1
  s_cmp_lg_u32 s95, 0
  s_cbranch_scc1 {l}
{l}_ok:
  s_mov_b64 exec, -1
""")
```

```python
from common import *
import r1
def cnt(a,NTG):
    q,rem=divmod(64,NTG)
    a(f"s_cmp_lt_u32 s61, {rem}\n s_cselect_b32 s50, {q+1}, {q}")
def flagp(a,base,idx,NTG):
    a(f"""
  s_lshl_b32 s75, s61, 7
  s_lshl_b32 s76, s{idx}, 2
  s_add_u32 s75, s75, s76
  s_add_u32 s75, s75, {base}
  s_cmp_eq_u32 s{sW}, 0
  s_cselect_b32 s75, s75, {NULLOFF}
  s_cselect_b32 s76, {NTG*128}, 0
""")
def r1_params(a,var,NTG=None):
    if var=='kv':
        NTG=NTG or 7
        srd(a,32,sBX,2048*1152); srd(a,36,sWk,576*8192); srd(a,40,sWv,576*8192); srd(a,44,sWS,WS_BYTES)
        a(f"""
  s_and_b32 s60, s{sTASK}, 31
  s_lshr_b32 s61, s{sTASK}, 5       ; tg
  s_mov_b32 s59, 8192
  s_lshl_b32 s57, s60, 8
  s_lshl_b32 s62, s{sW}, 6
  s_add_u32 s57, s57, s62
  s_mov_b32 s58, s57
  s_mul_i32 s48, s61, 36864
  s_mov_b32 s49, {NTG*36864}
  s_lshl_b32 s51, s61, 19           ; tg*32*16384
  s_lshl_b32 s62, s60, 14
  s_add_u32 s51, s51, s62
  s_lshl_b32 s62, s{sW}, 11
  s_add_u32 s51, s51, s62
  s_add_u32 s51, s51, {XKV_OFF}
  s_add_u32 s52, s51, 8192
  s_mov_b32 s53, {NTG<<19}
""")
        cnt(a,NTG); flagp(a,F_KV,60,NTG)
        return 'TN',('kt','kt'),32*NTG
    if var=='qq':
        NTG=NTG or 14
        srd(a,32,sBX,2048*1152); srd(a,36,sWq,576*8192); srd(a,40,sWq,576*8192); srd(a,44,sWS,WS_BYTES)
        a(f"""
  s_and_b32 s60, s{sTASK}, 15
  s_lshr_b32 s61, s{sTASK}, 4       ; tg
  s_mov_b32 s59, 8192
  s_lshl_b32 s57, s60, 9
  s_lshl_b32 s62, s{sW}, 6
  s_add_u32 s57, s57, s62
  s_add_u32 s58, s57, 256
  s_mul_i32 s48, s61, 36864
  s_mov_b32 s49, {NTG*36864}
  s_lshl_b32 s51, s61, 18           ; tg*32*8192
  s_lshl_b32 s62, s60, 14
  s_add_u32 s51, s51, s62
  s_lshl_b32 s62, s{sW}, 11
  s_add_u32 s51, s51, s62
  s_add_u32 s51, s51, {QX_OFF}
  s_add_u32 s52, s51, 8192
  s_mov_b32 s53, {NTG<<18}
""")
        cnt(a,NTG); flagp(a,F_Q,60,NTG)
        return 'TT',('kt','kt'),16*NTG
    if var=='aqk':
        NTG=NTG or 8
        srd(a,32,sAX,2048*1152); srd(a,36,sWQKV,576*3456); srd(a,40,sWQKV,576*3456); srd(a,44,sWS,WS_BYTES)
        a(f"""
  s_and_b32 s60, s{sTASK}, 7
  s_lshl_b32 s60, s60, 2
  s_add_u32 s60, s60, s{sW}          ; h
  s_lshr_b32 s61, s{sTASK}, 3       ; tg
  s_mov_b32 s59, 3456
  s_mul_i32 s57, s60, 36
  s_add_u32 s58, s57, 1152
  s_mul_i32 s48, s61, 36864
  s_mov_b32 s49, {NTG*36864}
  s_mov_b32 s50, {64//NTG}
  s_lshl_b32 s62, s60, 6
  s_add_u32 s62, s62, s61            ; h*64+tg
  s_mul_i32 s51, s62, {QA_TILE}
  s_add_u32 s51, s51, {QA_OFF}
  s_mul_i32 s52, s62, {KVA_TILE}
  s_add_u32 s52, s52, {KVA_OFF}
  s_mov_b32 s53, {NTG*QA_TILE}
  s_mov_b32 s71, {NTG*KVA_TILE}
""")
        return 'TT',('aq','ak'),8*NTG
    if var=='avv':
        NTG=NTG or 8
        srd(a,32,sAX,2048*1152); srd(a,36,sWQKV,576*3456); srd(a,40,sWQKV,576*3456); srd(a,44,sWS,WS_BYTES)
        a(f"""
  s_and_b32 s60, s{sTASK}, 3
  s_lshl_b32 s60, s60, 3
  s_lshl_b32 s62, s{sW}, 1
  s_add_u32 s60, s60, s62          ; h0
  s_lshr_b32 s61, s{sTASK}, 2       ; tg
  s_mov_b32 s59, 3456
  s_mul_i32 s57, s60, 36
  s_add_u32 s57, s57, 2304
  s_add_u32 s58, s57, 36
  s_mul_i32 s48, s61, 36864
  s_mov_b32 s49, {NTG*36864}
  s_mov_b32 s50, {64//NTG}
  s_lshl_b32 s62, s60, 6
  s_add_u32 s62, s62, s61            ; h*64+tg
  s_mul_i32 s51, s62, {KVA_TILE}
  s_add_u32 s51, s51, {KVA_OFF}
  s_add_u32 s52, s51, {64*KVA_TILE}
  s_mov_b32 s53, {NTG*KVA_TILE}
""")
        return 'NN',('av','av'),4*NTG
    if var=='aout':
        NTG=NTG or 8
        srd(a,36,sAWO,576*1152); srd(a,40,sAWO,576*1152); srd(a,44,sOUT,OUT_BYTES)
        a(f"""
  s_add_u32 s32, s{sWS}, {OA_OFF}
  s_addc_u32 s33, s{sWS+1}, 0
  s_mov_b32 s34, {2048*1152}
  s_mov_b32 s35, 0x00020000
  s_mul_i32 s61, s{sTASK}, 43691
  s_lshr_b32 s61, s61, 17
  s_mul_i32 s60, s61, 3
  s_sub_u32 s60, s{sTASK}, s60       ; cg
  s_lshl_b32 s60, s60, 3
  s_lshl_b32 s62, s{sW}, 1
  s_add_u32 s60, s60, s62            ; ct0
  s_mov_b32 s59, 1152
  s_lshl_b32 s57, s60, 6
  s_add_u32 s58, s57, 64
  s_mul_i32 s48, s61, 36864
  s_mov_b32 s49, {NTG*36864}
  s_mov_b32 s50, {64//NTG}
  s_mul_i32 s51, s61, {32*2304}
  s_add_u32 s51, s51, s57
  s_add_u32 s52, s51, 64
  s_mov_b32 s53, {NTG*32*2304}
  s_cmp_lt_u32 s60, 18
  s_cselect_b32 s51, s51, {r1.NULLOFF}
  s_cselect_b32 s52, s52, {r1.NULLOFF}
  s_cselect_b32 s53, s53, 0
  s_cselect_b32 s57, s57, 0
  s_cselect_b32 s58, s58, 0
""")
        return 'TT',('out','out'),3*NTG
def r1_task(a,var,lab,stflag='',timing=False,NTG=None,flags=False,after_w=None):
    if timing: a("s_memtime s[80:81]\n s_memrealtime s[86:87]")
    o,k,n=r1_params(a,var,NTG)
    if var!='aqk': a("s_mov_b32 s71, s53")
    r1.r1_setup(a); r1.epi_setup(a,k)
    r1.r1_load_w(a)
    if after_w: after_w(a)
    if timing: a("s_memtime s[82:83]")
    r1.r1_main(a,o,k,lab,stflag,flags)
    if timing:
        a(f"""
  s_memtime s[84:85]
  s_memrealtime s[88:89]
  s_waitcnt lgkmcnt(0)
  s_sub_u32 s82, s88, s86
  s_sub_u32 s84, s84, s80
  s_lshl_b32 s60, s{sTASK}, 2
  s_add_u32 s60, s60, s{sW}
  s_lshl_b32 s60, s60, 3
  s_add_u32 s60, s60, {FLG_OFF}
  v_mov_b32 v2, s60
  v_mov_b32 v4, s82
  v_mov_b32 v5, s84
  s_mov_b64 exec, 1
  global_store_dwordx2 v2, v[4:5], s[{sWS}:{sWS+1}]
  s_mov_b64 exec, -1
""")
    return n
def r1_kernel(name,var,timing=False):
    a=Asm()
    load_ptrs(a)
    a(f"s_mov_b32 s{sTASK}, s2")
    b=Asm()
    n=r1_task(b,var,'.L'+name,timing=timing)
    a(f"s_cmp_ge_u32 s2, {n}\n s_cbranch_scc1 .L{name}_end")
    a.lines+=b.lines
    a(f".L{name}_end:\n s_endpgm")
    return a,n
```

```python
from common import *
NULLOFF=0x40000000
R=6
XR=20
ET=44
ACC=60
W1V=124
def wfrag(t,ks):
    if t==0: return f"a[{4*ks}:{4*ks+3}]", 'a', 4*ks
    if ks<28: return f"a[{144+4*ks}:{144+4*ks+3}]", 'a', 144+4*ks
    b=W1V+4*(ks-28); return f"v[{b}:{b+3}]", 'v', b
def acc(set_,t): return ACC+32*set_+16*t

def r1_setup(a):
    a(f"""
  s_mul_i32 s54, s{sW}, 36864
  v_lshrrev_b32 v19, 3, v{vLANE}
  s_lshl_b32 s60, s{sW}, 3
  v_add_u32 v19, s60, v19            ; token
  v_lshrrev_b32 v2, 1, v19
  v_and_b32 v2, 7, v2
  v_and_b32 v3, 7, v{vLANE}
  v_xor_b32 v2, v2, v3
  v_lshlrev_b32 v2, 4, v2
  v_mul_u32_u24 v19, 1152, v19
  v_add_u32 v2, v2, v19
  v_lshrrev_b32 v19, 2, v{vLANE}
  v_mul_lo_u32 v19, v19, s59
  v_and_b32 v3, 3, v{vLANE}
  v_lshlrev_b32 v3, 4, v3
  v_add_u32 v3, v3, v19              ; v3
  v_lshrrev_b32 v19, 5, v{vLANE}     ; hi
  v_lshlrev_b32 v4, 9, v19
  v_bfe_u32 v5, v{vLANE}, 2, 2       ; r
  v_lshlrev_b32 v5, 6, v5
  v_add_u32 v4, v4, v5
  v_bfe_u32 v5, v{vLANE}, 4, 1       ; ch
  v_lshlrev_b32 v5, 5, v5
  v_add_u32 v4, v4, v5
  v_and_b32 v5, 3, v{vLANE}
  v_lshlrev_b32 v5, 3, v5
  v_add_u32 v4, v4, v5
  v_add_u32 v4, s54, v4              ; v4
  v_and_b32 v9, 31, v{vLANE}         ; token
  v_lshrrev_b32 v10, 3, v9
  v_mul_u32_u24 v10, 36864, v10
  v_and_b32 v11, 7, v9
  v_lshlrev_b32 v11, 7, v11
  v_add_u32 v10, v10, v11
  v_lshrrev_b32 v11, 1, v9
  v_and_b32 v11, 7, v11              ; sw
""")
    for q in range(4):
        a(f"""
  v_add_u32 v12, {2*q}, v19
  v_xor_b32 v12, v12, v11
  v_lshlrev_b32 v12, 4, v12
  v_add_u32 v{5+q}, v10, v12
""")

def epi_setup(a,kinds):
    for t,k in enumerate(kinds):
        d=17+t
        if k=='kt':
            a(f"""
  v_bfe_u32 v19, v{vLANE}, 4, 1
  v_lshlrev_b32 v{d}, 10, v19
  v_and_b32 v19, 15, v{vLANE}
  v_lshlrev_b32 v19, 4, v19
  v_add_u32 v{d}, v{d}, v19
  v_lshrrev_b32 v19, 5, v{vLANE}
  v_lshlrev_b32 v19, 8, v19
  v_add_u32 v{d}, v{d}, v19
""")
        elif k in('aq','ak'):
            a(f"v_lshlrev_b32 v{d}, 4, v{vLANE}")
        elif k=='av':
            a(f"""
  v_and_b32 v19, 31, v{vLANE}
  v_lshlrev_b32 v{d}, 4, v19
  v_lshrrev_b32 v19, 5, v{vLANE}
  v_mul_u32_u24 v19, 304, v19
  v_add_u32 v{d}, v{d}, v19
""")
        elif k=='out':
            a(f"""
  v_and_b32 v19, 31, v{vLANE}
  v_mul_u32_u24 v{d}, 2304, v19
  v_lshrrev_b32 v19, 5, v{vLANE}
  v_lshlrev_b32 v19, 4, v19
  v_add_u32 v{d}, v{d}, v19
""")
    if 'av' in kinds:
        a(f"""
  v_and_b32 v19, 31, v{vLANE}
  v_cmp_eq_u32 s[66:67], 18, v19
  s_mov_b32 s68, 0x0007ffff
  s_mov_b32 s69, 0x0007ffff
  v_mov_b32 v156, 0x3f803f80
""")
    if 'aq' in kinds:
        a(f"s_mov_b32 s70, {f2u(18**-0.5*LOG2E):#x}")
    if 'ak' in kinds:
        a(f"v_lshlrev_b32 v157, 3, v{vLANE}\n v_lshlrev_b32 v158, 2, v{vLANE}")

def epilogue(kind,A,T,vo,so,stflag=''):
    o=[]
    cv=lambda d,x,y: f"v_cvt_pk_bf16_f32 v{d}, v{x}, v{y}"
    st=lambda n,data,off,vv=None: f"buffer_store_dword{n} {data}, v{vv if vv is not None else vo}, s[44:47], s{so} offen offset:{off} {stflag}"
    if kind=='kt':
        order=[0,2,8,10,4,6,12,14]
        for i,r in enumerate(order): o.append(cv(T+i,A+r,A+r+1))
        o.insert(4,st('x4',f"v[{T}:{T+3}]",0))
        o.append(st('x4',f"v[{T+4}:{T+7}]",512))
    elif kind=='aq':
        for i in range(5):
            o.append(f"v_mul_f32 v{A+2*i}, s70, v{A+2*i}\n v_mul_f32 v{A+2*i+1}, s70, v{A+2*i+1}")
        for i in range(5): o.append(cv(T+i,A+2*i,A+2*i+1))
        o.append(st('x4',f"v[{T}:{T+3}]",0))
        o.append("s_mov_b64 exec, 0xffffffff\n"+st('',f"v{T+4}",1024,158)+"\n s_mov_b64 exec, -1")
    elif kind=='ak':
        for i in range(5): o.append(cv(T+i,A+2*i,A+2*i+1))
        o.append(f"v_mov_b32 v{T+5}, 0x3f803f80")
        o.append(st('x4',f"v[{T}:{T+3}]",0))
        o.append("s_mov_b64 exec, 0xffffffff\n"+st('x2',f"v[{T+4}:{T+5}]",1024,157)+"\n s_mov_b64 exec, -1")
    elif kind=='av':
        for i in range(8):
            o.append(cv(T+i,A+2*i,A+2*i+1))
        for i in range(8):
            o.append(f"v_cndmask_b32 v{T+i}, v{T+i}, v156, s[66:67]")
        o.append("s_mov_b64 exec, s[68:69]\n"+st('x4',f"v[{T}:{T+3}]",1280)+"\n"+st('x4',f"v[{T+4}:{T+7}]",1280+608)+"\n s_mov_b64 exec, -1")
    elif kind=='out':
        for i in range(8): o.append(cv(T+i,A+2*i,A+2*i+1))
        o.append("s_nop 1")
        for g in (0,4):
            o.append(f"v_permlane32_swap_b32 v{T+g}, v{T+g+2}")
            o.append(f"v_permlane32_swap_b32 v{T+g+1}, v{T+g+3}")
        o.append(st('x4',f"v[{T}:{T+3}]",0))
        o.append(st('x4',f"v[{T+4}:{T+7}]",32))
    return o

def xdma(c):
    return [f"s_add_u32 m0, s55, {c*896}", f"buffer_load_dwordx4 v2, s[32:35], s48 offen offset:{c*128} lds"]
def xdma_next():
    return f"""s_add_u32 s48, s48, s49
  s_sub_u32 s64, s64, 1
  s_cmp_gt_i32 s64, 0
  s_cselect_b32 s48, s48, {NULLOFF}
  s_add_u32 s65, s65, 9216
  s_cmp_eq_u32 s65, 36864
  s_cselect_b32 s65, 0, s65
  s_add_u32 s55, s54, s65"""

def r1_load_w(a):
    a(f"s_mov_b32 s64, s50\n s_mov_b32 s65, 0\n s_mov_b32 s55, s54\n s_mul_i32 s63, s59, 16")
    def wdma(u):
        t=u>>2; qq=u&3
        srd_=36 if t==0 else 40
        a(f"s_mul_i32 s62, s59, {144*qq}\n s_add_u32 s62, s62, s{57+t}")
        for j in range(9):
            a(f"s_add_u32 m0, s54, {(u&3)*9216+j*1024}")
            if j>0: a("s_add_u32 s62, s62, s63")
            else: a("s_nop 0")
            a(f"buffer_load_dwordx4 v3, s[{srd_}:{srd_+3}], s62 offen lds")
    for u in range(4): wdma(u)
    for u in range(8):
        a(f"s_waitcnt vmcnt(27)")
        t=u>>2; qq=u&3
        for k in range(9):
            ks=9*qq+k
            _,f,b=wfrag(t,ks)
            for i in range(2):
                a(f"ds_read_b64_tr_b16 {f}[{b+2*i}:{b+2*i+1}], v4 offset:{(u&3)*9216+k*1024+i*256}")
        a("s_waitcnt lgkmcnt(0)")
        if u<4: wdma(u+4)
        elif u<7:
            for c in range(9):
                m,l=xdma(c); a(m); a("s_nop 0"); a(l)
            a(xdma_next())

def flag_store(sreg):
    return f"s_mov_b64 exec, 1\n buffer_store_dword v159, off, s[44:47], s{sreg} sc1\n s_mov_b64 exec, -1"
def r1_main(a,orient,kinds,lab,stflag='',flags=False):
    if flags:
        a(f"s_mov_b32 s72, {NULLOFF}\n s_mov_b32 s73, {NULLOFF}\n s_mov_b32 s74, {NULLOFF}\n v_mov_b32 v159, 1")
    a(f"""
  s_mov_b32 s61, s51
  s_mov_b32 s62, s52
  s_mov_b32 s51, {NULLOFF}
  s_mov_b32 s52, {NULLOFF}
  s_mov_b32 s56, 0
  v_mov_b32 v9, v5
  v_mov_b32 v10, v6
  v_mov_b32 v11, v7
  v_mov_b32 v12, v8
  s_waitcnt vmcnt(9)
  s_barrier
""")
    def rd(ks,aset):
        if ks>=36: k=ks-36; st=1-aset
        else: k=ks; st=aset
        c=k>>2; q=k&3
        ar_=(9 if st==0 else 13)+q
        slot=XR+4*(ks%R)
        return f"ds_read_b128 v[{slot}:{slot+3}], v{ar_} offset:{c*1024}"
    for ks in range(R-1): a(rd(ks,0))
    def body(st):
        mf=[]; fl={}
        def add(i,s): fl.setdefault(i,[]).append(s)
        for ks in range(36):
            x=f"v[{XR+4*(ks%R)}:{XR+4*(ks%R)+3}]"
            for t in range(2):
                w=wfrag(t,ks)[0]
                d=acc(st,t); D=f"v[{d}:{d+15}]"
                C='0' if ks==0 else D
                A_,B_=(w,x) if orient[t]=='T' else (x,w)
                ins=f"v_mfma_f32_32x32x16_bf16 {D}, {A_}, {B_}, {C}"
                if t==0:
                    ins=rd(ks+R-1,st)+f"\n s_waitcnt lgkmcnt({R-1})\n"+ins
                mf.append(ins)
        o=13 if st==0 else 9
        add(0,"s_add_u32 s56, s56, 9216\n s_cmp_eq_u32 s56, 36864\n s_cselect_b32 s56, 0, s56")
        for q in range(4): add(1+q,f"v_add_u32 v{o+q}, s56, v{5+q}")
        pos=5
        for t in range(2):
            ep=epilogue(kinds[t],acc(1-st,t),ET+8*t,17+t,51+t,stflag)
            for s in ep:
                add(pos,s); pos+=1
        assert pos<44
        add(44,"s_mov_b32 s51, s61\n s_mov_b32 s52, s62\n s_add_u32 s61, s61, s53\n s_add_u32 s62, s62, s71")
        add(45,f"s_waitcnt vmcnt({18 if flags else 17})\n s_barrier")
        if flags:
            add(46,flag_store(72)+"\n s_mov_b32 s72, s73\n s_mov_b32 s73, s74\n s_mov_b32 s74, s75\n s_add_u32 s75, s75, s76")
        for c in range(9):
            m,l=xdma(c); add(47+2*c,m); add(48+2*c,l)
        add(66,xdma_next())
        interleave(a,mf,fl)
    a(f"{lab}_loop:")
    body(0)
    a(f"s_sub_u32 s50, s50, 1\n s_cmp_eq_u32 s50, 0\n s_cbranch_scc1 {lab}_tail0")
    body(1)
    a(f"s_sub_u32 s50, s50, 1\n s_cmp_lg_u32 s50, 0\n s_cbranch_scc1 {lab}_loop")
    for st in (1,0):
        a(f"{lab}_tail{st}:")
        a("s_nop 7\n s_nop 7")
        for t in range(2):
            for s in epilogue(kinds[t],acc(st,t),ET+8*t,17+t,51+t,stflag): a(s)
        if st==1: a(f"s_branch {lab}_done")
    a(f"{lab}_done:")
    a("s_waitcnt vmcnt(0) lgkmcnt(0)\n s_barrier")
    if flags:
        a(flag_store(72)); a(flag_store(73)); a(flag_store(74))
```

```python
from common import *
def r3_task(a,lab,stflag='',pre=None,timing=False,nq=1,qstep=4):
    Q1=[8,12]; Q2=[16,18]; MX=[20,21]; K1=[24,28]; K2=[32,34]; V=[36,44]
    D=lambda s,q: 52+32*s+16*q
    P=[116,124]; O=[132,148]
    srd(a,32,sWS,WS_BYTES)
    a(f"""
  s_lshr_b32 s60, s{sTASK}, {3 if nq==1 else 2}        ; h
  s_and_b32 s61, s{sTASK}, {7 if nq==1 else 3}         ; qb
  s_mov_b32 s67, {nq}
  s_mul_i32 s62, s60, {64*KVA_TILE}
  s_add_u32 s62, s62, {KVA_OFF}
  s_mul_i32 s63, s{sW}, {39*1024}
  s_add_u32 s62, s62, s63            ; src
  v_lshlrev_b32 v2, 4, v{vLANE}
""")
    if pre: pre(a)
    for i in range(39):
        a(f"s_add_u32 m0, s63, {i*1024}\n s_add_u32 s64, s62, {i*1024}\n buffer_load_dwordx4 v2, s[32:35], s64 offen lds")
    a(f"{lab}_q:\n v_lshlrev_b32 v2, 4, v{vLANE}")
    a(f"""
  s_lshl_b32 s64, s60, 6
  s_lshl_b32 s65, s61, 3
  s_add_u32 s64, s64, s65
  s_lshl_b32 s65, s{sW}, 1
  s_add_u32 s64, s64, s65            ; h*64 + tile0
  s_mul_i32 s64, s64, {QA_TILE}
  s_add_u32 s64, s64, {QA_OFF}
  s_add_u32 s65, s64, {QA_TILE}
  v_and_b32 v5, 31, v{vLANE}
  v_lshlrev_b32 v6, 2, v5
  buffer_load_dwordx4 v[{Q1[0]}:{Q1[0]+3}], v2, s[32:35], s64 offen
  buffer_load_dwordx4 v[{Q1[1]}:{Q1[1]+3}], v2, s[32:35], s65 offen
  buffer_load_dword v{Q2[0]}, v6, s[32:35], s64 offen offset:1024
  buffer_load_dword v{Q2[1]}, v6, s[32:35], s65 offen offset:1024
  v_lshlrev_b32 v3, 3, v5
  v_add_u32 v3, 1024, v3             ; K2
  v_min_u32 v4, 18, v5
  v_lshlrev_b32 v4, 4, v4
  v_lshrrev_b32 v7, 5, v{vLANE}
  v_mul_u32_u24 v7, 304, v7
  v_add_u32 v4, v4, v7
  v_add_u32 v4, 1280, v4             ; V
  v_mov_b32 v{MX[0]}, 0xff800000
  v_mov_b32 v{MX[1]}, 0xff800000
  v_mov_b32 v{Q2[0]+1}, 0
  v_mov_b32 v{Q2[1]+1}, 0
""")
    for q in range(2):
        for r in range(16): a(f"v_mov_b32 v{D(1,q)+r}, 0xff800000")
    a(f"""
  s_waitcnt vmcnt(0)
  s_barrier
  v_cmp_gt_u32 vcc, 32, v{vLANE}
  v_cndmask_b32 v{Q2[0]}, 0, v{Q2[0]}, vcc
  v_cndmask_b32 v{Q2[1]}, 0, v{Q2[1]}, vcc
""")
    def rdK(b,off): return f"ds_read_b128 v[{K1[b]}:{K1[b]+3}], v2 offset:{off}\n ds_read_b64 v[{K2[b]}:{K2[b]+1}], v3 offset:{off}"
    def rdV(b,off): return f"ds_read_b128 v[{V[b]}:{V[b]+3}], v4 offset:{off}\n ds_read_b128 v[{V[b]+4}:{V[b]+7}], v4 offset:{off+608}"
    def smf(s,b):
        o=[]
        for q in range(2):
            o.append(f"v_mfma_f32_32x32x16_bf16 v[{D(s,q)}:{D(s,q)+15}], v[{K1[b]}:{K1[b]+3}], v[{Q1[q]}:{Q1[q]+3}], 0")
        for q in range(2):
            o.append(f"v_mfma_f32_32x32x8_bf16 v[{D(s,q)}:{D(s,q)+15}], v[{K2[b]}:{K2[b]+1}], v[{Q2[q]}:{Q2[q]+1}], v[{D(s,q)}:{D(s,q)+15}]")
        return o
    T=KVA_TILE
    if timing: a('s_memtime s[82:83]')
    a(rdK(0,0)); a(rdK(1,T))
    a("s_mov_b32 s66, 32")
    a(f"{lab}_p1:")
    for b in range(2):
        m=smf(b,b)
        mx=[]
        for q in range(2):
            for k in range(8):
                mx.append(f"v_max3_f32 v{MX[q]}, v{MX[q]}, v{D(1-b,q)+2*k}, v{D(1-b,q)+2*k+1}")
        a("s_waitcnt lgkmcnt(2)")
        a(m[0]); a(m[1])
        for s in mx[0:6]: a(s)
        a(m[2])
        for s in mx[6:12]: a(s)
        a(m[3])
        a(rdK(b,(2+b)*T))
        for s in mx[12:16]: a(s)
    a(f"""
  v_add_u32 v2, {2*T}, v2
  v_add_u32 v3, {2*T}, v3
  s_sub_u32 s66, s66, 1
  s_cmp_lg_u32 s66, 0
  s_cbranch_scc1 {lab}_p1
  s_nop 7
  s_nop 7
""")
    for q in range(2):
        for k in range(8):
            a(f"v_max3_f32 v{MX[q]}, v{MX[q]}, v{D(1,q)+2*k}, v{D(1,q)+2*k+1}")
    a(f"""
  v_subrev_u32 v2, {64*T}, v2
  v_subrev_u32 v3, {64*T}, v3
  s_waitcnt lgkmcnt(0)
""")
    if timing: a('s_memtime s[86:87]\n s_waitcnt lgkmcnt(0)')
    a(rdK(0,0)); a(rdK(1,T)); a(rdV(0,0))
    for q in range(2):
        m=MX[q]
        a(f"""
  v_mov_b32 v5, v{m}
  s_nop 1
  v_permlane32_swap_b32 v{m}, v5
  v_max_f32 v{m}, v{m}, v5
  v_sub_f32 v{m}, 0, v{m}
  v_cvt_pk_bf16_f32 v5, v{m}, v{m}
  v_lshlrev_b32 v5, 16, v5
  v_sub_f32 v5, v{m}, v5
  v_cvt_pk_bf16_f32 v5, v{m}, v5
  v_cndmask_b32 v{Q2[q]+1}, 0, v5, vcc
""")
    for q in range(2):
        for r in range(16): a(f"v_mov_b32 v{O[q]+r}, 0")
    a("s_waitcnt lgkmcnt(4)")
    for s in smf(0,0): a(s)
    a(rdK(0,2*T))
    a("s_mov_b32 s66, 32\n s_nop 7\n s_nop 3")
    a(f"{lab}_p2:")
    for b in range(2):
        m=smf(1-b,1-b)
        seq=[]
        for q in range(2):
            d=D(b,q)
            e=[f"v_exp_f32 v{d+r}, v{d+r}" for r in range(16)]
            c=[f"v_cvt_pk_bf16_f32 v{P[q]+k}, v{d+2*k}, v{d+2*k+1}" for k in range(8)]
            s=[]
            for k in range(8):
                s+= [e[2*k],e[2*k+1]]
                if k>=1: s.append(c[k-1])
            s.append(c[7])
            seq.append(s)
        pv=lambda q,mf: f"v_mfma_f32_32x32x16_bf16 v[{O[q]}:{O[q]+15}], v[{V[b]+4*mf}:{V[b]+4*mf+3}], v[{P[q]+4*mf}:{P[q]+4*mf+3}], v[{O[q]}:{O[q]+15}]"
        it=seq[0]+seq[1]
        ins={5:"s_waitcnt lgkmcnt(4)\n"+m[0]+"\n"+rdV(1-b,(1+b)*T), 11:m[1], 17:"s_waitcnt lgkmcnt(4)\n"+pv(0,0), 23:m[2], 29:pv(0,1),
             35:m[3]+"\n"+rdK(1-b,(3+b)*T), 41:pv(1,0), 48:"s_nop 1\n"+pv(1,1)}
        for k in range(49):
            if k in ins: a(ins[k])
            if k<48: a(it[k])
    a(f"""
  v_add_u32 v2, {2*T}, v2
  v_add_u32 v3, {2*T}, v3
  v_add_u32 v4, {2*T}, v4
  s_sub_u32 s66, s66, 1
  s_cmp_lg_u32 s66, 0
  s_cbranch_scc1 {lab}_p2
  s_nop 7
  s_nop 7
""")
    if timing: a('s_memtime s[88:89]')
    a(f"""
  s_add_u32 s36, s{sWS}, {OA_OFF}
  s_addc_u32 s37, s{sWS+1}, 0
  s_mov_b32 s38, {2048*1152}
  s_mov_b32 s39, 0x00020000
  s_lshl_b32 s64, s61, 3
  s_lshl_b32 s65, s{sW}, 1
  s_add_u32 s64, s64, s65
  s_mul_i32 s64, s64, {32*1152}
  s_mul_i32 s65, s60, 36
  s_add_u32 s64, s64, s65
  s_add_u32 s65, s64, {32*1152}
  v_and_b32 v5, 31, v{vLANE}
  v_mul_u32_u24 v5, 1152, v5
  v_lshrrev_b32 v6, 5, v{vLANE}
  v_lshlrev_b32 v6, 4, v6
  v_add_u32 v6, v5, v6
""")
    for q in range(2):
        o=O[q]; p=P[q]
        a(f"""
  v_mov_b32 v7, v{o+10}
  s_nop 1
  v_permlane32_swap_b32 v{o+10}, v7
  v_rcp_f32 v7, v{o+10}
  s_nop 0
""")
        for r in range(10): a(f"v_mul_f32 v{o+r}, v{o+r}, v7")
        for k in range(5): a(f"v_cvt_pk_bf16_f32 v{p+k}, v{o+2*k}, v{o+2*k+1}")
        a(f"""
  s_nop 1
  v_permlane32_swap_b32 v{p}, v{p+2}
  v_permlane32_swap_b32 v{p+1}, v{p+3}
  buffer_store_dwordx4 v[{p}:{p+3}], v6, s[36:39], s{64+q} offen {stflag}
  s_mov_b64 exec, 0xffffffff
  buffer_store_dword v{p+4}, v5, s[36:39], s{64+q} offen offset:32 {stflag}
  s_mov_b64 exec, -1
""")
    if nq>1:
        a(f"s_add_u32 s61, s61, {qstep}\n s_sub_u32 s67, s67, 1\n s_cmp_lg_u32 s67, 0\n s_waitcnt lgkmcnt(0)\n s_cbranch_scc1 {lab}_q")
    a("s_waitcnt vmcnt(0) lgkmcnt(0)\n s_barrier")
def r3_kernel(name,timing=True):
    a=Asm(); load_ptrs(a)
    a(f"s_mov_b32 s{sTASK}, s2\n s_cmp_ge_u32 s2, 256\n s_cbranch_scc1 .L{name}_end")
    if timing: a("s_memtime s[80:81]")
    r3_task(a,'.L'+name,timing=timing)
    if timing:
        a(f"""
  s_memtime s[84:85]
  s_waitcnt lgkmcnt(0)
  s_sub_u32 s84, s84, s80
  s_lshl_b32 s60, s{sTASK}, 2
  s_add_u32 s60, s60, s{sW}
  s_lshl_b32 s60, s60, 4
  s_add_u32 s60, s60, {FLG_OFF}
  s_sub_u32 s82, s82, s80
  s_sub_u32 s86, s86, s80
  s_sub_u32 s88, s88, s80
  v_mov_b32 v2, s60
  v_mov_b32 v4, s82
  v_mov_b32 v5, s86
  v_mov_b32 v6, s88
  v_mov_b32 v7, s84
  s_mov_b64 exec, 1
  global_store_dwordx4 v2, v[4:7], s[{sWS}:{sWS+1}]
  s_mov_b64 exec, -1
    """)
    a(f".L{name}_end:\n s_endpgm")
    return a,256
```

```python
from common import *
SCALE=128**-0.5
Q=8
K=40
V=72
KM=104
VM=120
SX=136
SM=148
PX=156
PM=164
OT=168
TM=232
def r4_consts(a):
    a(f"""
  v_lshlrev_b32 v2, 4, v{vLANE}          ; lane*16
  v_and_b32 v3, 15, v{vLANE}             ; q
  v_lshrrev_b32 v4, 4, v{vLANE}          ; g
  v_lshrrev_b32 v5, 1, v4
  v_lshlrev_b32 v5, 10, v5
  v_and_b32 v6, 1, v4
  v_lshlrev_b32 v6, 9, v6
  v_add_u32 v5, v5, v6
  v_lshlrev_b32 v6, 4, v3
  v_add_u32 v5, v5, v6                   ; v5
  v_lshlrev_b32 v6, 2, v4
""")
    for r in range(4):
        a(f"v_add_u32 v7, {r}, v6\n v_cmp_le_u32 s[{40+2*r}:{41+2*r}], v7, v3")
    a(f"""
  s_mov_b32 s48, {f2u(SCALE*LOG2E):#x}
  v_mov_b32 v6, 0xff800000
  v_cmp_gt_u32 s[50:51], 32, v{vLANE}     ; lanes g<2
""")
def r4_loads(a,sU,ld='',kmld=''):
    a(f"""
  s_lshl_b32 s52, s{sU}, 13
  s_add_u32 s53, s52, {QX_OFF}
  s_add_u32 s54, s52, {KMVM_OFF}
  s_lshl_b32 s55, s{sU}, 14
  s_add_u32 s55, s55, {XKV_OFF}
""")
    def grp(dst,sreg,n,base):
        for i in range(n):
            off=base+i*1024
            if off%4096==0 and off>0 or (i==0 and base>0 and False): pass
            so=off//4096
            if so>0:
                a(f"s_add_u32 s56, s{sreg}, {so*4096}")
                a(f"buffer_load_dwordx4 v[{dst+4*i}:{dst+4*i+3}], v2, s[32:35], s56 offen offset:{off%4096} {ld}")
            else:
                a(f"buffer_load_dwordx4 v[{dst+4*i}:{dst+4*i+3}], v2, s[32:35], s{sreg} offen offset:{off} {ld}")
    grp(Q,53,8,0); grp(K,55,8,0); grp(V,55,8,8192)
    for w in range(4):
        so=w*2048
        a(f"s_add_u32 s56, s54, {so}")
        a(f"buffer_load_dwordx4 v[{KM+4*w}:{KM+4*w+3}], v2, s[32:35], s56 offen {kmld}")
        a(f"buffer_load_dwordx4 v[{VM+4*w}:{VM+4*w+3}], v2, s[32:35], s56 offen offset:1024 {kmld}")
def red4(a,op,r,t):
    a(f"""
  v_mov_b32 v{t}, v{r}
  s_nop 1
  v_permlane16_swap_b32 v{r}, v{t}
  {op} v{r}, v{r}, v{t}
  v_mov_b32 v{t}, v{r}
  s_nop 1
  v_permlane32_swap_b32 v{r}, v{t}
  {op} v{r}, v{r}, v{t}
""")
def r4_compute(a,sU,stflag=''):
    q=lambda w,qt: f"v[{Q+(w*2+qt)*4}:{Q+(w*2+qt)*4+3}]"
    k=lambda w,kt: f"v[{K+(w*2+kt)*4}:{K+(w*2+kt)*4+3}]"
    sx={(0,0):SX,(0,1):SX+4,(1,1):SX+8}
    a("s_waitcnt vmcnt(16)")
    for w in range(4):
        for (kt,qt),d in sx.items():
            C='0' if w==0 else f"v[{d}:{d+3}]"
            a(f"v_mfma_f32_16x16x32_bf16 v[{d}:{d+3}], {k(w,kt)}, {q(w,qt)}, {C}")
    a("s_waitcnt vmcnt(0)")
    for w in range(4):
        for qt in range(2):
            d=SM+4*qt
            C='0' if w==0 else f"v[{d}:{d+3}]"
            a(f"v_mfma_f32_16x16x32_bf16 v[{d}:{d+3}], v[{KM+4*w}:{KM+4*w+3}], {q(w,qt)}, {C}")
    a("s_nop 7")
    for d in (sx[(0,0)],sx[(1,1)]):
        for r in range(4): a(f"v_cndmask_b32 v{d+r}, v6, v{d+r}, s[{40+2*r}:{41+2*r}]")
    for qt in range(2):
        tiles=[SM+4*qt]+([sx[(0,0)]] if qt==0 else [sx[(0,1)],sx[(1,1)]])
        m=TM+qt; t=TM+2+qt; l=TM+4+qt
        regs=[x+r for x in tiles for r in range(4)]
        a(f"v_max3_f32 v{m}, v{regs[0]}, v{regs[1]}, v{regs[2]}")
        i=3
        while i<len(regs):
            if i+1<len(regs): a(f"v_max3_f32 v{m}, v{m}, v{regs[i]}, v{regs[i+1]}"); i+=2
            else: a(f"v_max_f32 v{m}, v{m}, v{regs[i]}"); i+=1
        red4(a,'v_max_f32',m,t)
        a(f"v_mul_f32 v{m}, s48, v{m}")
        for x in regs: a(f"v_fma_f32 v{x}, v{x}, s48, -v{m}")
        for x in regs: a(f"v_exp_f32 v{x}, v{x}")
        sm=SM+4*qt
        a(f"v_add_f32 v{l}, v{sm}, v{sm+1}\n v_add_f32 v{t}, v{sm+2}, v{sm+3}\n v_add_f32 v{l}, v{l}, v{t}")
        a(f"v_cndmask_b32 v{l}, 0, v{l}, s[50:51]")
        for x in regs[4:]: a(f"v_add_f32 v{l}, v{l}, v{x}")
        red4(a,'v_add_f32',l,t)
        a(f"v_rcp_f32 v{l}, v{l}")
        a(f"v_cvt_pk_bf16_f32 v{PM+2*qt}, v{sm}, v{sm+1}\n v_cvt_pk_bf16_f32 v{PM+2*qt+1}, v{sm+2}, v{sm+3}")
        p=PX+4*qt
        d0=sx[(0,qt)]
        a(f"v_cvt_pk_bf16_f32 v{p}, v{d0}, v{d0+1}\n v_cvt_pk_bf16_f32 v{p+1}, v{d0+2}, v{d0+3}")
        if qt==0: a(f"v_mov_b32 v{p+2}, 0\n v_mov_b32 v{p+3}, 0")
        else:
            d1=sx[(1,1)]
            a(f"v_cvt_pk_bf16_f32 v{p+2}, v{d1}, v{d1+1}\n v_cvt_pk_bf16_f32 v{p+3}, v{d1+2}, v{d1+3}")
    a("s_nop 1")
    for qt in range(2):
        for w in range(4):
            for t in range(2):
                d=OT+qt*32+(w*2+t)*4
                a(f"v_mfma_f32_16x16x32_bf16 v[{d}:{d+3}], v[{V+(w*2+t)*4}:{V+(w*2+t)*4+3}], v[{PX+4*qt}:{PX+4*qt+3}], 0")
        for w in range(4):
            for t in range(2):
                d=OT+qt*32+(w*2+t)*4
                a(f"v_mfma_f32_16x16x16_bf16 v[{d}:{d+3}], v[{VM+4*w+2*t}:{VM+4*w+2*t+1}], v[{PM+2*qt}:{PM+2*qt+1}], v[{d}:{d+3}]")
    a(f"s_lshl_b32 s52, s{sU}, 13\n s_add_u32 s52, s52, {OX_OFF}\n s_nop 6")
    for qt in range(2):
        l=TM+4+qt
        for w in range(4):
            b=OT+qt*32+w*8
            for r in range(8): a(f"v_mul_f32 v{b+r}, v{b+r}, v{l}")
            o=TM+8+4*(w&1)
            for k2 in range(4): a(f"v_cvt_pk_bf16_f32 v{o+k2}, v{b+2*k2}, v{b+2*k2+1}")
            off=w*2048+qt*256
            if off>=4096:
                a(f"s_add_u32 s56, s52, 4096\n buffer_store_dwordx4 v[{o}:{o+3}], v5, s[32:35], s56 offen offset:{off-4096} {stflag}")
            else:
                a(f"buffer_store_dwordx4 v[{o}:{o+3}], v5, s[32:35], s52 offen offset:{off} {stflag}")
def r4_kernel(name,nwg=256):
    a=Asm(); load_ptrs(a)
    a(f"s_cmp_ge_u32 s2, {nwg}\n s_cbranch_scc1 .L{name}_end")
    srd(a,32,sWS,WS_BYTES)
    r4_consts(a)
    a(f"s_lshl_b32 s60, s2, 2\n s_add_u32 s60, s60, s{sW}\n.L{name}_loop:")
    r4_loads(a,60)
    r4_compute(a,60)
    a(f"s_add_u32 s60, s60, {4*nwg}\n s_cmp_lt_u32 s60, 2048\n s_cbranch_scc1 .L{name}_loop")
    a(f".L{name}_end:\n s_endpgm")
    return a,nwg

def r4_role(a,lab,sIDX,nwaves=128,stamp_fn=None):
    nj=nwaves//32
    srd(a,32,sWS,WS_BYTES)
    r4_consts(a)
    a(f"""
  s_lshl_b32 s60, s{sIDX}, 2
  s_add_u32 s60, s60, s{sW}          ; u
  s_and_b32 s61, s60, 31             ; h
  s_lshr_b32 s62, s60, 5             ; seg
  v_mov_b32 v249, 1
{lab}_loop:
  s_lshl_b32 s63, s62, 7
  s_lshl_b32 s64, s61, 2
  s_add_u32 s64, s64, s63
  s_add_u32 s64, s64, {F_KM}         ; F_KM[s][h]
  s_lshr_b32 s65, s61, 1
  s_lshl_b32 s65, s65, 2
  s_add_u32 s65, s65, s63
  s_add_u32 s65, s65, {F_Q}          ; F_Q[s][h>>1]
  v_mov_b32 v248, s64
  v_mov_b32 v250, s65
  v_cmp_eq_u32 vcc, 0, v{vLANE}
  s_nop 1
  v_cndmask_b32 v248, v250, v248, vcc
""")
    wait_words(a,248,3,sleep=2)
    a(f"s_lshl_b32 s60, s62, 5\n s_add_u32 s60, s60, s61")
    r4_loads(a,60,ld='sc1',kmld='sc1')
    r4_compute(a,60,stflag='sc1')
    a(f"""
  s_add_u32 s64, s64, {F_OX-F_KM}
  s_waitcnt vmcnt(0)
  s_mov_b64 exec, 1
  buffer_store_dword v249, off, s[32:35], s64 sc1
  s_mov_b64 exec, -1
  s_add_u32 s62, s62, {nj}
  s_cmp_lt_u32 s62, 64
  s_cbranch_scc1 {lab}_loop
""")
```

```python
from common import *
NULLOFF=0x40000000
RING=64
ACC=16
def r5_setup(a):
    srd(a,32,sWS,WS_BYTES); srd(a,36,sWo,4096*1152); srd(a,44,sOUT,OUT_BYTES)
    a(f"""
  s_mul_i32 s54, s{sW}, 36864
  v_lshlrev_b32 v2, 4, v{vLANE}
  v_lshrrev_b32 v5, 2, v{vLANE}
  v_mul_u32_u24 v5, 1152, v5
  v_and_b32 v3, 3, v{vLANE}
  v_lshlrev_b32 v3, 4, v3
  v_add_u32 v3, v3, v5
  v_lshrrev_b32 v5, 5, v{vLANE}
  v_lshlrev_b32 v4, 8, v5
  v_bfe_u32 v5, v{vLANE}, 2, 2
  v_lshlrev_b32 v5, 6, v5
  v_add_u32 v4, v4, v5
  v_bfe_u32 v5, v{vLANE}, 4, 1
  v_lshlrev_b32 v5, 5, v5
  v_add_u32 v4, v4, v5
  v_and_b32 v5, 3, v{vLANE}
  v_lshlrev_b32 v5, 3, v5
  v_add_u32 v4, v4, v5
  v_add_u32 v4, s54, v4
  s_mul_i32 s55, s{sW}, {1024*1152}
  s_lshl_b32 s56, s60, 6
  s_add_u32 s55, s55, s56
  v_and_b32 v5, 31, v{vLANE}
  v_mul_u32_u24 v5, 2304, v5
  v_lshrrev_b32 v6, 5, v{vLANE}
  v_lshlrev_b32 v6, 3, v6
  v_add_u32 v5, v5, v6
  s_lshl_b32 s57, s{sW}, 4
  s_add_u32 s57, s57, 1152
  v_add_u32 v5, s57, v5
  s_lshl_b32 s57, s{sW}, 12
  v_add_u32 v6, s57, v2
  s_lshl_b32 s57, s{sW}, 10
  v_add_u32 v7, s57, v2
""")
    def wdma(u):
        for j in range(8):
            a(f"s_add_u32 m0, s54, {(u&3)*8192+j*1024}\n s_add_u32 s58, s55, {(u*128+j*16)*1152}\n buffer_load_dwordx4 v3, s[36:39], s58 offen lds")
    for u in range(4): wdma(u)
    for u in range(8):
        a(f"s_waitcnt vmcnt({8*min(3,7-u)})")
        for we in range(4):
            for mf in range(2):
                f=u*8+we*2+mf
                for i in range(2):
                    a(f"ds_read_b64_tr_b16 a[{4*f+2*i}:{4*f+2*i+1}], v4 offset:{(u&3)*8192+(32*we+16*i+8*mf)*64}")
        a("s_waitcnt lgkmcnt(0)")
        if u<4: wdma(u+4)
    a("s_barrier")
def oload(f,sreg):
    sl=RING+4*(f%32)
    return f"s_add_u32 s59, s{sreg}, {(f>>2)*4096}\n buffer_load_dwordx4 v[{sl}:{sl+3}], v2, s[32:35], s59 offen offset:{(f&3)*1024}"
def r5_seg(a,sCur,sNext,sOut,buf,stflag='',ld=''):
    for f in range(64):
        sl=RING+4*(f%32)
        d=ACC+16*(f&1)
        C='0' if f<2 else f"v[{d}:{d+15}]"
        a("s_waitcnt vmcnt(31)")
        a(f"v_mfma_f32_32x32x16_bf16 v[{d}:{d+15}], a[{4*f}:{4*f+3}], v[{sl}:{sl+3}], {C}")
        if f<32: a(oload(f+32,sCur)+' '+ld)
        else: a(oload(f-32,sNext)+' '+ld)
    a("s_nop 7\n s_nop 3")
    for r in range(16): a(f"v_add_f32 v{ACC+r}, v{ACC+r}, v{ACC+16+r}")
    for q in range(4): a(f"ds_write_b128 v6, v[{ACC+4*q}:{ACC+4*q+3}] offset:{buf*16384+q*1024}")
    a("s_waitcnt lgkmcnt(0)\n s_barrier")
    for w in range(4): a(f"ds_read_b128 v[{48+4*w}:{48+4*w+3}], v7 offset:{buf*16384+w*4096}")
    a("s_waitcnt lgkmcnt(0)")
    for r in range(4):
        a(f"v_add_f32 v{48+r}, v{48+r}, v{52+r}\n v_add_f32 v{56+r}, v{56+r}, v{60+r}")
    for r in range(4): a(f"v_add_f32 v{48+r}, v{48+r}, v{56+r}")
    a(f"v_cvt_pk_bf16_f32 v48, v48, v49\n v_cvt_pk_bf16_f32 v49, v50, v51")
    a(f"buffer_store_dwordx2 v[48:49], v5, s[44:47], s{sOut} offen {stflag}")
def r5_kernel(name,nrep=14):
    a=Asm(); load_ptrs(a)
    n=18*nrep
    a(f"s_cmp_ge_u32 s2, {n}\n s_cbranch_scc1 .L{name}_end")
    a(f"""
  s_mul_i32 s61, s2, 3641
  s_lshr_b32 s61, s61, 16
  s_mul_i32 s60, s61, 18
  s_sub_u32 s60, s2, s60       ; ct
""")
    r5_setup(a)
    a(f"""
  s_mov_b32 s62, s61                 ; seg
  s_lshl_b32 s63, s62, 18
  s_lshl_b32 s57, s{sW}, 16
  s_add_u32 s63, s63, s57
  s_add_u32 s63, s63, {OX_OFF}
""")
    for f in range(32): a(oload(f,63))
    a(f".L{name}_loop:")
    a(f"""
  s_add_u32 s64, s62, {nrep}
  s_cmp_lt_u32 s64, 64
  s_cselect_b32 s65, 1, 0
  s_add_u32 s66, s63, {nrep<<18}
  s_cmp_lt_u32 s64, 64
  s_cselect_b32 s66, s66, {NULLOFF}
  s_mul_i32 s67, s62, {32*2304}
  s_lshl_b32 s57, s60, 6
  s_add_u32 s67, s67, s57
""")
    r5_seg(a,63,66,67,0)
    a(f"""
  s_barrier
  s_mov_b32 s62, s64
  s_mov_b32 s63, s66
  s_cmp_lg_u32 s65, 0
  s_cbranch_scc1 .L{name}_loop
""")
    a(f".L{name}_end:\n s_endpgm")
    return a,n

OST=""
def r5_role(a,lab,sIDX,nrep=3,RS=48):
    a(f"""
  s_mul_i32 s61, s{sIDX}, 3641
  s_lshr_b32 s61, s61, 16
  s_mul_i32 s60, s61, 18
  s_sub_u32 s60, s{sIDX}, s60       ; ct
""")
    r5_setup(a)
    a(f"""
  s_mov_b32 s62, s61                 ; seg
  v_lshlrev_b32 v8, 2, v{vLANE}
  s_lshl_b32 s57, s{sW}, 5
  s_add_u32 s57, s57, {F_OX}
  v_add_u32 v8, s57, v8
{lab}_loop:
  s_lshl_b32 s57, s62, 7
  v_add_u32 v9, s57, v8
""")
    wait_words(a,9,0xff,sleep=2)
    a(f"""
  s_lshl_b32 s63, s62, 18
  s_lshl_b32 s57, s{sW}, 16
  s_add_u32 s63, s63, s57
  s_add_u32 s63, s63, {OX_OFF}
  s_mul_i32 s67, s62, {32*2304}
  s_lshl_b32 s57, s60, 6
  s_add_u32 s67, s67, s57
""")
    def ol(f):
        sl=RING+4*(f%RS)
        return f"s_add_u32 s59, s63, {(f>>2)*4096}\n buffer_load_dwordx4 v[{sl}:{sl+3}], v2, s[32:35], s59 offen offset:{(f&3)*1024} sc1"
    for f in range(RS): a(ol(f))
    issued=RS
    for f in range(64):
        sl=RING+4*(f%RS)
        d=ACC+16*(f&1)
        C='0' if f<2 else f"v[{d}:{d+15}]"
        a(f"s_waitcnt vmcnt({issued-1-f})")
        a(f"v_mfma_f32_32x32x16_bf16 v[{d}:{d+15}], a[{4*f}:{4*f+3}], v[{sl}:{sl+3}], {C}")
        if issued<64:
            a(ol(issued)); issued+=1
    a("s_nop 7\n s_nop 3")
    for r in range(16): a(f"v_add_f32 v{ACC+r}, v{ACC+r}, v{ACC+16+r}")
    for q in range(4): a(f"ds_write_b128 v6, v[{ACC+4*q}:{ACC+4*q+3}] offset:{q*1024}")
    a("s_waitcnt lgkmcnt(0)\n s_barrier")
    for w in range(4): a(f"ds_read_b128 v[{48+4*w}:{48+4*w+3}], v7 offset:{w*4096}")
    a("s_waitcnt lgkmcnt(0)\n s_barrier")
    for r in range(4):
        a(f"v_add_f32 v{48+r}, v{48+r}, v{52+r}\n v_add_f32 v{56+r}, v{56+r}, v{60+r}")
    for r in range(4): a(f"v_add_f32 v{48+r}, v{48+r}, v{56+r}")
    a(f"v_cvt_pk_bf16_f32 v48, v48, v49\n v_cvt_pk_bf16_f32 v49, v50, v51")
    a(f"buffer_store_dwordx2 v[48:49], v5, s[44:47], s67 offen {OST}")
    a(f"""
  s_add_u32 s62, s62, {nrep}
  s_cmp_lt_u32 s62, 64
  s_cbranch_scc1 {lab}_loop
""")
```

```python
import sys
sys.path.insert(0,'gen')
from asmlib import *
import rec
from rec import *
import common as C
sFKM=90; sFKV=91
sPM=40
sWSR=44
sPS=48
sMP=49
sPst=50; sPst2=51
sPl=52
sPr=56
sMR=60
sMg=61
sXK=64
sXV=65
sKMo=66
sHP=67
sCNT=68
sR1=69; sR2=73
MREL=M_OFF-P_OFF
class Q:
    def __init__(s,a,name,maxv): s.a=a; s.name=name; s.maxv=maxv; s.n=0; s.pos={}
    def issue(s,tag=None,k=1):
        s.n+=k
        if tag is not None: s.pos[tag]=s.n
    def wait(s,tag):
        c=min(s.n-s.pos[tag],s.maxv)
        s.a(f"s_waitcnt {s.name}({c})")
    def reset(s): s.n=0; s.pos={}
def nops(cyc):
    out=[]; n=cyc//4
    while n>0:
        k=min(n,8); out.append(f"s_nop {k-1}"); n-=k
    return "\n".join(out)

class Rec2(Rec):
    def __init__(self, lds_set, d1=240, d2j=200, d2n=900, stflag='', kmflag='', steps=64, dbgM=False, timing=False, fused=False):
        super().__init__(lds_set,stflag=stflag)
        self.fused=fused
        if fused: kmflag='sc1'; self.xld='sc1'
        self.d1=d1; self.d2j=d2j; self.d2n=d2n; self.stflag=stflag; self.kmflag=kmflag; self.steps=steps; self.dbgM=dbgM; self.timing=timing
    def fr(self,key):
        return self.frag[key]
    def regstr(self,b): return f"{b[0]}[{b[1]}:{b[1]+7}]"
    def scalars(self,a):
        a(f"""
  s_mov_b32 s{sSTEP}, 0
  s_add_u32 s{sPM}, s{sWS}, {P_OFF}
  s_addc_u32 s{sPM+1}, s{sWS+1}, 0
  s_mov_b32 s{sPM+2}, {2*1024*1024}
  s_mov_b32 s{sPM+3}, 0x00020000
  s_mov_b32 s{sWSR}, s{sWS}
  s_mov_b32 s{sWSR+1}, s{sWS+1}
  s_mov_b32 s{sWSR+2}, 0x10000000
  s_mov_b32 s{sWSR+3}, 0x00020000
  s_mov_b32 s{sPS}, 0
  s_mov_b32 s{sMP}, {MREL+MSLOT}
  s_mul_i32 s{sHP}, s{sH}, 9216
  s_lshl_b32 s74, s{sH}, 14
  s_lshl_b32 s75, s{sW}, 11
  s_add_u32 s{sXK}, s74, s75
  s_add_u32 s{sXK}, s{sXK}, {XKV_OFF}
  s_add_u32 s{sXV}, s{sXK}, 8192
  s_lshl_b32 s74, s{sH}, 13
  s_add_u32 s{sKMo}, s74, s75
  s_add_u32 s{sKMo}, s{sKMo}, {KMVM_OFF}
  s_mov_b32 s{sR1}, 0
  s_mov_b32 s{sR2}, 0
""")
        if self.fused:
            a(f"""
  s_mov_b32 s{sFKM}, {C.NULLOFF}
  s_lshl_b32 s74, s{sH}, 2
  s_add_u32 s{sFKV}, s74, {C.F_KV}
""")
    def step_scalars(self,a):
        a(f"""
  s_add_u32 s{sPst}, s{sPS}, s{sHP}
  s_add_u32 s{sPst2}, s{sPst}, 4096
  s_xor_b32 s74, s{sPS}, {PSLOT}
""")
        for i in range(4):
            a(f"s_add_u32 s{sPl+i}, s{sPS}, {i*73728}\n s_add_u32 s{sPr+i}, s74, {i*73728}")
        a(f"""
  s_xor_b32 s{sMR}, s{sMP}, {(MREL+MSLOT)^MREL}
  s_lshl_b32 s74, s{sW}, 10
  s_add_u32 s{sMg}, s{sMP}, s74
  s_add_u32 s{sMg+1}, s{sMg}, 4096
  s_lshl_b32 s74, s{sW}, 8
  s_add_u32 s74, s74, 8192
  s_add_u32 s{sMg+2}, s{sMP}, s74
""")
    def load_m0(self,a):
        a(f"""
  v_lshrrev_b32 v24, 4, v{vL16}      ; lane
  v_and_b32 v25, 7, v24
  v_mul_u32_u24 v25, 1152, v25
  v_lshrrev_b32 v24, 3, v24
  v_lshlrev_b32 v24, 4, v24
  v_add_u32 v24, v24, v25            ; r8*1152 + (lane>>3)*16
  s_lshl_b32 s74, s{sW}, 7
  v_add_u32 v25, s74, v24
  global_load_dwordx4 v[{MA}:{MA+3}], v25, s[{sMEM}:{sMEM+1}]
  global_load_dwordx4 v[{MA+4}:{MA+7}], v25, s[{sMEM}:{sMEM+1}] offset:512
  s_lshl_b32 s74, s{sW}, 5
  s_add_u32 s74, s74, 1024
  v_add_u32 v25, s74, v24
  s_mov_b64 exec, 0xffff
  global_load_dwordx4 v[{MA+8}:{MA+11}], v25, s[{sMEM}:{sMEM+1}]
  s_mov_b64 exec, -1
  s_waitcnt vmcnt(0)
""")
    def local_barrier(self,a,xcc_sgpr,lab):
        a(f"""
  s_waitcnt vmcnt(0)
  s_barrier
  {f's_mov_b32 s74, {C.D_LBAR}' if self.fused else f's_lshl_b32 s74, s{xcc_sgpr}, 2'}
  {'s_nop 0' if self.fused else 's_add_u32 s74, s74, 32'}
  v_mov_b32 v12, s74
  v_mov_b32 v13, 1
  s_cmp_lg_u32 s{sW}, 0
  s_cbranch_scc1 {lab}_skip
  s_mov_b64 exec, 1
  global_atomic_add v12, v13, s[{sDBG}:{sDBG+1}]
  s_mov_b32 s75, 2000000
{lab}_poll:
  global_load_dword v14, v12, s[{sDBG}:{sDBG+1}] sc1
  s_waitcnt vmcnt(0)
  v_readfirstlane_b32 s76, v14
  s_sub_u32 s75, s75, 1
  s_cmp_eq_u32 s75, 0
  s_cbranch_scc1 {lab}_done
  s_cmp_lt_u32 s76, 32
  s_cbranch_scc1 {lab}_poll
{lab}_done:
  s_mov_b64 exec, -1
{lab}_skip:
  s_barrier
""")
    def stamp(self,a,k):
        if self.timing: a(f"s_memtime s[{4+2*k}:{5+2*k}]")
    def stamp_acc(self,a,n):
        if not self.timing: return
        a("s_waitcnt lgkmcnt(0)")
        for k in range(n-1):
            a(f"s_sub_u32 s74, s{4+2*(k+1)}, s{4+2*k}\n s_add_u32 s{20+k}, s{20+k}, s74")
    def loop(self,a,w,lab):
        L=Q(a,'lgkmcnt',15)
        sm=lambda d,A,B: f"v_smfmac_f32_16x16x64_bf16 v[{d}:{d+3}], v[{A}:{A+3}], {B}, v{vIdx}"
        Q0,Q1,K0,K1,V0,V1=24,28,32,36,40,44
        accs={('q',0):Q0,('q',1):Q1,('k',0):K0,('k',1):K1,('v',0):V0,('v',1):V1}
        own=[w,4+w]
        rest=[k for k in [8]+list(range(8)) if k not in own]
        order=own+rest
        mats=[('q',0),('k',0),('v',0),('q',1),('k',1),('v',1)]
        ops=[(m,t,ks) for ks in order for (m,t) in mats]
        ldsops=[i for i,(m,t,ks) in enumerate(ops) if self.frag[(m,ks,t)][0]=='lds']
        WBS=[64,72]
        slot_of={}
        for j,i in enumerate(ldsops): slot_of[i]=WBS[j%2]
        def rdfrag(key,slot,tag):
            off=self.frag[key][1]
            a(f"ds_read_b128 v[{slot}:{slot+3}], v{vFR} offset:{off}")
            a(f"ds_read_b128 v[{slot+4}:{slot+7}], v{vFR} offset:{off+1024}")
            L.issue(tag,2)
        for j in range(2):
            i=ldsops[j]; mm,tt,kk=ops[i]
            rdfrag((mm,kk,tt),slot_of[i],None)
        a("s_waitcnt lgkmcnt(0)"); L.reset()
        a(f"{lab}_top:")
        self.stamp(a,0)
        self.step_scalars(a)
        for r in range(24): a(f"v_mov_b32 v{24+r}, 0")
        a(f"ds_write_b128 v{vMB}, v[{MA}:{MA+3}] offset:{w*1024}"); L.issue()
        a(f"ds_write_b128 v{vMB}, v[{MA+4}:{MA+7}] offset:{(4+w)*1024}"); L.issue()
        a(f"s_mov_b64 exec, 0xffff\n ds_write_b128 v{vMB}, v[{MA+8}:{MA+11}] offset:{8192+w*256}\n s_mov_b64 exec, -1"); L.issue('mw')
        a(f"buffer_load_dwordx4 v[{KX}:{KX+3}], v{vL16}, s[{sWSR}:{sWSR+3}], s{sXK} offen {self.xld}")
        a(f"buffer_load_dwordx4 v[{KX+4}:{KX+7}], v{vL16}, s[{sWSR}:{sWSR+3}], s{sXK} offen offset:1024 {self.xld}")
        a(f"buffer_load_dwordx4 v[{VX}:{VX+3}], v{vL16}, s[{sWSR}:{sWSR+3}], s{sXV} offen {self.xld}")
        a(f"buffer_load_dwordx4 v[{VX+4}:{VX+7}], v{vL16}, s[{sWSR}:{sWSR+3}], s{sXV} offen offset:1024 {self.xld}")
        abuf={own[0]:MA,own[1]:MA+4}
        ring=[MA+8,MA,MA+4]
        nxt=2
        rdA=0
        def issueA():
            nonlocal rdA
            if rdA<len(rest):
                ks=rest[rdA]; b=ring[rdA%3]; abuf[ks]=b
                a(f"ds_read_b128 v[{b}:{b+3}], v{vMB} offset:{ks*1024}"); L.issue(('A',ks)); rdA+=1
        resets=[]
        if self.isjob(w):
            resets=[f"s_mov_b64 exec, s[{sJM}:{sJM+1}]\n buffer_store_dwordx4 v[60:63]X"]
        for i,(m,t,ks) in enumerate(ops):
            if i==6:
                L.wait('mw'); a("s_barrier")
                issueA(); issueA()
            if i==12: issueA()
            if i>=18 and i%6==0: issueA_now=True
            else: issueA_now=False
            if i%6==0 and ks not in own: L.wait(('A',ks))
            f=self.frag[(m,ks,t)]
            if f[0]=='reg': B=self.regstr(f[1])
            else:
                s_=slot_of[i]; B=f"v[{s_}:{s_+7}]"
                if ('W',i) in L.pos: L.wait(('W',i))
            a(sm(accs[(m,t)],abuf[ks],B))
            if f[0]=='lds' and nxt<len(ldsops):
                j=ldsops[nxt]; mm,tt,kk=ops[j]
                rdfrag((mm,kk,tt),slot_of[j],('W',j)); nxt+=1
            if issueA_now: issueA()
            if self.isjob(w) and i in (20,26,32,38):
                k=(i-20)//6
                a(f"s_mov_b64 exec, s[{sJM}:{sJM+1}]\n buffer_store_dwordx4 v[76:79], v{vPld}, s[{sPM}:{sPM+3}], s{sPr+k} offen\n s_mov_b64 exec, -1") if False else None
        self.stamp(a,1)
        a("s_nop 7")
        cv=lambda d,x,y: a(f"v_cvt_pk_bf16_f32 v{d}, v{x}, v{y}")
        for k,src in enumerate([Q0,Q1,K0,K1,V0,V1]):
            cv(12+2*k,src,src+1); cv(13+2*k,src+2,src+3)
        oorder=[(k,T) for T in range(9) for k in range(2)]
        olds=[(k,T) for (k,T) in oorder if self.frag[('o',k,T)][0]=='lds']
        oslots=[64,72,56]
        oslot={}
        for j,kt in enumerate(olds): oslot[kt]=oslots[j%3]
        onxt=0
        def rdO():
            nonlocal onxt
            if onxt<len(olds):
                k,T=olds[onxt]; rdfrag(('o',k,T),oslot[(k,T)],('O',k,T)); onxt+=1
        rdO(); rdO()
        tm=lambda d,A: a(f"v_mfma_f32_16x16x16_bf16 v[{d}:{d+3}], v[{A}:{A+1}], v[{vSel}:{vSel+1}], 0")
        a("s_nop 0")
        tm(24,12); tm(28,14); tm(32,16); tm(36,18)
        a("s_nop 5")
        cv(12,24,25); cv(13,26,27); cv(14,28,29); cv(15,30,31)
        cv(16,32,33); cv(17,34,35); cv(18,36,37); cv(19,38,39)
        a(f"buffer_store_dwordx4 v[16:19], v{vL16}, s[{sWSR}:{sWSR+3}], s{sKMo} offen {self.kmflag}")
        a(f"buffer_store_dwordx4 v[20:23], v{vL16}, s[{sWSR}:{sWSR+3}], s{sKMo} offen offset:1024 {self.kmflag}")
        pub=self.fused and w==3
        if pub:
            a(f"v_mov_b32 v24, 1\n s_mov_b64 exec, 1\n buffer_store_dword v24, off, s[{sWSR}:{sWSR+3}], s{sFKM} sc1\n s_mov_b64 exec, -1")
        a(f"s_cmp_eq_u32 s{sSTEP}, {self.steps-1}\n s_cbranch_scc1 {lab}_exit")
        a(f"s_waitcnt vmcnt({3 if pub else 2})")
        a(f"v_mfma_f32_16x16x32_bf16 v[24:27], v[16:19], v[12:15], 0")
        a(f"v_mfma_f32_16x16x32_bf16 v[28:31], v[{KX}:{KX+3}], v[12:15], 0")
        a(f"v_mfma_f32_16x16x32_bf16 v[32:35], v[{KX+4}:{KX+7}], v[12:15], 0")
        a("s_nop 7")
        for r in range(4): a(f"v_cndmask_b32 v{28+r}, v{32+r}, v{28+r}, s[{sMASK8}:{sMASK8+1}]")
        a(f"ds_write_b128 v{vMB}, v[28:31] offset:{LDS_SX-LDS_M+w*1024}"); L.issue()
        a(f"s_mov_b64 exec, 0x00ff00ff\n ds_write_b128 v{vSm}, v[24:27] offset:{w*256}\n s_mov_b64 exec, -1"); L.issue('sw')
        L.wait('sw'); a("s_barrier")
        self.stamp(a,2)
        for k in range(4):
            a(f"ds_read_b128 v[{24+4*k}:{24+4*k+3}], v{vMB} offset:{LDS_SX-LDS_M+k*1024}"); L.issue(('sx',k))
        for k in range(4):
            a(f"ds_read_b128 v[{40+4*k}:{40+4*k+3}], v{vSm} offset:{k*256}"); L.issue(('sm',k))
        L.wait(('sx',3))
        for r in range(4): a(f"v_add_f32 v{24+r}, v{24+r}, v{28+r}\n v_add_f32 v{32+r}, v{32+r}, v{36+r}")
        for r in range(4): a(f"v_add_f32 v{24+r}, v{24+r}, v{32+r}")
        L.wait(('sm',3))
        for r in range(4): a(f"v_add_f32 v{40+r}, v{40+r}, v{44+r}\n v_add_f32 v{48+r}, v{48+r}, v{52+r}")
        for r in range(4): a(f"v_add_f32 v{40+r}, v{40+r}, v{48+r}")
        a(f"""
  v_max3_f32 v12, v24, v25, v26
  v_max3_f32 v13, v27, v40, v41
  v_max3_f32 v12, v12, v42, v43
  v_max_f32 v12, v12, v13
  s_nop 1
  v_max_f32_dpp v12, v12, v12 row_ror:8 row_mask:0xf bank_mask:0xf
  v_mov_b32 v13, v12
  s_nop 1
  v_permlane16_swap_b32 v12, v13
  v_max_f32 v12, v12, v13
  v_mov_b32 v13, v12
  s_nop 1
  v_permlane32_swap_b32 v12, v13
  v_max_f32 v12, v12, v13
  v_mul_f32 v12, s{sC}, v12
""")
        for r in range(4):
            a(f"v_fma_f32 v{24+r}, v{24+r}, s{sC}, -v12\n v_fma_f32 v{40+r}, v{40+r}, s{sC}, -v12")
        for r in range(4): a(f"v_exp_f32 v{24+r}, v{24+r}")
        for r in range(4): a(f"v_exp_f32 v{40+r}, v{40+r}")
        a(f"""
  v_cvt_pk_bf16_f32 v16, v24, v25
  v_cvt_pk_bf16_f32 v17, v26, v27
  v_cvt_pk_bf16_f32 v14, v40, v41
  v_cvt_pk_bf16_f32 v15, v42, v43
  v_mov_b32_dpp v18, v16 row_ror:8 row_mask:0xf bank_mask:0xf
  v_mov_b32_dpp v19, v17 row_ror:8 row_mask:0xf bank_mask:0xf
  v_add_f32 v12, v24, v25
  v_add_f32 v13, v26, v27
  v_add_f32 v44, v40, v41
  v_add_f32 v45, v42, v43
  v_mfma_f32_16x16x16_bf16 v[28:31], v[20:21], v[14:15], 0
  v_mfma_f32_16x16x16_bf16 v[32:35], v[22:23], v[14:15], 0
  v_add_f32 v12, v12, v13
  v_add_f32 v44, v44, v45
  v_fmac_f32 v12, 0x3e800000, v44
  v_mfma_f32_16x16x32_bf16 v[28:31], v[{VX}:{VX+3}], v[16:19], v[28:31]
  v_mfma_f32_16x16x32_bf16 v[32:35], v[{VX+4}:{VX+7}], v[16:19], v[32:35]
  v_add_f32_dpp v12, v12, v12 row_ror:8 row_mask:0xf bank_mask:0xf
  v_mov_b32 v13, v12
  s_nop 1
  v_permlane16_swap_b32 v12, v13
  v_add_f32 v12, v12, v13
  v_mov_b32 v13, v12
  s_nop 1
  v_permlane32_swap_b32 v12, v13
  v_add_f32 v12, v12, v13
  v_rcp_f32 v12, v12
""")
        rdO()
        a("s_nop 1")
        for r in range(8): a(f"v_mul_f32 v{28+r}, v{28+r}, v12")
        cv(36,28,29); cv(37,30,31); cv(38,32,33); cv(39,34,35)
        a(f"s_mov_b64 exec, s[{sMASK8}:{sMASK8+1}]")
        a(f"ds_write_b64 v{vOw}, v[36:37] offset:{(4*w)*128}"); L.issue()
        a(f"ds_write_b64 v{vOw}, v[38:39] offset:{(4*w+2)*128}"); L.issue('ow')
        a("s_mov_b64 exec, -1")
        L.wait('ow'); a("s_barrier")
        self.stamp(a,3)
        a(f"ds_read_b128 v[48:51], v{vMB} offset:{LDS_O-LDS_M}"); L.issue('oa0')
        a(f"ds_read_b128 v[52:55], v{vMB} offset:{LDS_O-LDS_M+1024}"); L.issue('oa1')
        for r in range(36): a(f"v_mov_b32 v{12+r}, 0")
        L.wait('oa1')
        for (k,T) in oorder:
            f=self.frag[('o',k,T)]
            if f[0]=='reg': B=self.regstr(f[1])
            else:
                s_=oslot[(k,T)]; B=f"v[{s_}:{s_+7}]"; L.wait(('O',k,T))
            a(sm(12+4*T,48+4*k,B))
            if f[0]=='lds': rdO()
        self.stamp(a,4)
        L2=[]
        for j in range(2):
            i=ldsops[j]; mm,tt,kk=ops[i]
            rdfrag((mm,kk,tt),slot_of[i],('W',i))
        a("s_nop 3")
        def pack4(T0,c):
            A_,B_,C_,D_=[12+4*(T0+x) for x in range(4)]
            for r in range(4): a(f"v_permlane32_swap_b32 v{A_+r}, v{B_+r}")
            for r in range(4): a(f"v_permlane32_swap_b32 v{C_+r}, v{D_+r}")
            for r in range(4): a(f"v_add_f32 v{A_+r}, v{A_+r}, v{B_+r}")
            for r in range(4): a(f"v_add_f32 v{C_+r}, v{C_+r}, v{D_+r}")
            cv(c,A_,A_+1); cv(c+1,A_+2,A_+3); cv(c+2,C_,C_+1); cv(c+3,C_+2,C_+3)
            a("s_nop 1")
            a(f"v_permlane16_swap_b32 v{c}, v{c+2}\n v_permlane16_swap_b32 v{c+1}, v{c+3}")
        pack4(0,48)
        a(f"buffer_store_dwordx4 v[48:51], v{vPst}, s[{sPM}:{sPM+3}], s{sPst} offen {self.stflag}")
        pack4(4,52)
        a(f"buffer_store_dwordx4 v[52:55], v{vPst}, s[{sPM}:{sPM+3}], s{sPst2} offen {self.stflag}")
        a(f"""
  v_permlane32_swap_b32 v44, v46
  v_permlane32_swap_b32 v45, v47
  v_add_f32 v44, v44, v46
  v_add_f32 v45, v45, v47
  v_cvt_pk_bf16_f32 v44, v44, v45
  buffer_store_dword v44, v{vP8}, s[{sPM}:{sPM+3}], s{sPst} offen {self.stflag}
""")
        self.stamp(a,5)
        a(f"""
  s_add_u32 s{sXK}, s{sXK}, {32*16384}
  s_add_u32 s{sXV}, s{sXV}, {32*16384}
  s_add_u32 s{sKMo}, s{sKMo}, {32*8192}
  s_mov_b32 s{sCNT}, 400000
""")
        if self.fused:
            a(f"""
  s_add_u32 s{sFKV}, s{sFKV}, 128
  s_add_u32 s{sFKM}, s{sFKV}, {C.F_KM-C.F_KV-128}
""")
        if self.isjob(w):
            a(f"""
  s_cmp_eq_u32 s{sJOB}, 0
  s_cbranch_scc1 {lab}_nojob
  v_mov_b32 v56, v{vSel}
  v_mov_b32 v57, v{vSel+1}
  v_mov_b32 v58, v{vSel}
  v_mov_b32 v59, v{vSel+1}
  v_mov_b32 v60, -1
  v_mov_b32 v61, -1
  v_mov_b32 v62, -1
  v_mov_b32 v63, -1
  v_permlane16_swap_b32 v56, v58
  v_permlane16_swap_b32 v57, v59
""")
            for k in range(4):
                a(f"buffer_store_dwordx4 v[60:63], v{vPld}, s[{sPM}:{sPM+3}], s{sPr+k} offen {self.stflag}")
            a(nops(self.d1))
            a(f"{lab}_poll1:")
            for k in range(4):
                a(f"buffer_load_dwordx4 v[{12+4*k}:{12+4*k+3}], v{vPld}, s[{sPM}:{sPM+3}], s{sPl+k} offen sc1")
            a(f"""
  s_waitcnt vmcnt(3)
  v_mfma_f32_16x16x32_bf16 v[28:31], v[12:15], v[56:59], 0
  s_waitcnt vmcnt(2)
  v_mfma_f32_16x16x32_bf16 v[32:35], v[16:19], v[56:59], 0
  s_waitcnt vmcnt(1)
  v_mfma_f32_16x16x32_bf16 v[28:31], v[20:23], v[56:59], v[28:31]
  s_waitcnt vmcnt(0)
  v_mfma_f32_16x16x32_bf16 v[32:35], v[24:27], v[56:59], v[32:35]
  s_nop 7
  v_add_f32 v28, v28, v32
  v_add_f32 v29, v29, v33
  v_add_f32 v30, v30, v34
  v_add_f32 v31, v31, v35
  s_nop 1
  v_permlane32_swap_b32 v28, v30
  v_permlane32_swap_b32 v29, v31
  v_add_f32 v28, v28, v30
  v_add_f32 v29, v29, v31
  v_cmp_u_f32 vcc, v28, v29
  v_cvt_pk_bf16_f32 v28, v28, v29
  s_cbranch_vccz {lab}_got1
  s_add_u32 s{sR1}, s{sR1}, 1
  s_sub_u32 s{sCNT}, s{sCNT}, 1
  s_cmp_lg_u32 s{sCNT}, 0
  s_cbranch_scc1 {lab}_poll1
  s_branch {lab}_exit
{lab}_got1:
  s_mov_b64 exec, s[{sMASK8}:{sMASK8+1}]
  buffer_store_dword v60, v{vPub}, s[{sPM}:{sPM+3}], s{sMR} offen {self.stflag}
  buffer_store_dword v28, v{vPub}, s[{sPM}:{sPM+3}], s{sMP} offen {self.stflag}
""")
            if self.dbgM:
                a(f"""
  s_mul_i32 s74, s{sSTEP}, 9216
  s_add_u32 s74, s74, {DBG_OFF}
  buffer_store_dword v28, v{vPub}, s[{sWSR}:{sWSR+3}], s74 offen
""")
            a("s_mov_b64 exec, -1")
            self.stamp(a,6)
            a(nops(self.d2j))
            a(f"s_branch {lab}_p2\n{lab}_nojob:")
        self.stamp(a,6)
        a(nops(self.d2n))
        b=MA
        a(f"""
{lab}_p2:
  buffer_load_dwordx4 v[{b}:{b+3}], v{vL16}, s[{sPM}:{sPM+3}], s{sMg} offen sc1
  buffer_load_dwordx4 v[{b+4}:{b+7}], v{vL16}, s[{sPM}:{sPM+3}], s{sMg+1} offen sc1
  s_mov_b64 exec, 0xffff
  buffer_load_dwordx4 v[{b+8}:{b+11}], v{vL16}, s[{sPM}:{sPM+3}], s{sMg+2} offen sc1
  s_mov_b64 exec, -1
  {f'buffer_load_dword v26, off, s[{sWSR}:{sWSR+3}], s{sFKV} sc1' if self.fused else ''}
  s_waitcnt vmcnt(0)
  v_max_u32 v24, v{b}, v{b+1}
  v_max3_u32 v24, v24, v{b+2}, v{b+3}
  v_max3_u32 v24, v24, v{b+4}, v{b+5}
  v_max3_u32 v24, v24, v{b+6}, v{b+7}
  v_max3_u32 v25, v{b+8}, v{b+9}, v{b+10}
  v_max_u32 v25, v25, v{b+11}
  v_cmp_eq_u32 vcc, -1, v24
  v_cmp_eq_u32 s[74:75], -1, v25
  s_and_b64 s[74:75], s[74:75], 0xffff
  s_or_b64 vcc, vcc, s[74:75]
  {'v_cmp_eq_u32 s[74:75], 0, v26' if self.fused else ''}
  {'s_or_b64 vcc, vcc, s[74:75]' if self.fused else ''}
  s_cbranch_vccz {lab}_got2
  s_add_u32 s{sR2}, s{sR2}, 1
  s_sub_u32 s{sCNT}, s{sCNT}, 1
  s_cmp_lg_u32 s{sCNT}, 0
  s_cbranch_scc1 {lab}_p2
  s_branch {lab}_exit
{lab}_got2:
""")
        self.stamp(a,7)
        self.stamp_acc(a,8)
        a(f"""
  s_add_u32 s{sSTEP}, s{sSTEP}, 1
  s_xor_b32 s{sPS}, s{sPS}, {PSLOT}
  s_xor_b32 s{sMP}, s{sMP}, {(MREL+MSLOT)^MREL}
  s_waitcnt lgkmcnt(0)
  s_branch {lab}_top
""")
    def isjob(self,w): return w<3
    xld=''

def rec_role(a,R,xcc_sgpr,lab='.Lrec'):
    R.startup(a)
    R.scalars(a)
    R.local_barrier(a,xcc_sgpr,lab+'_lb')
    R.load_m0(a)
    if R.fused:
        C.wait_word(a,sDBG,C.D_INIT,vt=(24,25))
        a(f"v_mov_b32 v24, s{sFKV}")
        C.wait_words(a,24,1,base=sWS,vt=25)
    if R.timing:
        for k in range(8): a(f"s_mov_b32 s{20+k}, 0")
        a("s_memtime s[96:97]")
    for w in range(1,4):
        a(f"s_cmp_eq_u32 s{sW}, {w}\n s_cbranch_scc1 {lab}_w{w}")
    for w in range(4):
        a(f"{lab}_w{w}:")
        R.loop(a,w,f"{lab}_w{w}")
        a(f"{lab}_w{w}_exit:")
        if w<3: a(f"s_branch {lab}_done")
    a(f"{lab}_done:")
    if R.fused:
        a(f"""
  s_waitcnt vmcnt(0)
  s_barrier
  s_cmp_lg_u32 s{sW}, 3
  s_cbranch_scc1 {lab}_fin
  s_lshl_b32 s74, s{sH}, 2
  s_add_u32 s74, s74, {C.F_KM+63*128}
  v_mov_b32 v24, 1
  s_mov_b64 exec, 1
  buffer_store_dword v24, off, s[{sWSR}:{sWSR+3}], s74 sc1
  s_mov_b64 exec, -1
{lab}_fin:
""")
def rec_kernel(name,R,stats=True):
    a=Asm()
    a(f"""
  s_load_dwordx2 s[6:7], s[0:1], 88
  s_getreg_b32 s20, hwreg(HW_REG_XCC_ID, 0, 4)
  s_cmp_ge_u32 s2, 256
  s_cbranch_scc1 .L{name}_end
  s_waitcnt lgkmcnt(0)
  s_lshl_b32 s21, s20, 2
  v_mov_b32 v1, s21
  v_mov_b32 v2, 1
  v_cmp_eq_u32 vcc, 0, v0
  s_and_saveexec_b64 s[30:31], vcc
  global_atomic_add v3, v1, v2, s[6:7] sc0
  s_waitcnt vmcnt(0)
  ds_write_b32 v0, v3
  s_waitcnt lgkmcnt(0)
  s_mov_b64 exec, s[30:31]
  s_barrier
  v_mov_b32 v9, 0
  ds_read_b32 v3, v9
  s_waitcnt lgkmcnt(0)
  v_readfirstlane_b32 s{sH}, v3
  s_cmp_lg_u32 s20, 0
  s_cbranch_scc1 .L{name}_end
  s_cmp_ge_u32 s{sH}, 32
  s_cbranch_scc1 .L{name}_end
  s_mov_b32 s90, s20
  s_barrier
  s_memtime s[92:93]
  s_waitcnt lgkmcnt(0)
""")
    rec_role(a,R,90,'.L'+name)
    if stats:
        a(f"""
  s_memtime s[94:95]
  s_waitcnt lgkmcnt(0)
  s_sub_u32 s94, s94, s92
  s_lshl_b32 s74, s{sH}, 2
  s_add_u32 s74, s74, s{sW}
  s_lshl_b32 s74, s74, 4
  s_add_u32 s74, s74, {DBG_OFF+1024*1024}
  v_mov_b32 v12, s94
  v_mov_b32 v13, s{sSTEP}
  v_mov_b32 v14, s{sR1}
  v_mov_b32 v15, s{sR2}
  v_mov_b32 v16, s74
  s_mov_b64 exec, 1
  buffer_store_dwordx4 v[12:15], v16, s[{sWSR}:{sWSR+3}], 0 offen
  s_mov_b64 exec, -1
""")
        if R.timing:
            a(f"""
  s_sub_u32 s96, s96, s92
  s_lshl_b32 s74, s{sH}, 2
  s_add_u32 s74, s74, s{sW}
  s_lshl_b32 s74, s74, 5
  s_add_u32 s74, s74, {DBG_OFF+1024*1024+4096}
  v_mov_b32 v16, s74
  v_mov_b32 v12, s20
  v_mov_b32 v13, s21
  v_mov_b32 v14, s22
  v_mov_b32 v15, s23
  v_mov_b32 v20, s24
  v_mov_b32 v21, s25
  v_mov_b32 v22, s26
  v_mov_b32 v23, s96
  s_mov_b64 exec, 1
  buffer_store_dwordx4 v[12:15], v16, s[{sWSR}:{sWSR+3}], 0 offen
  buffer_store_dwordx4 v[20:23], v16, s[{sWSR}:{sWSR+3}], 0 offen offset:16
  s_mov_b64 exec, -1
""")
    a(f".L{name}_end:\n s_endpgm")
    return a
```

```python
import sys
sys.path.insert(0,'gen')
from common import *
import common as C
import k_r1, r1, r3, r4, r5, rec, rec2, hazard
LDSSET=[('q',5),('q',6),('q',7),('q',8),('k',8),('o',0,0),('o',1,0),('o',0,2),('o',1,2)]
NB=96
def prologue(a,name,fake_xcc=None):
    load_ptrs(a)
    a(f"""
  s_cmp_ge_u32 s2, 256
  s_cbranch_scc1 .L{name}_end
  s_getreg_b32 s30, hwreg(HW_REG_XCC_ID, 0, 4)
""")
    if fake_xcc: fake_xcc(a)
    a(f"""
  s_cmp_lg_u32 s{sW}, 0
  s_cbranch_scc1 .L{name}_bar
  s_mov_b64 exec, 1
  s_lshl_b32 s31, s30, 2
  v_mov_b32 v2, s31
  v_mov_b32 v3, 1
  global_atomic_add v4, v2, v3, s[{sDBG}:{sDBG+1}] sc0
  s_waitcnt vmcnt(0)
  v_readfirstlane_b32 s31, v4         ; ticket
  s_add_u32 s32, s30, 1               ; xcc+1
  v_mov_b32 v2, {D_HOME}
  s_cmp_lg_u32 s31, 31
  s_cbranch_scc1 .L{name}_nocas
  v_mov_b32 v6, s32
  v_mov_b32 v7, 0
  global_atomic_cmpswap v2, v[6:7], s[{sDBG}:{sDBG+1}]
.L{name}_nocas:
  s_cmp_ge_u32 s31, 32
  s_cbranch_scc1 .L{name}_shadow
  s_mov_b32 s33, 4000000
.L{name}_hp:
  global_load_dword v5, v2, s[{sDBG}:{sDBG+1}] sc1
  s_waitcnt vmcnt(0)
  v_readfirstlane_b32 s34, v5
  s_cmp_lg_u32 s34, 0
  s_cbranch_scc1 .L{name}_hd
  s_sub_u32 s33, s33, 1
  s_cmp_lg_u32 s33, 0
  s_cbranch_scc1 .L{name}_hp
.L{name}_hd:
  s_cmp_lg_u32 s34, s32
  s_cbranch_scc1 .L{name}_shadow
  s_add_u32 s31, s31, 224
  v_mov_b32 v4, s31
  s_branch .L{name}_wr
.L{name}_shadow:
  v_mov_b32 v2, {D_RANK}
  global_atomic_add v4, v2, v3, s[{sDBG}:{sDBG+1}] sc0
  s_waitcnt vmcnt(0)
.L{name}_wr:
  v_mov_b32 v2, 0
  ds_write_b32 v2, v4
  s_waitcnt lgkmcnt(0)
  s_mov_b64 exec, -1
.L{name}_bar:
  s_barrier
  v_mov_b32 v2, 0
  ds_read_b32 v4, v2
  s_waitcnt lgkmcnt(0)
  v_readfirstlane_b32 s{sRANK}, v4
  s_barrier
""")
def flag1(a,base_srd,off_sreg):
    l=a.newlabel('f1')
    a(f"""
  s_cmp_lg_u32 s{sW}, 0
  s_cbranch_scc1 {l}
  v_mov_b32 v250, 1
  s_mov_b64 exec, 1
  buffer_store_dword v250, off, s[{base_srd}:{base_srd+3}], s{off_sreg} sc1
  s_mov_b64 exec, -1
{l}:
""")
def wait_phase(a,base,n):
    l=a.newlabel('wp')
    a(f"""
  s_cmp_lg_u32 s{sW}, 0
  s_cbranch_scc1 {l}
  v_lshlrev_b32 v248, 2, v{vLANE}
  v_add_u32 v248, {base}, v248
""")
    wait_words(a,248,(1<<min(n,64))-1,sleep=4)
    if n>64:
        a("v_add_u32 v248, 256, v248")
        wait_words(a,248,(1<<(n-64))-1,sleep=4)
    a(f"""
  buffer_inv sc1
  s_waitcnt vmcnt(0)
{l}:
  s_barrier
""")
def fused_kernel(name,ts=False,R=None,fake_xcc=None,NKV=3,NQ=6,NREP=3,NXA=32,NAO=16):
    a=Asm()
    L='.L'+name
    prologue(a,name,fake_xcc)
    st=lambda k,**kw: stamp(a,k,on=ts,**kw)
    st(0)
    a(f"s_cmp_ge_u32 s{sRANK}, 224\n s_cbranch_scc1 {L}_rec")
    winit=lambda a: wait_word(a,sDBG,D_INIT)
    a(f"""
  s_cmp_lg_u32 s{sRANK}, 0
  s_cbranch_scc1 {L}_noinit
  v_lshlrev_b32 v2, 4, v0
  v_add_u32 v2, {FL_OFF}, v2
  v_mov_b32 v4, 0
  v_mov_b32 v5, 0
  v_mov_b32 v6, 0
  v_mov_b32 v7, 0
""")
    for i in range(FL_BYTES//4096):
        a(f"global_store_dwordx4 v2, v[4:7], s[{sWS}:{sWS+1}] sc1\n v_add_u32 v2, 4096, v2")
    a(f"""
  s_waitcnt vmcnt(0)
  s_barrier
  s_cmp_lg_u32 s{sW}, 0
  s_cbranch_scc1 {L}_noinit
  v_mov_b32 v2, {D_INIT}
  v_mov_b32 v4, 1
  s_mov_b64 exec, 1
  global_store_dword v2, v4, s[{sDBG}:{sDBG+1}] sc1
  s_mov_b64 exec, -1
{L}_noinit:
  s_cmp_ge_u32 s{sRANK}, {NB}
  s_cbranch_scc1 {L}_A
""")
    assert 32*NKV<=NB and 16*NQ<=NB and 18*NREP+NXA<=NB
    a(f"s_mov_b32 s{sTASK}, s{sRANK}\n s_cmp_ge_u32 s{sTASK}, {32*NKV}\n s_cbranch_scc1 {L}_kvx")
    k_r1.r1_task(a,'kv',L+'kv',stflag='sc1',NTG=NKV,flags=True,after_w=winit)
    a(f"{L}_kvx:"); st(1)
    a(f"s_mov_b32 s{sTASK}, s{sRANK}\n s_cmp_ge_u32 s{sTASK}, {16*NQ}\n s_cbranch_scc1 {L}_qx")
    k_r1.r1_task(a,'qq',L+'qq',stflag='sc1',NTG=NQ,flags=True,after_w=winit)
    a(f"{L}_qx:"); st(2)
    a(f"s_cmp_ge_u32 s{sRANK}, {18*NREP}\n s_cbranch_scc1 {L}_xa")
    a(f"s_mov_b32 s{sTASK}, s{sRANK}")
    winit(a)
    r5.r5_role(a,L+'bo',sTASK,nrep=NREP)
    st(3)
    a(f"s_branch {L}_end\n{L}_xa:")
    a(f"s_cmp_ge_u32 s{sRANK}, {18*NREP+NXA}\n s_cbranch_scc1 {L}_end")
    a(f"s_sub_u32 s{sTASK}, s{sRANK}, {18*NREP}")
    winit(a)
    r4.r4_role(a,L+'xat',sTASK,nwaves=4*NXA)
    st(3)
    a(f"s_branch {L}_end")
    a(f"{L}_A:\n s_sub_u32 s91, s{sRANK}, {NB}")
    a(f"s_cmp_ge_u32 s91, 64\n s_cbranch_scc1 {L}_avv\n s_mov_b32 s{sTASK}, s91")
    k_r1.r1_task(a,'aqk',L+'aqk',stflag='sc1',NTG=8,after_w=winit)
    a(f"s_branch {L}_apf\n{L}_avv:")
    a(f"s_cmp_ge_u32 s91, 96\n s_cbranch_scc1 {L}_apx\n s_sub_u32 s{sTASK}, s91, 64")
    k_r1.r1_task(a,'avv',L+'avv',stflag='sc1',NTG=8,after_w=winit)
    a(f"{L}_apf:\n s_lshl_b32 s60, s91, 2\n s_add_u32 s60, s60, {F_AP}")
    flag1(a,44,60)
    a(f"s_branch {L}_apw\n{L}_apx:")
    winit(a)
    a(f"{L}_apw:"); st(1)
    wait_phase(a,F_AP,96); st(2)
    a(f"s_mov_b32 s{sTASK}, s91")
    r3.r3_task(a,L+'att',stflag='sc1',nq=2,qstep=4)
    a(f"s_lshl_b32 s60, s91, 2\n s_add_u32 s60, s60, {F_AT}")
    flag1(a,32,60); st(3)
    a(f"s_cmp_ge_u32 s91, {3*NAO}\n s_cbranch_scc1 {L}_end\n s_mov_b32 s{sTASK}, s91")
    wait_phase(a,F_AT,128); st(4)
    k_r1.r1_task(a,'aout',L+'aout',NTG=NAO)
    st(5)
    a(f"s_branch {L}_end")
    a(f"{L}_rec:\n s_sub_u32 s{rec.sH}, s{sRANK}, 224\n s_mov_b32 s99, s{sRANK}")
    R=R or rec2.Rec2(LDSSET,fused=True)
    rec2.rec_role(a,R,30,L+'rec')
    if ts:
        stamp(a,1,slot=99,base=rec.sWS,w=rec.sW)
        a(f"""
  s_cmp_lg_u32 s{rec.sW}, 0
  s_cbranch_scc1 {L}_end
  s_lshl_b32 s94, s99, 6
  s_add_u32 s94, s94, {TS_OFF+16}
  v_mov_b32 v12, s{rec.sSTEP}
  v_mov_b32 v13, s{rec2.sR1}
  v_mov_b32 v14, s{rec2.sR2}
  v_mov_b32 v15, 0
  v_mov_b32 v16, s94
  s_mov_b64 exec, 1
  global_store_dwordx4 v16, v[12:15], s[{rec.sWS}:{rec.sWS+1}]
  s_mov_b64 exec, -1
""")
    a(f"{L}_end:\n s_endpgm")
    a.lines=hazard.fix(a.lines)
    return a
NAME='concat_heads__mha_block__memory_aug_recurrent_mem_tr__prompt'
def header_lines():
    ref=open(f'cdna_kernels/{NAME}.s.ref').read().split('\n')
    return '\n'.join(l for l in ref[:ref.index([l for l in ref if l.startswith('; Override')][0])])+'\n'
def build(path,**kw):
    n=NAME+'_kernel'
    a=fused_kernel(n,**kw)
    t=wrap([(n,a.text())],[(n,256,163840)],header_lines(),single=True)
    open(path,'w').write(t)
    print('bytes',len(t),'lines',len(a.lines))
if __name__=='__main__':
    build(sys.argv[1] if len(sys.argv)>1 else f'cdna_kernels/{NAME}.s', ts=('ts' in sys.argv))
```

```python
import re
def regs_of(tok):
    tok=tok.strip().lstrip('-').strip('|')
    m=re.fullmatch(r'([vas])\[(\d+):(\d+)\]',tok)
    if m: return {(m.group(1),i) for i in range(int(m.group(2)),int(m.group(3))+1)}
    m=re.fullmatch(r'([vas])(\d+)',tok)
    if m: return {(m.group(1),int(m.group(2)))}
    if tok=='vcc': return {('s','vcc')}
    if tok=='exec': return {('s','exec')}
    if tok=='m0': return {('s','m0')}
    return set()
MF4=('v_mfma_f32_16x16x32_bf16','v_smfmac_f32_16x16x64_bf16','v_mfma_f32_16x16x16_bf16')
MF8=('v_mfma_f32_32x32x8_bf16','v_mfma_f32_32x32x16_bf16','v_smfmac_f32_32x32x32_bf16')
TRANS=('v_exp_f32','v_log_f32','v_rcp_f32','v_rsq_f32','v_sqrt_f32','v_sin_f32','v_cos_f32')
TIMEBASED=True
class I: pass
def parse(line):
    s=line.split(';')[0].strip()
    if not s or s.endswith(':') or s.startswith('.'): return None
    p=s.split(None,1)
    op=p[0]; rest=p[1] if len(p)>1 else ''
    ops=[o.strip() for o in re.split(r',\s*(?![^\[]*\])',rest)] if rest else []
    mods=''
    if ops:
        q=ops[-1].split(None,1)
        ops[-1]=q[0]
        if len(q)>1: mods=q[1]
    i=I(); i.op=op; i.ops=ops; i.mods=mods; i.text=s
    i.w=1; i.kind='other'; i.dst=set(); i.src=set(); i.srcC=set(); i.srcAB=set(); i.passes=0
    i.dpp = ('_dpp' in op) or ('row_' in mods) or ('quad_perm' in mods)
    base=op.replace('_e32','').replace('_e64','').replace('_dpp','')
    if op=='s_nop': i.w=int(ops[0])+1; i.kind='nop'; return i
    if base in MF4 or base in MF8:
        i.kind='mfma'; i.passes=4 if base in MF4 else 8
        i.dst=regs_of(ops[0]); i.srcAB=regs_of(ops[1])|regs_of(ops[2])
        if 'smfmac' in base:
            i.srcC=set(i.dst); i.srcAB|=regs_of(ops[3]); i.sm=True
        else:
            i.srcC=regs_of(ops[3]); i.sm=False
        i.src=i.srcAB|i.srcC
        return i
    if base.startswith('v_'):
        i.kind='valu'
        i.trans = base in TRANS
        if base.startswith('v_cmp'):
            i.dst=regs_of(ops[0]); i.src=set().union(*[regs_of(o) for o in ops[1:]])
        elif base.startswith('v_permlane') and 'swap' in base:
            i.dst=regs_of(ops[0])|regs_of(ops[1]); i.src=set(i.dst); i.perm=True
        elif base in ('v_readfirstlane_b32','v_readlane_b32'):
            i.dst=regs_of(ops[0]); i.src=set().union(*[regs_of(o) for o in ops[1:]]); i.rl=True
        else:
            i.dst=regs_of(ops[0]); i.src=set().union(*[regs_of(o) for o in ops[1:]]) if len(ops)>1 else set()
            if base in ('v_cndmask_b32',) and len(ops)==3: i.src|={('s','vcc')}
            if base in ('v_fmac_f32','v_mac_f32') or i.dpp: i.src|=i.dst
            if base.startswith('v_accvgpr_write'): pass
        return i
    if base.startswith('ds_'):
        i.kind='ds'
        if base.startswith('ds_read'):
            i.dst=regs_of(ops[0]); i.src=regs_of(ops[1])
        else:
            i.src=set().union(*[regs_of(o) for o in ops]); i.data=set().union(*[regs_of(o) for o in ops[1:]])
        return i
    if base.startswith('global_') or base.startswith('buffer_'):
        i.kind='vmem'
        allr=[regs_of(o) for o in ops]
        isload = ('load' in base) and not ('lds' in base or ' lds' in (' '+mods))
        atomic_ret = ('atomic' in base and 'sc0' in mods)
        if base.startswith('buffer_inv') or base.startswith('buffer_wbl2'): return i
        if isload or atomic_ret:
            i.dst=allr[0]; i.src=set().union(*allr[1:])
        else:
            i.src=set().union(*allr)
            if 'store' in base:
                i.wide = ('x3' in base or 'x4' in base)
                if base.startswith('global_'): i.data=allr[1]
                else: i.data=allr[0]
        return i
    if base.startswith('s_'):
        i.kind='salu'
        if base in ('s_waitcnt','s_barrier','s_branch','s_endpgm','s_sleep','s_setprio') or base.startswith('s_cbranch'): return i
        if base.startswith('s_cmp'):
            i.src=set().union(*[regs_of(o) for o in ops]); return i
        if ops:
            i.dst=regs_of(ops[0]); i.src=set().union(*[regs_of(o) for o in ops[1:]]) if len(ops)>1 else set()
        return i
    return i
def vonly(s): return {r for r in s if r[0] in 'va'}
def sonly(s): return {r for r in s if r[0]=='s'}
def check(lines, wrap=False, verbose=True):
    ins=[x for x in (parse(l) for l in lines) if x]
    if wrap: ins=ins+ins
    errs=[]
    n=len(ins)
    for j,c in enumerate(ins):
        dist=0
        k=j-1
        while k>=0 and dist<24:
            p=ins[k]
            need=0; why=''
            def req(nn,w):
                nonlocal need,why
                if nn>need: need=nn; why=w
            if p.kind=='valu':
                pv=vonly(p.dst); ps=sonly(p.dst)
                if c.kind=='mfma' and pv & vonly(c.src): req(2,'valu->mfma')
                if c.kind=='valu' and (getattr(c,'perm',False)) and pv & vonly(c.src): req(2,'valu->permlane')
                if c.kind=='valu' and c.dpp and pv & vonly(c.src): req(2,'valu->dpp')
                if c.kind=='valu' and getattr(c,'rl',False) and pv & vonly(c.src): req(1,'valu->readlane')
                if getattr(p,'trans',False) and c.kind=='valu' and not getattr(c,'trans',False) and pv & vonly(c.src): req(1,'trans->valu')
                if getattr(p,'trans',False) and c.kind=='mfma' and pv & vonly(c.src): req(2,'trans->mfma')
                if ps and c.kind=='valu' and ps & sonly(c.src): req(2,'valu sgpr->valu const')
                if ps and c.kind=='vmem' and ps & sonly(c.src): req(5,'valu sgpr->vmem')
            if p.kind=='mfma':
                D=p.dst
                big = 8 if p.passes==4 else 12
                if c.kind=='mfma':
                    if D & c.srcAB: req(big,'mfma D->mfma AB')
                    if D & c.srcC and not (c.srcC==D and c.passes==p.passes): req(6 if p.passes==4 else 10,'mfma D->mfma C overlap')
                    if D & c.dst and not (c.dst==D) : req(6 if p.passes==4 else 10,'mfma D waw overlap')
                elif c.kind=='valu':
                    if D & (vonly(c.src)|vonly(c.dst)): req(big,'mfma D->valu')
                    if p.srcC & vonly(c.dst): req(3 if p.passes==4 else 7,'mfma C war valu')
                elif c.kind in('ds','vmem'):
                    if D & (vonly(c.src)|vonly(c.dst)): req(big,'mfma D->mem')
            if p.kind=='vmem' and getattr(p,'wide',False):
                if c.kind=='valu' and vonly(p.data)&vonly(c.dst): req(2,'wide store war valu')
                elif c.kind in('ds','vmem','mfma') and vonly(p.data)&vonly(c.dst): req(1,'wide store war')
            if p.kind=='salu' and ('s','m0') in p.dst and c.kind=='vmem' and ('lds' in c.op or 'lds' in c.mods): req(1,'m0->lds dma')
            d_=dist
            if need>dist and p.kind=='mfma' and p.passes==4 and TIMEBASED:
                t=0; lastm=0; lastp=4
                for q in range(k+1,j+1):
                    t+=4*ins[q-1].w
                    if ins[q].kind=='mfma':
                        t=max(t,lastm+4*lastp); lastm=t; lastp=ins[q].passes
                    if ins[q].op in ('s_barrier',) or ins[q].op.startswith('s_cbranch') or ins[q].op=='s_branch': pass
                d_=t//4-1
            if need>d_:
                errs.append((j,p.text,c.text,need,d_,why))
            dist+=p.w
            k-=1
    if verbose:
        seen=set()
        for e in errs:
            key=(e[1],e[2])
            if key in seen: continue
            seen.add(key)
            print('HAZARD need %d have %d (%s): [%s] -> [%s]'%(e[3],e[4],e[5],e[1],e[2]))
    return errs

def fix(lines, verbose=False):
    lines=list(lines)
    total=0
    for it in range(2000):
        idx=[i for i,l in enumerate(lines) if parse(l)]
        errs=check(lines,verbose=False)
        if not errs: break
        errs.sort(key=lambda e:e[0])
        j=errs[0][0]
        need=max(e[3]-e[4] for e in errs if e[0]==j)
        if verbose: print('fix: +%d before [%s] (%s)'%(need,errs[0][2],errs[0][5]))
        lines.insert(idx[j],f"  s_nop {need-1}")
        total+=1
    return lines
```

```python
import sys
sys.path.insert(0,'gen')
from asmlib import *
import rec
from rec import *
import common as C
sFKM=90; sFKV=91
sPM=40
sWSR=44
sPS=48
sMP=49
sPst=50; sPst2=51
sPl=52
sPr=56
sMR=60
sMg=61
sXK=64
sXV=65
sKMo=66
sHP=67
sCNT=68
sR1=69; sR2=73
MREL=M_OFF-P_OFF
class Q:
    def __init__(s,a,name,maxv): s.a=a; s.name=name; s.maxv=maxv; s.n=0; s.pos={}
    def issue(s,tag=None,k=1):
        s.n+=k
        if tag is not None: s.pos[tag]=s.n
    def wait(s,tag):
        c=min(s.n-s.pos[tag],s.maxv)
        s.a(f"s_waitcnt {s.name}({c})")
    def reset(s): s.n=0; s.pos={}
def nops(cyc):
    out=[]; n=cyc//4
    while n>0:
        k=min(n,8); out.append(f"s_nop {k-1}"); n-=k
    return "\n".join(out)

class Rec2(Rec):
    def __init__(self, lds_set, d1=240, d2j=200, d2n=900, stflag='', kmflag='', steps=64, dbgM=False, timing=False, fused=False):
        super().__init__(lds_set,stflag=stflag)
        self.fused=fused
        if fused: kmflag='sc1'; self.xld='sc1'
        self.d1=d1; self.d2j=d2j; self.d2n=d2n; self.stflag=stflag; self.kmflag=kmflag; self.steps=steps; self.dbgM=dbgM; self.timing=timing
    def fr(self,key):
        return self.frag[key]
    def regstr(self,b): return f"{b[0]}[{b[1]}:{b[1]+7}]"
    def scalars(self,a):
        a(f"""
  s_mov_b32 s{sSTEP}, 0
  s_add_u32 s{sPM}, s{sWS}, {P_OFF}
  s_addc_u32 s{sPM+1}, s{sWS+1}, 0
  s_mov_b32 s{sPM+2}, {2*1024*1024}
  s_mov_b32 s{sPM+3}, 0x00020000
  s_mov_b32 s{sWSR}, s{sWS}
  s_mov_b32 s{sWSR+1}, s{sWS+1}
  s_mov_b32 s{sWSR+2}, 0x10000000
  s_mov_b32 s{sWSR+3}, 0x00020000
  s_mov_b32 s{sPS}, 0
  s_mov_b32 s{sMP}, {MREL+MSLOT}
  s_mul_i32 s{sHP}, s{sH}, 9216
  s_lshl_b32 s74, s{sH}, 14
  s_lshl_b32 s75, s{sW}, 11
  s_add_u32 s{sXK}, s74, s75
  s_add_u32 s{sXK}, s{sXK}, {XKV_OFF}
  s_add_u32 s{sXV}, s{sXK}, 8192
  s_lshl_b32 s74, s{sH}, 13
  s_add_u32 s{sKMo}, s74, s75
  s_add_u32 s{sKMo}, s{sKMo}, {KMVM_OFF}
  s_mov_b32 s{sR1}, 0
  s_mov_b32 s{sR2}, 0
""")
        if self.fused:
            a(f"""
  s_mov_b32 s{sFKM}, {C.NULLOFF}
  s_lshl_b32 s74, s{sH}, 2
  s_add_u32 s{sFKV}, s74, {C.F_KV}
""")
    def step_scalars(self,a):
        a(f"""
  s_add_u32 s{sPst}, s{sPS}, s{sHP}
  s_add_u32 s{sPst2}, s{sPst}, 4096
  s_xor_b32 s74, s{sPS}, {PSLOT}
""")
        for i in range(4):
            a(f"s_add_u32 s{sPl+i}, s{sPS}, {i*73728}\n s_add_u32 s{sPr+i}, s74, {i*73728}")
        a(f"""
  s_xor_b32 s{sMR}, s{sMP}, {(MREL+MSLOT)^MREL}
  s_lshl_b32 s74, s{sW}, 10
  s_add_u32 s{sMg}, s{sMP}, s74
  s_add_u32 s{sMg+1}, s{sMg}, 4096
  s_lshl_b32 s74, s{sW}, 8
  s_add_u32 s74, s74, 8192
  s_add_u32 s{sMg+2}, s{sMP}, s74
""")
    def load_m0(self,a):
        a(f"""
  v_mov_b32 v{MA+8}, 0
  v_mov_b32 v{MA+9}, 0
  v_mov_b32 v{MA+10}, 0
  v_mov_b32 v{MA+11}, 0
  v_lshrrev_b32 v24, 4, v{vL16}      ; lane
  v_and_b32 v25, 7, v24
  v_mul_u32_u24 v25, 1152, v25
  v_lshrrev_b32 v24, 3, v24
  v_lshlrev_b32 v24, 4, v24
  v_add_u32 v24, v24, v25            ; r8*1152 + (lane>>3)*16
  s_lshl_b32 s74, s{sW}, 7
  v_add_u32 v25, s74, v24
  global_load_dwordx4 v[{MA}:{MA+3}], v25, s[{sMEM}:{sMEM+1}]
  global_load_dwordx4 v[{MA+4}:{MA+7}], v25, s[{sMEM}:{sMEM+1}] offset:512
  s_lshl_b32 s74, s{sW}, 5
  s_add_u32 s74, s74, 1024
  v_add_u32 v25, s74, v24
  s_mov_b64 exec, 0xffff
  global_load_dwordx4 v[{MA+8}:{MA+11}], v25, s[{sMEM}:{sMEM+1}]
  s_mov_b64 exec, -1
  s_waitcnt vmcnt(0)
""")
    def local_barrier(self,a,xcc_sgpr,lab):
        a(f"""
  s_waitcnt vmcnt(0)
  s_barrier
  {f's_mov_b32 s74, {C.D_LBAR}' if self.fused else f's_lshl_b32 s74, s{xcc_sgpr}, 2'}
  {'s_nop 0' if self.fused else 's_add_u32 s74, s74, 32'}
  v_mov_b32 v12, s74
  v_mov_b32 v13, 1
  s_cmp_lg_u32 s{sW}, 0
  s_cbranch_scc1 {lab}_skip
  s_mov_b64 exec, 1
  global_atomic_add v12, v13, s[{sDBG}:{sDBG+1}]
  s_mov_b32 s75, 2000000
{lab}_poll:
  global_load_dword v14, v12, s[{sDBG}:{sDBG+1}] sc1
  s_waitcnt vmcnt(0)
  v_readfirstlane_b32 s76, v14
  s_sub_u32 s75, s75, 1
  s_cmp_eq_u32 s75, 0
  s_cbranch_scc1 {lab}_done
  s_cmp_lt_u32 s76, 32
  s_cbranch_scc1 {lab}_poll
{lab}_done:
  s_mov_b64 exec, -1
{lab}_skip:
  s_barrier
""")
    def stamp(self,a,k):
        if self.timing: a(f"s_memtime s[{4+2*k}:{5+2*k}]")
    def stamp_acc(self,a,n):
        if not self.timing: return
        a("s_waitcnt lgkmcnt(0)")
        for k in range(n-1):
            a(f"s_sub_u32 s74, s{4+2*(k+1)}, s{4+2*k}\n s_add_u32 s{20+k}, s{20+k}, s74")
    def loop(self,a,w,lab):
        L=Q(a,'lgkmcnt',15)
        sm=lambda d,A,B: f"v_smfmac_f32_16x16x64_bf16 v[{d}:{d+3}], v[{A}:{A+3}], {B}, v{vIdx}"
        Q0,Q1,K0,K1,V0,V1=24,28,32,36,40,44
        accs={('q',0):Q0,('q',1):Q1,('k',0):K0,('k',1):K1,('v',0):V0,('v',1):V1}
        own=[w,4+w]
        rest=[k for k in [8]+list(range(8)) if k not in own]
        order=own+rest
        mats=[('q',0),('k',0),('v',0),('q',1),('k',1),('v',1)]
        ops=[(m,t,ks) for ks in order for (m,t) in mats]
        ldsops=[i for i,(m,t,ks) in enumerate(ops) if self.frag[(m,ks,t)][0]=='lds']
        WBS=[64,72]
        slot_of={}
        for j,i in enumerate(ldsops): slot_of[i]=WBS[j%2]
        def rdfrag(key,slot,tag):
            off=self.frag[key][1]
            a(f"ds_read_b128 v[{slot}:{slot+3}], v{vFR} offset:{off}")
            a(f"ds_read_b128 v[{slot+4}:{slot+7}], v{vFR} offset:{off+1024}")
            L.issue(tag,2)
        for j in range(2):
            i=ldsops[j]; mm,tt,kk=ops[i]
            rdfrag((mm,kk,tt),slot_of[i],None)
        a("s_waitcnt lgkmcnt(0)"); L.reset()
        a(f"{lab}_top:")
        self.stamp(a,0)
        self.step_scalars(a)
        for r in range(24): a(f"v_mov_b32 v{24+r}, 0")
        a(f"ds_write_b128 v{vMB}, v[{MA}:{MA+3}] offset:{w*1024}"); L.issue()
        a(f"ds_write_b128 v{vMB}, v[{MA+4}:{MA+7}] offset:{(4+w)*1024}"); L.issue()
        a(f"s_mov_b64 exec, 0xffff\n ds_write_b128 v{vMB}, v[{MA+8}:{MA+11}] offset:{8192+w*256}\n s_mov_b64 exec, -1"); L.issue('mw')
        a(f"buffer_load_dwordx4 v[{KX}:{KX+3}], v{vL16}, s[{sWSR}:{sWSR+3}], s{sXK} offen {self.xld}")
        a(f"buffer_load_dwordx4 v[{KX+4}:{KX+7}], v{vL16}, s[{sWSR}:{sWSR+3}], s{sXK} offen offset:1024 {self.xld}")
        a(f"buffer_load_dwordx4 v[{VX}:{VX+3}], v{vL16}, s[{sWSR}:{sWSR+3}], s{sXV} offen {self.xld}")
        a(f"buffer_load_dwordx4 v[{VX+4}:{VX+7}], v{vL16}, s[{sWSR}:{sWSR+3}], s{sXV} offen offset:1024 {self.xld}")
        abuf={own[0]:MA,own[1]:MA+4}
        ring=[MA+8,MA,MA+4]
        nxt=2
        rdA=0
        def issueA():
            nonlocal rdA
            if rdA<len(rest):
                ks=rest[rdA]; b=ring[rdA%3]; abuf[ks]=b
                a(f"ds_read_b128 v[{b}:{b+3}], v{vMB} offset:{ks*1024}"); L.issue(('A',ks)); rdA+=1
        resets=[]
        if self.isjob(w):
            resets=[f"s_mov_b64 exec, s[{sJM}:{sJM+1}]\n buffer_store_dwordx4 v[60:63]X"]
        for i,(m,t,ks) in enumerate(ops):
            if i==6:
                L.wait('mw'); a("s_barrier")
                issueA(); issueA()
            if i==12: issueA()
            if i>=18 and i%6==0: issueA_now=True
            else: issueA_now=False
            if i%6==0 and ks not in own: L.wait(('A',ks))
            f=self.frag[(m,ks,t)]
            if f[0]=='reg': B=self.regstr(f[1])
            else:
                s_=slot_of[i]; B=f"v[{s_}:{s_+7}]"
                if ('W',i) in L.pos: L.wait(('W',i))
            a(sm(accs[(m,t)],abuf[ks],B))
            if f[0]=='lds' and nxt<len(ldsops):
                j=ldsops[nxt]; mm,tt,kk=ops[j]
                rdfrag((mm,kk,tt),slot_of[j],('W',j)); nxt+=1
            if issueA_now: issueA()
            if self.isjob(w) and i in (20,26,32,38):
                k=(i-20)//6
                a(f"s_mov_b64 exec, s[{sJM}:{sJM+1}]\n buffer_store_dwordx4 v[76:79], v{vPld}, s[{sPM}:{sPM+3}], s{sPr+k} offen\n s_mov_b64 exec, -1") if False else None
        self.stamp(a,1)
        a("s_nop 7")
        cv=lambda d,x,y: a(f"v_cvt_pk_bf16_f32 v{d}, v{x}, v{y}")
        for k,src in enumerate([Q0,Q1,K0,K1,V0,V1]):
            cv(12+2*k,src,src+1); cv(13+2*k,src+2,src+3)
        oorder=[(k,T) for T in range(9) for k in range(2)]
        olds=[(k,T) for (k,T) in oorder if self.frag[('o',k,T)][0]=='lds']
        oslots=[64,72,56]
        oslot={}
        for j,kt in enumerate(olds): oslot[kt]=oslots[j%3]
        onxt=0
        def rdO():
            nonlocal onxt
            if onxt<len(olds):
                k,T=olds[onxt]; rdfrag(('o',k,T),oslot[(k,T)],('O',k,T)); onxt+=1
        rdO(); rdO()
        tm=lambda d,A: a(f"v_mfma_f32_16x16x16_bf16 v[{d}:{d+3}], v[{A}:{A+1}], v[{vSel}:{vSel+1}], 0")
        a("s_nop 0")
        tm(24,12); tm(28,14); tm(32,16); tm(36,18)
        a("s_nop 5")
        cv(12,24,25); cv(13,26,27); cv(14,28,29); cv(15,30,31)
        cv(16,32,33); cv(17,34,35); cv(18,36,37); cv(19,38,39)
        a(f"buffer_store_dwordx4 v[16:19], v{vL16}, s[{sWSR}:{sWSR+3}], s{sKMo} offen {self.kmflag}")
        a(f"buffer_store_dwordx4 v[20:23], v{vL16}, s[{sWSR}:{sWSR+3}], s{sKMo} offen offset:1024 {self.kmflag}")
        pub=self.fused and w==3
        if pub:
            a(f"v_mov_b32 v24, 1\n s_mov_b64 exec, 1\n buffer_store_dword v24, off, s[{sWSR}:{sWSR+3}], s{sFKM} sc1\n s_mov_b64 exec, -1")
        a(f"s_cmp_eq_u32 s{sSTEP}, {self.steps-1}\n s_cbranch_scc1 {lab}_exit")
        a(f"s_waitcnt vmcnt({3 if pub else 2})")
        a(f"v_mfma_f32_16x16x32_bf16 v[24:27], v[16:19], v[12:15], 0")
        a(f"v_mfma_f32_16x16x32_bf16 v[28:31], v[{KX}:{KX+3}], v[12:15], 0")
        a(f"v_mfma_f32_16x16x32_bf16 v[32:35], v[{KX+4}:{KX+7}], v[12:15], 0")
        a("s_nop 7")
        for r in range(4): a(f"v_cndmask_b32 v{28+r}, v{32+r}, v{28+r}, s[{sMASK8}:{sMASK8+1}]")
        a(f"ds_write_b128 v{vMB}, v[28:31] offset:{LDS_SX-LDS_M+w*1024}"); L.issue()
        a(f"s_mov_b64 exec, 0x00ff00ff\n ds_write_b128 v{vSm}, v[24:27] offset:{w*256}\n s_mov_b64 exec, -1"); L.issue('sw')
        L.wait('sw'); a("s_barrier")
        self.stamp(a,2)
        for k in range(4):
            a(f"ds_read_b128 v[{24+4*k}:{24+4*k+3}], v{vMB} offset:{LDS_SX-LDS_M+k*1024}"); L.issue(('sx',k))
        for k in range(4):
            a(f"ds_read_b128 v[{40+4*k}:{40+4*k+3}], v{vSm} offset:{k*256}"); L.issue(('sm',k))
        L.wait(('sx',3))
        for r in range(4): a(f"v_add_f32 v{24+r}, v{24+r}, v{28+r}\n v_add_f32 v{32+r}, v{32+r}, v{36+r}")
        for r in range(4): a(f"v_add_f32 v{24+r}, v{24+r}, v{32+r}")
        L.wait(('sm',3))
        for r in range(4): a(f"v_add_f32 v{40+r}, v{40+r}, v{44+r}\n v_add_f32 v{48+r}, v{48+r}, v{52+r}")
        for r in range(4): a(f"v_add_f32 v{40+r}, v{40+r}, v{48+r}")
        a(f"""
  v_max3_f32 v12, v24, v25, v26
  v_max3_f32 v13, v27, v40, v41
  v_max3_f32 v12, v12, v42, v43
  v_max_f32 v12, v12, v13
  s_nop 1
  v_max_f32_dpp v12, v12, v12 row_ror:8 row_mask:0xf bank_mask:0xf
  v_mov_b32 v13, v12
  s_nop 1
  v_permlane16_swap_b32 v12, v13
  v_max_f32 v12, v12, v13
  v_mov_b32 v13, v12
  s_nop 1
  v_permlane32_swap_b32 v12, v13
  v_max_f32 v12, v12, v13
  v_mul_f32 v12, s{sC}, v12
""")
        for r in range(4):
            a(f"v_fma_f32 v{24+r}, v{24+r}, s{sC}, -v12\n v_fma_f32 v{40+r}, v{40+r}, s{sC}, -v12")
        for r in range(4): a(f"v_exp_f32 v{24+r}, v{24+r}")
        for r in range(4): a(f"v_exp_f32 v{40+r}, v{40+r}")
        a(f"""
  v_cvt_pk_bf16_f32 v16, v24, v25
  v_cvt_pk_bf16_f32 v17, v26, v27
  v_cvt_pk_bf16_f32 v14, v40, v41
  v_cvt_pk_bf16_f32 v15, v42, v43
  v_mov_b32_dpp v18, v16 row_ror:8 row_mask:0xf bank_mask:0xf
  v_mov_b32_dpp v19, v17 row_ror:8 row_mask:0xf bank_mask:0xf
  v_add_f32 v12, v24, v25
  v_add_f32 v13, v26, v27
  v_add_f32 v44, v40, v41
  v_add_f32 v45, v42, v43
  v_mfma_f32_16x16x16_bf16 v[28:31], v[20:21], v[14:15], 0
  v_mfma_f32_16x16x16_bf16 v[32:35], v[22:23], v[14:15], 0
  v_add_f32 v12, v12, v13
  v_add_f32 v44, v44, v45
  v_fmac_f32 v12, 0x3e800000, v44
  v_mfma_f32_16x16x32_bf16 v[28:31], v[{VX}:{VX+3}], v[16:19], v[28:31]
  v_mfma_f32_16x16x32_bf16 v[32:35], v[{VX+4}:{VX+7}], v[16:19], v[32:35]
  v_add_f32_dpp v12, v12, v12 row_ror:8 row_mask:0xf bank_mask:0xf
  v_mov_b32 v13, v12
  s_nop 1
  v_permlane16_swap_b32 v12, v13
  v_add_f32 v12, v12, v13
  v_mov_b32 v13, v12
  s_nop 1
  v_permlane32_swap_b32 v12, v13
  v_add_f32 v12, v12, v13
  v_rcp_f32 v12, v12
""")
        rdO()
        a("s_nop 1")
        for r in range(8): a(f"v_mul_f32 v{28+r}, v{28+r}, v12")
        cv(36,28,29); cv(37,30,31); cv(38,32,33); cv(39,34,35)
        a(f"s_mov_b64 exec, s[{sMASK8}:{sMASK8+1}]")
        a(f"ds_write_b64 v{vOw}, v[36:37] offset:{(4*w)*128}"); L.issue()
        a(f"ds_write_b64 v{vOw}, v[38:39] offset:{(4*w+2)*128}"); L.issue('ow')
        a("s_mov_b64 exec, -1")
        L.wait('ow'); a("s_barrier")
        self.stamp(a,3)
        a(f"ds_read_b128 v[48:51], v{vMB} offset:{LDS_O-LDS_M}"); L.issue('oa0')
        a(f"ds_read_b128 v[52:55], v{vMB} offset:{LDS_O-LDS_M+1024}"); L.issue('oa1')
        for r in range(36): a(f"v_mov_b32 v{12+r}, 0")
        L.wait('oa1')
        for (k,T) in oorder:
            f=self.frag[('o',k,T)]
            if f[0]=='reg': B=self.regstr(f[1])
            else:
                s_=oslot[(k,T)]; B=f"v[{s_}:{s_+7}]"; L.wait(('O',k,T))
            a(sm(12+4*T,48+4*k,B))
            if f[0]=='lds': rdO()
        self.stamp(a,4)
        L2=[]
        for j in range(2):
            i=ldsops[j]; mm,tt,kk=ops[i]
            rdfrag((mm,kk,tt),slot_of[i],('W',i))
        a("s_nop 3")
        def pack4(T0,c):
            A_,B_,C_,D_=[12+4*(T0+x) for x in range(4)]
            for r in range(4): a(f"v_permlane32_swap_b32 v{A_+r}, v{B_+r}")
            for r in range(4): a(f"v_permlane32_swap_b32 v{C_+r}, v{D_+r}")
            for r in range(4): a(f"v_add_f32 v{A_+r}, v{A_+r}, v{B_+r}")
            for r in range(4): a(f"v_add_f32 v{C_+r}, v{C_+r}, v{D_+r}")
            cv(c,A_,A_+1); cv(c+1,A_+2,A_+3); cv(c+2,C_,C_+1); cv(c+3,C_+2,C_+3)
            a("s_nop 1")
            a(f"v_permlane16_swap_b32 v{c}, v{c+2}\n v_permlane16_swap_b32 v{c+1}, v{c+3}")
        pack4(0,48)
        a(f"buffer_store_dwordx4 v[48:51], v{vPst}, s[{sPM}:{sPM+3}], s{sPst} offen {self.stflag}")
        pack4(4,52)
        a(f"buffer_store_dwordx4 v[52:55], v{vPst}, s[{sPM}:{sPM+3}], s{sPst2} offen {self.stflag}")
        a(f"""
  v_permlane32_swap_b32 v44, v46
  v_permlane32_swap_b32 v45, v47
  v_add_f32 v44, v44, v46
  v_add_f32 v45, v45, v47
  v_cvt_pk_bf16_f32 v44, v44, v45
  buffer_store_dword v44, v{vP8}, s[{sPM}:{sPM+3}], s{sPst} offen {self.stflag}
""")
        self.stamp(a,5)
        a(f"""
  s_add_u32 s{sXK}, s{sXK}, {32*16384}
  s_add_u32 s{sXV}, s{sXV}, {32*16384}
  s_add_u32 s{sKMo}, s{sKMo}, {32*8192}
  s_mov_b32 s{sCNT}, 400000
""")
        if self.fused:
            a(f"""
  s_add_u32 s{sFKV}, s{sFKV}, 128
  s_add_u32 s{sFKM}, s{sFKV}, {C.F_KM-C.F_KV-128}
""")
        if self.isjob(w):
            a(f"""
  s_cmp_eq_u32 s{sJOB}, 0
  s_cbranch_scc1 {lab}_nojob
  v_mov_b32 v56, v{vSel}
  v_mov_b32 v57, v{vSel+1}
  v_mov_b32 v58, v{vSel}
  v_mov_b32 v59, v{vSel+1}
  v_mov_b32 v60, -1
  v_mov_b32 v61, -1
  v_mov_b32 v62, -1
  v_mov_b32 v63, -1
  v_permlane16_swap_b32 v56, v58
  v_permlane16_swap_b32 v57, v59
""")
            for k in range(4):
                a(f"buffer_store_dwordx4 v[60:63], v{vPld}, s[{sPM}:{sPM+3}], s{sPr+k} offen {self.stflag}")
            a(nops(self.d1))
            a(f"{lab}_poll1:")
            for k in range(4):
                a(f"buffer_load_dwordx4 v[{12+4*k}:{12+4*k+3}], v{vPld}, s[{sPM}:{sPM+3}], s{sPl+k} offen sc1")
            a(f"""
  s_waitcnt vmcnt(3)
  v_mfma_f32_16x16x32_bf16 v[28:31], v[12:15], v[56:59], 0
  s_waitcnt vmcnt(2)
  v_mfma_f32_16x16x32_bf16 v[32:35], v[16:19], v[56:59], 0
  s_waitcnt vmcnt(1)
  v_mfma_f32_16x16x32_bf16 v[28:31], v[20:23], v[56:59], v[28:31]
  s_waitcnt vmcnt(0)
  v_mfma_f32_16x16x32_bf16 v[32:35], v[24:27], v[56:59], v[32:35]
  s_nop 7
  v_add_f32 v28, v28, v32
  v_add_f32 v29, v29, v33
  v_add_f32 v30, v30, v34
  v_add_f32 v31, v31, v35
  s_nop 1
  v_permlane32_swap_b32 v28, v30
  v_permlane32_swap_b32 v29, v31
  v_add_f32 v28, v28, v30
  v_add_f32 v29, v29, v31
  v_cmp_u_f32 vcc, v28, v29
  v_cvt_pk_bf16_f32 v28, v28, v29
  s_cbranch_vccz {lab}_got1
  s_add_u32 s{sR1}, s{sR1}, 1
  s_sub_u32 s{sCNT}, s{sCNT}, 1
  s_cmp_lg_u32 s{sCNT}, 0
  s_cbranch_scc1 {lab}_poll1
  s_branch {lab}_exit
{lab}_got1:
  s_mov_b64 exec, s[{sMASK8}:{sMASK8+1}]
  buffer_store_dword v60, v{vPub}, s[{sPM}:{sPM+3}], s{sMR} offen {self.stflag}
  buffer_store_dword v28, v{vPub}, s[{sPM}:{sPM+3}], s{sMP} offen {self.stflag}
""")
            if self.dbgM:
                a(f"""
  s_mul_i32 s74, s{sSTEP}, 9216
  s_add_u32 s74, s74, {DBG_OFF}
  buffer_store_dword v28, v{vPub}, s[{sWSR}:{sWSR+3}], s74 offen
""")
            a("s_mov_b64 exec, -1")
            self.stamp(a,6)
            a(nops(self.d2j))
            a(f"s_branch {lab}_p2\n{lab}_nojob:")
        self.stamp(a,6)
        a(nops(self.d2n))
        b=MA
        a(f"""
{lab}_p2:
  buffer_load_dwordx4 v[{b}:{b+3}], v{vL16}, s[{sPM}:{sPM+3}], s{sMg} offen sc1
  buffer_load_dwordx4 v[{b+4}:{b+7}], v{vL16}, s[{sPM}:{sPM+3}], s{sMg+1} offen sc1
  s_mov_b64 exec, 0xffff
  buffer_load_dwordx4 v[{b+8}:{b+11}], v{vL16}, s[{sPM}:{sPM+3}], s{sMg+2} offen sc1
  s_mov_b64 exec, -1
  {f'buffer_load_dword v26, off, s[{sWSR}:{sWSR+3}], s{sFKV} sc1' if self.fused else ''}
  s_waitcnt vmcnt(0)
  v_max_u32 v24, v{b}, v{b+1}
  v_max3_u32 v24, v24, v{b+2}, v{b+3}
  v_max3_u32 v24, v24, v{b+4}, v{b+5}
  v_max3_u32 v24, v24, v{b+6}, v{b+7}
  v_max3_u32 v25, v{b+8}, v{b+9}, v{b+10}
  v_max_u32 v25, v25, v{b+11}
  v_cmp_eq_u32 vcc, -1, v24
  v_cmp_eq_u32 s[74:75], -1, v25
  s_and_b64 s[74:75], s[74:75], 0xffff
  s_or_b64 vcc, vcc, s[74:75]
  {'v_cmp_eq_u32 s[74:75], 0, v26' if self.fused else ''}
  {'s_or_b64 vcc, vcc, s[74:75]' if self.fused else ''}
  s_cbranch_vccz {lab}_got2
  s_add_u32 s{sR2}, s{sR2}, 1
  s_sub_u32 s{sCNT}, s{sCNT}, 1
  s_cmp_lg_u32 s{sCNT}, 0
  s_cbranch_scc1 {lab}_p2
  s_branch {lab}_exit
{lab}_got2:
""")
        self.stamp(a,7)
        self.stamp_acc(a,8)
        a(f"""
  s_add_u32 s{sSTEP}, s{sSTEP}, 1
  s_xor_b32 s{sPS}, s{sPS}, {PSLOT}
  s_xor_b32 s{sMP}, s{sMP}, {(MREL+MSLOT)^MREL}
  s_waitcnt lgkmcnt(0)
  s_branch {lab}_top
""")
    def isjob(self,w): return w<3
    xld=''

def rec_role(a,R,xcc_sgpr,lab='.Lrec'):
    R.startup(a)
    R.scalars(a)
    R.local_barrier(a,xcc_sgpr,lab+'_lb')
    R.load_m0(a)
    if R.fused:
        if hasattr(R,'pre_wait'): R.pre_wait(a)
        else:
            C.wait_word(a,sDBG,C.D_INIT,vt=(24,25))
            a(f"v_mov_b32 v24, s{sFKV}")
            C.wait_words(a,24,1,base=sWS,vt=25)
    if R.timing:
        for k in range(8): a(f"s_mov_b32 s{20+k}, 0")
        a("s_memtime s[96:97]")
    for w in range(1,4):
        a(f"s_cmp_eq_u32 s{sW}, {w}\n s_cbranch_scc1 {lab}_w{w}")
    for w in range(4):
        a(f"{lab}_w{w}:")
        R.loop(a,w,f"{lab}_w{w}")
        a(f"{lab}_w{w}_exit:")
        if w<3: a(f"s_branch {lab}_done")
    a(f"{lab}_done:")
    if R.fused:
        a(f"""
  s_waitcnt vmcnt(0)
  s_barrier
  s_cmp_lg_u32 s{sW}, 3
  s_cbranch_scc1 {lab}_fin
  s_lshl_b32 s74, s{sH}, 2
  s_add_u32 s74, s74, {C.F_KM+63*128}
  v_mov_b32 v24, 1
  s_mov_b64 exec, 1
  buffer_store_dword v24, off, s[{sWSR}:{sWSR+3}], s74 sc1
  s_mov_b64 exec, -1
{lab}_fin:
""")
def rec_kernel(name,R,stats=True):
    a=Asm()
    a(f"""
  s_load_dwordx2 s[6:7], s[0:1], 88
  s_getreg_b32 s20, hwreg(HW_REG_XCC_ID, 0, 4)
  s_cmp_ge_u32 s2, 256
  s_cbranch_scc1 .L{name}_end
  s_waitcnt lgkmcnt(0)
  s_lshl_b32 s21, s20, 2
  v_mov_b32 v1, s21
  v_mov_b32 v2, 1
  v_cmp_eq_u32 vcc, 0, v0
  s_and_saveexec_b64 s[30:31], vcc
  global_atomic_add v3, v1, v2, s[6:7] sc0
  s_waitcnt vmcnt(0)
  ds_write_b32 v0, v3
  s_waitcnt lgkmcnt(0)
  s_mov_b64 exec, s[30:31]
  s_barrier
  v_mov_b32 v9, 0
  ds_read_b32 v3, v9
  s_waitcnt lgkmcnt(0)
  v_readfirstlane_b32 s{sH}, v3
  s_cmp_lg_u32 s20, 0
  s_cbranch_scc1 .L{name}_end
  s_cmp_ge_u32 s{sH}, 32
  s_cbranch_scc1 .L{name}_end
  s_mov_b32 s90, s20
  s_barrier
  s_memtime s[92:93]
  s_waitcnt lgkmcnt(0)
""")
    rec_role(a,R,90,'.L'+name)
    if stats:
        a(f"""
  s_memtime s[94:95]
  s_waitcnt lgkmcnt(0)
  s_sub_u32 s94, s94, s92
  s_lshl_b32 s74, s{sH}, 2
  s_add_u32 s74, s74, s{sW}
  s_lshl_b32 s74, s74, 4
  s_add_u32 s74, s74, {DBG_OFF+1024*1024}
  v_mov_b32 v12, s94
  v_mov_b32 v13, s{sSTEP}
  v_mov_b32 v14, s{sR1}
  v_mov_b32 v15, s{sR2}
  v_mov_b32 v16, s74
  s_mov_b64 exec, 1
  buffer_store_dwordx4 v[12:15], v16, s[{sWSR}:{sWSR+3}], 0 offen
  s_mov_b64 exec, -1
""")
        if R.timing:
            a(f"""
  s_sub_u32 s96, s96, s92
  s_lshl_b32 s74, s{sH}, 2
  s_add_u32 s74, s74, s{sW}
  s_lshl_b32 s74, s74, 5
  s_add_u32 s74, s74, {DBG_OFF+1024*1024+4096}
  v_mov_b32 v16, s74
  v_mov_b32 v12, s20
  v_mov_b32 v13, s21
  v_mov_b32 v14, s22
  v_mov_b32 v15, s23
  v_mov_b32 v20, s24
  v_mov_b32 v21, s25
  v_mov_b32 v22, s26
  v_mov_b32 v23, s96
  s_mov_b64 exec, 1
  buffer_store_dwordx4 v[12:15], v16, s[{sWSR}:{sWSR+3}], 0 offen
  buffer_store_dwordx4 v[20:23], v16, s[{sWSR}:{sWSR+3}], 0 offen offset:16
  s_mov_b64 exec, -1
""")
    a(f".L{name}_end:\n s_endpgm")
    return a
```

```python
import sys
sys.path.insert(0,'gen')
from asmlib import *
import rec, rec2, sched
from rec import *
from rec2 import *
import common as C
from sched import mk
LDSSET3=[('q',0),('q',1),('q',2),('q',3),('q',8),('o',1,0),('o',0,2),('o',1,2),('o',1,3)]
sC2=88
sTCH=58
sWK=56; sWQ=57
sNR=38
def R(b,n): return {('v',b+i) for i in range(n)}
class Rec3(Rec2):
    def __init__(self, lds_set=None, d1=0, d2j=100, d2n=700, show=False, defer_km=False, touch=True, xsc1=False, tsc1=True, **kw):
        super().__init__(lds_set or LDSSET3, d1=d1, d2j=d2j, d2n=d2n, **kw)
        self.show=show; self.touch=touch
        if xsc1: self.xld='sc1'
        self.tflag='sc1' if tsc1 else ''
    def consts(self,a):
        super().consts(a)
        a(f"""
  v_lshrrev_b32 v38, 1, v12
  v_lshlrev_b32 v38, 1, v38
  v_lshrrev_b32 v39, 3, v13
  v_add_u32 v38, v38, v39
  s_lshl_b32 s77, s{sW}, 2
  v_add_u32 v38, s77, v38
  v_lshlrev_b32 v38, 7, v38
  v_and_b32 v39, 7, v13
  v_lshlrev_b32 v39, 4, v39
  v_add_u32 v38, v38, v39
  v_and_b32 v39, 1, v12
  v_lshlrev_b32 v39, 3, v39
  v_add_u32 v{vPst}, v38, v39
""")
    def scalars(self,a):
        super().scalars(a)
        a(f"s_lshl_b32 s{sWK}, s{sW}, 10\n s_lshl_b32 s{sWQ}, s{sW}, 8\n s_add_u32 s{sWQ}, s{sWQ}, 8192")
        a(f"s_mov_b32 s{sC2}, s{sC}\n s_mov_b32 s{sC2+1}, s{sC}\n s_mov_b64 s[{sNR}:{sNR+1}], 0")
        if self.fused:
            a(f"s_add_u32 s{sFKV}, s{sFKV}, 256")
    def block(self,w):
        N=[]
        def n(t,tag=None,after=(),p=0): N.append(mk(t,tag,after,p))
        fr=self.frag
        idx=f"v{vIdx}"
        sm=lambda d,A,B: f"v_smfmac_f32_16x16x64_bf16 v[{d}:{d+3}], v[{A}:{A+3}], {B}, {idx}"
        cv=lambda d,x,y: n(f"v_cvt_pk_bf16_f32 v{d}, v{x}, v{y}")
        pka=lambda d,x: n(f"v_pk_add_f32 v[{d}:{d+1}], v[{d}:{d+1}], v[{x}:{x+1}]")
        A0,A1,A2=12,16,20
        ring=[24,28,20]
        Q0,Q1,K0,K1=32,36,40,44
        KX=48; WB=[56,64]; V0,V1=56,60; VX=64; F=vPld; ONE=vPub
        acc={('q',0):Q0,('q',1):Q1,('k',0):K0,('k',1):K1,('v',0):V0,('v',1):V1}
        own=[w,4+w]
        isL=lambda m,ks: fr[(m,ks,0)][0]=='lds'
        others=[k for k in range(9) if k not in own]
        Ls=[k for k in others if isL('q',k) or isL('k',k)]; Rs=[k for k in others if k not in Ls]
        Ls.sort(key=lambda k:(k!=8,k))
        rest=[]
        while Ls or Rs:
            if Ls: rest.append(Ls.pop(0))
            if Rs: rest.append(Rs.pop(0))
        self.rest=rest
        x=self.xld
        n(f"buffer_load_dwordx4 v[{KX}:{KX+3}], v{vL16}, s[{sWSR}:{sWSR+3}], s{sXK} offen {x}",p=200)
        n(f"buffer_load_dwordx4 v[{KX+4}:{KX+7}], v{vL16}, s[{sWSR}:{sWSR+3}], s{sXK} offen offset:1024 {x}")
        slot_q=[]
        ops=[]
        def kops(ks): return [('q',0,ks),('q',1,ks),('k',0,ks),('k',1,ks)]
        o0=own[0] if (isL('q',own[0]) or isL('k',own[0])) else own[1]
        o1=own[1] if o0==own[0] else own[0]
        for ks in [o0,o1]+rest: ops+=kops(ks)
        lops=[o for o in ops if fr[(o[0],o[2],o[1])][0]=='lds']
        self.pref=lops[:2]
        slot={o:WB[i%2] for i,o in enumerate(lops)}
        def rdW(key,s_,tagp=None):
            off=fr[key][1]
            n(f"ds_read_b128 v[{s_}:{s_+3}], v{vFR} offset:{off}")
            n(f"ds_read_b128 v[{s_+4}:{s_+7}], v{vFR} offset:{off+1024}")
        abuf={own[0]:A0,own[1]:A1}
        nxtL=2
        barred=False
        ri=0
        def rdA(ks,r,after):
            n(f"ds_read_b128 v[{r}:{r+3}], v{vMB} offset:{ks*1024}",after=after)
        for (m,t,ks) in ops:
            if ks not in abuf:
                if not barred:
                    n("s_barrier",tag='b1',after=['mw']); barred=True
                r=ring[ri%3]; ri+=1
                rdA(ks,r,['b1']); abuf[ks]=r
            f=fr[(m,ks,t)]
            B=self.regstr(f[1]) if f[0]=='reg' else f"v[{slot[(m,t,ks)]}:{slot[(m,t,ks)]+7}]"
            n(sm(acc[(m,t)],abuf[ks],B))
            if f[0]=='lds' and nxtL<len(lops):
                o=lops[nxtL]; rdW((o[0],o[2],o[1]),slot[o]); nxtL+=1
        inring={ks:abuf[ks] for ks in rest[-3:]}
        n(f"buffer_load_dwordx4 v[{VX}:{VX+3}], v{vL16}, s[{sWSR}:{sWSR+3}], s{sXV} offen {x}")
        n(f"buffer_load_dwordx4 v[{VX+4}:{VX+7}], v{vL16}, s[{sWSR}:{sWSR+3}], s{sXV} offen offset:1024 {x}")
        if self.fused and w==3:
            n(f"buffer_load_dword v{F}, off, s[{sWSR}:{sWSR+3}], s{sFKV} sc1")
            n(f"s_mov_b64 exec, 1\n buffer_store_dword v{ONE}, off, s[{sWSR}:{sWSR+3}], s{sFKM} sc1\n s_mov_b64 exec, -1",after=['b1'])
        for r in range(0,8,2): n(f"v_mov_b64 v[{V0+r}:{V0+r+1}], 0")
        tm=lambda d,A: n(f"v_mfma_f32_16x16x16_bf16 v[{d}:{d+3}], v[{A}:{A+1}], v[{vSel}:{vSel+1}], 0")
        for k,src in enumerate([Q0,Q1,K0,K1]):
            cv(12+2*k,src,src+1); cv(13+2*k,src+2,src+3)
        tm(32,12); tm(36,14); tm(40,16); tm(44,18)
        cv(12,32,33); cv(13,34,35); cv(14,36,37); cv(15,38,39)
        cv(16,40,41); cv(17,42,43); cv(18,44,45); cv(19,46,47)
        n(f"buffer_store_dwordx4 v[16:19], v{vL16}, s[{sWSR}:{sWSR+3}], s{sKMo} offen {self.kmflag}")
        n(f"v_mfma_f32_16x16x32_bf16 v[36:39], v[{KX}:{KX+3}], v[12:15], 0")
        n(f"v_mfma_f32_16x16x32_bf16 v[40:43], v[{KX+4}:{KX+7}], v[12:15], 0")
        n(f"v_mfma_f32_16x16x32_bf16 v[32:35], v[16:19], v[12:15], 0")
        for r in range(4): n(f"v_cndmask_b32 v{36+r}, v{40+r}, v{36+r}, s[{sMASK8}:{sMASK8+1}]")
        n(f"ds_write_b128 v{vMB}, v[36:39] offset:{LDS_SX-LDS_M+w*1024}",tag='sx')
        n(f"s_mov_b64 exec, 0x00ff00ff\n ds_write_b128 v{vSm}, v[32:35] offset:{w*256}\n s_mov_b64 exec, -1",tag='sw')
        n("s_barrier",tag='b2',after=['sx','sw','b1'])
        vorder=list(rest[-3:])+[k for k in [own[0],own[1]]+rest[:-3]]
        for ks in vorder:
            if ks in inring: r=inring[ks]
            else:
                r=ring[ri%3]; ri+=1
                rdA(ks,r,['b1'])
            for t in range(2):
                f=fr[('v',ks,t)]; assert f[0]=='reg'
                n(sm(acc[('v',t)],r,self.regstr(f[1])),p=-int(self.vprio))
        oth=[k for k in range(4) if k!=w]
        for k,r in zip(oth,(40,44,48)): n(f"ds_read_b128 v[{r}:{r+3}], v{vMB} offset:{LDS_SX-LDS_M+k*1024}",after=['b2'])
        for k,r in zip(oth,(52,72,12)): n(f"ds_read_b128 v[{r}:{r+3}], v{vSm} offset:{k*256}",after=['b2'])
        pka(36,40); pka(38,42); pka(44,48); pka(46,50); pka(36,44); pka(38,46)
        pka(32,52); pka(34,54); pka(72,12); pka(74,14); pka(32,72); pka(34,74)
        n("v_max3_f32 v72, v36, v37, v38"); n("v_max3_f32 v73, v39, v32, v33")
        n("v_max3_f32 v72, v72, v34, v35"); n("v_max_f32 v72, v72, v73")
        n("v_max_f32_dpp v72, v72, v72 row_ror:8 row_mask:0xf bank_mask:0xf")
        for sw in ('16','32'):
            n("v_mov_b32 v73, v72"); n(f"v_permlane{sw}_swap_b32 v72, v73"); n("v_max_f32 v72, v72, v73")
        n(f"v_mul_f32 v72, s{sC}, v72")
        for b in (36,38,32,34):
            n(f"v_pk_fma_f32 v[{b}:{b+1}], v[{b}:{b+1}], s[{sC2}:{sC2+1}], v[72:73] op_sel_hi:[1,1,0] neg_lo:[0,0,1] neg_hi:[0,0,1]")
        for r in (36,37,38,39,32,33,34,35): n(f"v_exp_f32 v{r}, v{r}")
        cv(40,36,37); cv(41,38,39); cv(44,32,33); cv(45,34,35)
        n("v_mov_b32_dpp v42, v40 row_ror:8 row_mask:0xf bank_mask:0xf")
        n("v_mov_b32_dpp v43, v41 row_ror:8 row_mask:0xf bank_mask:0xf")
        n("v_pk_add_f32 v[74:75], v[36:37], v[38:39]"); n("v_add_f32 v73, v74, v75")
        n("v_pk_add_f32 v[74:75], v[32:33], v[34:35]"); n("v_add_f32 v74, v74, v75")
        n("v_fmac_f32 v73, 0x3e800000, v74")
        n("v_add_f32_dpp v73, v73, v73 row_ror:8 row_mask:0xf bank_mask:0xf")
        for sw in ('16','32'):
            n("v_mov_b32 v74, v73"); n(f"v_permlane{sw}_swap_b32 v73, v74"); n("v_add_f32 v73, v73, v74")
        n("v_rcp_f32 v72, v73")
        cv(48,V0,V0+1); cv(49,V0+2,V0+3); cv(50,V1,V1+1); cv(51,V1+2,V1+3)
        n(f"buffer_store_dwordx4 v[48:51], v{vL16}, s[{sWSR}:{sWSR+3}], s{sKMo} offen offset:1024 {self.kmflag}")
        n(f"v_mfma_f32_16x16x32_bf16 v[52:55], v[{VX}:{VX+3}], v[40:43], 0")
        n(f"v_mfma_f32_16x16x32_bf16 v[12:15], v[{VX+4}:{VX+7}], v[40:43], 0")
        n(f"v_mfma_f32_16x16x16_bf16 v[52:55], v[48:49], v[44:45], v[52:55]")
        n(f"v_mfma_f32_16x16x16_bf16 v[12:15], v[50:51], v[44:45], v[12:15]")
        for b in (52,54,12,14): n(f"v_pk_mul_f32 v[{b}:{b+1}], v[{b}:{b+1}], v[72:73] op_sel_hi:[1,0]")
        cv(44,52,53); cv(45,54,55); cv(46,12,13); cv(47,14,15)
        n(f"s_mov_b64 exec, s[{sMASK8}:{sMASK8+1}]\n ds_write_b64 v{vOw}, v[44:45] offset:{(4*w)*128}\n ds_write_b64 v{vOw}, v[46:47] offset:{(4*w+2)*128}\n s_mov_b64 exec, -1",tag='ow')
        n("s_barrier",tag='b3',after=['ow','b2'])
        n(f"ds_read_b128 v[48:51], v{vMB} offset:{LDS_O-LDS_M}",after=['b3'])
        n(f"ds_read_b128 v[52:55], v{vMB} offset:{LDS_O-LDS_M+1024}",after=['b3'])
        if self.fused and w==3:
            n(f"v_cmp_eq_u32 s[{sNR}:{sNR+1}], 0, v{F}",after=['b3'])
        oorder=[(k,T) for p in range(4) for k in range(2) for T in (2*p,2*p+1)]+[(0,8),(1,8)]
        if self.t8first: oorder=oorder[-2:]+oorder[:-2]
        olds=[kt for kt in oorder if fr[('o',kt[0],kt[1])][0]=='lds']
        oslots=[56,64,72]
        oslot={kt:oslots[j%3] for j,kt in enumerate(olds)}
        if self.touch:
            n(f"v_lshlrev_b32 v47, 2, v{vL16}"); n("v_and_b32 v47, 0x7c0, v47"); n(f"v_lshrrev_b32 v46, 9, v{vL16}"); n("v_lshl_or_b32 v47, v46, 13, v47")
            n(f"buffer_load_dword v47, s[{sWSR}:{sWSR+3}], s{sTCH} offen {self.tflag} lds",after=['b3'])
        for r in range(12,48,2): n(f"v_mov_b64 v[{r}:{r+1}], 0")
        for kt in olds[:3]: rdW(('o',kt[0],kt[1]),oslot[kt])
        onxt=3
        done=set()
        def pack_pair(p):
            A_=12+8*p; B_=A_+4
            for r in range(4): n(f"v_permlane32_swap_b32 v{A_+r}, v{B_+r}")
            pka(A_,B_); pka(A_+2,B_+2)
            cv(B_,A_,A_+1); cv(B_+1,A_+2,A_+3)
            so=sPst if p<2 else sPst2
            n(f"buffer_store_dwordx2 v[{B_}:{B_+1}], v{vPst}, s[{sPM}:{sPM+3}], s{so} offen offset:{(p&1)*2048} {self.stflag}")
        def pack8():
            n("v_permlane32_swap_b32 v44, v46"); n("v_permlane32_swap_b32 v45, v47")
            pka(44,46); cv(44,44,45)
            n(f"buffer_store_dword v44, v{vP8}, s[{sPM}:{sPM+3}], s{sPst} offen {self.stflag}")
        for (k,T) in oorder:
            f=fr[('o',k,T)]
            B=self.regstr(f[1]) if f[0]=='reg' else f"v[{oslot[(k,T)]}:{oslot[(k,T)]+7}]"
            n(sm(12+4*T,48+4*k,B))
            if f[0]=='lds' and onxt<len(olds):
                kt=olds[onxt]; onxt+=1; rdW(('o',kt[0],kt[1]),oslot[kt])
            done.add((k,T))
            if T==8 and k==1: pack8()
            if T&1 and k==1 and T<8: pack_pair(T//2)
        return N
    vprio=0; t8first=False; tflag='sc1'
    def pref_frags(self,a,w):
        fr=self.frag
        for i,o in enumerate(self.pref):
            off=fr[(o[0],o[2],o[1])][1]; s_=[56,64][i]
            a(f"ds_read_b128 v[{s_}:{s_+3}], v{vFR} offset:{off}")
            a(f"ds_read_b128 v[{s_+4}:{s_+7}], v{vFR} offset:{off+1024}")
    def idle_common(self,a,w):
        self.pref_frags(a,w)
        for r in range(32,48,2): a(f"v_mov_b64 v[{r}:{r+1}], 0")
    def adv(self,a):
        a(f"""
  s_add_u32 s{sXK}, s{sXK}, {32*16384}
  s_add_u32 s{sXV}, s{sXV}, {32*16384}
  s_add_u32 s{sKMo}, s{sKMo}, {32*8192}
  s_mov_b32 s{sCNT}, 400000
  s_add_u32 s{sTCH}, s{sXK}, {32*16384}
  s_cmp_ge_u32 s{sSTEP}, 62
  s_cselect_b32 s{sTCH}, {C.NULLOFF}, s{sTCH}
""")
        if self.fused:
            a(f"""
  s_lshl_b32 s74, s{sSTEP}, 7
  s_lshl_b32 s75, s{sH}, 2
  s_add_u32 s74, s74, s75
  s_add_u32 s{sFKM}, s74, {C.F_KM}
  s_min_u32 s75, s{sSTEP}, 60
  s_lshl_b32 s75, s75, 7
  s_lshl_b32 s74, s{sH}, 2
  s_add_u32 s74, s74, s75
  s_add_u32 s{sFKV}, s74, {C.F_KV+3*128}
""")
    def loop(self,a,w,lab):
        N=self.block(w)
        avail={}
        for r in R(12,12): avail[r]=0
        avail['b1']=70
        order,t=sched.schedule(N,avail=avail)
        print(f'wave {w}: predicted block cycles {t}, rest {self.rest}')
        self.step_scalars(a)
        a(f"s_add_u32 s{sTCH}, s{sXK}, {32*16384}\n s_mov_b32 m0, {LDS_SX+w*1024}")
        self.idle_common(a,w)
        if w==3: a(f"v_mov_b32 v{vPub}, 1")
        a(f"v_and_b32 v25, 0xf0, v{vL16}\n s_mov_b32 s{sCNT}, 400000\n s_waitcnt lgkmcnt(0)\n s_branch {lab}_have")
        b=12
        a(f"""
{lab}_retry:
  s_add_u32 s{sR2}, s{sR2}, 1
  s_sub_u32 s{sCNT}, s{sCNT}, 1
  s_cmp_eq_u32 s{sCNT}, 0
  s_cbranch_scc1 {lab}_exit
{lab}_gather:
  buffer_load_dwordx4 v[{b}:{b+3}], v{vL16}, s[{sPM}:{sPM+3}], s{sMg} offen sc1
  buffer_load_dwordx4 v[{b+4}:{b+7}], v{vL16}, s[{sPM}:{sPM+3}], s{sMg+1} offen sc1
  buffer_load_dwordx4 v[{b+8}:{b+11}], v25, s[{sPM}:{sPM+3}], s{sMg+2} offen sc1
  s_waitcnt vmcnt(0)
{lab}_have:
  ds_write_b128 v{vMB}, v[12:15] offset:{w*1024}
  ds_write_b128 v{vMB}, v[16:19] offset:{(4+w)*1024}
  s_mov_b64 exec, 0xffff
  ds_write_b128 v{vMB}, v[20:23] offset:{8192+w*256}
  s_mov_b64 exec, -1
  v_max3_u32 v24, v12, v13, v14
  v_max3_u32 v26, v15, v16, v17
  v_max3_u32 v24, v24, v18, v19
  v_max3_u32 v26, v26, v20, v21
  v_max3_u32 v24, v24, v22, v23
  v_max_u32 v24, v24, v26
  v_cmp_eq_u32 vcc, -1, v24
  s_cbranch_vccnz {lab}_retry
""")
        self.stamp(a,0)
        if self.timing: a("s_waitcnt lgkmcnt(0)")
        hooks={}
        if self.timing:
            for k,tg in enumerate(['b1','sw','b2','b3']): hooks[tg]=f"s_memtime s[{6+2*k}:{7+2*k}]"
        sched.emit(a,order,ds_init=[R(56,4),R(60,4),R(64,4),R(68,4),set(),set(),(set(),'mw')],show_t=self.show,hooks=hooks)
        self.stamp(a,5)
        a(f"s_cmp_eq_u32 s{sSTEP}, {self.steps-1}\n s_cbranch_scc1 {lab}_exit")
        if self.fused and w==3:
            a(f"""
  s_cmp_eq_u64 s[{sNR}:{sNR+1}], 0
  s_cbranch_scc1 {lab}_fok
  s_mov_b32 s75, 4000000
{lab}_fpoll:
  buffer_load_dword v24, off, s[{sWSR}:{sWSR+3}], s{sFKV} sc1
  s_waitcnt vmcnt(0)
  v_readfirstlane_b32 s74, v24
  s_sub_u32 s75, s75, 1
  s_cmp_eq_u32 s75, 0
  s_cbranch_scc1 {lab}_fok
  s_cmp_eq_u32 s74, 0
  s_cbranch_scc1 {lab}_fpoll
{lab}_fok:
""")
        self.adv(a)
        self.idle_common(a,w)
        a(f"v_and_b32 v25, 0xf0, v{vL16}")
        if self.isjob(w):
            a(f"""
  s_cmp_eq_u32 s{sJOB}, 0
  s_cbranch_scc1 {lab}_nojob
  v_mov_b32 v28, v{vSel}
  v_mov_b32 v29, v{vSel+1}
  v_mov_b32 v30, v{vSel}
  v_mov_b32 v31, v{vSel+1}
  v_mov_b64 v[72:73], -1
  v_mov_b64 v[74:75], -1
  v_permlane16_swap_b32 v28, v30
  v_permlane16_swap_b32 v29, v31
""")
            if self.d1: a(nops(self.d1))
            a(f"{lab}_poll1:")
            for k in range(4):
                a(f"buffer_load_dwordx4 v[{12+4*k}:{12+4*k+3}], v{vPld}, s[{sPM}:{sPM+3}], s{sPl+k} offen sc1")
            a(f"""
  s_waitcnt vmcnt(3)
  v_mfma_f32_16x16x32_bf16 v[48:51], v[12:15], v[28:31], 0
  s_waitcnt vmcnt(2)
  v_mfma_f32_16x16x32_bf16 v[52:55], v[16:19], v[28:31], 0
  s_waitcnt vmcnt(1)
  v_mfma_f32_16x16x32_bf16 v[48:51], v[20:23], v[28:31], v[48:51]
  s_waitcnt vmcnt(0)
  v_mfma_f32_16x16x32_bf16 v[52:55], v[24:27], v[28:31], v[52:55]
  v_pk_add_f32 v[48:49], v[48:49], v[52:53]
  v_pk_add_f32 v[50:51], v[50:51], v[54:55]
  v_permlane32_swap_b32 v48, v50
  v_permlane32_swap_b32 v49, v51
  v_pk_add_f32 v[48:49], v[48:49], v[50:51]
  v_cmp_u_f32 vcc, v48, v49
  v_cvt_pk_bf16_f32 v48, v48, v49
  s_cbranch_vccnz {lab}_again1
  s_mov_b64 exec, s[{sMASK8}:{sMASK8+1}]
  buffer_store_dword v48, v{vPub}, s[{sPM}:{sPM+3}], s{sMP} offen {self.stflag}
  buffer_store_dword v72, v{vPub}, s[{sPM}:{sPM+3}], s{sMR} offen {self.stflag}
""")
            if self.dbgM:
                a(f"""
  s_mul_i32 s74, s{sSTEP}, 9216
  s_add_u32 s74, s74, {DBG_OFF}
  buffer_store_dword v48, v{vPub}, s[{sWSR}:{sWSR+3}], s74 offen
""")
            a("s_mov_b64 exec, -1")
            for k in range(4):
                a(f"buffer_store_dwordx4 v[72:75], v{vPld}, s[{sPM}:{sPM+3}], s{sPl+k} offen {self.stflag}")
            a(f"v_and_b32 v25, 0xf0, v{vL16}")
            self.stamp(a,6)
            self.next_scalars(a)
            if self.d2j: a(nops(self.d2j))
            self.stamp(a,7); self.stamp_acc(a,8)
            a(f"s_branch {lab}_gather")
            a(f"""
{lab}_again1:
  s_add_u32 s{sR1}, s{sR1}, 1
  s_sub_u32 s{sCNT}, s{sCNT}, 1
  s_cmp_lg_u32 s{sCNT}, 0
  s_cbranch_scc1 {lab}_poll1
  s_branch {lab}_exit
{lab}_nojob:
""")
        self.stamp(a,6)
        self.next_scalars(a)
        if self.d2n: a(nops(self.d2n))
        self.stamp(a,7); self.stamp_acc(a,8)
        a(f"s_branch {lab}_gather")
    def next_scalars(self,a):
        a(f"""
  s_add_u32 s{sSTEP}, s{sSTEP}, 1
  s_xor_b32 s{sPS}, s{sPS}, {PSLOT}
  s_xor_b32 s{sMP}, s{sMP}, {(MREL+MSLOT)^MREL}
""")
        self.step_scalars(a)
    def step_scalars(self,a):
        a(f"""
  s_add_u32 s{sPst}, s{sPS}, s{sHP}
  s_add_u32 s{sPst2}, s{sPst}, 4096
  s_xor_b32 s{sMR}, s{sMP}, {(MREL+MSLOT)^MREL}
  s_add_u32 s{sMg}, s{sMR}, {'W1024'}
  s_add_u32 s{sMg+1}, s{sMg}, 4096
  s_add_u32 s{sMg+2}, s{sMR}, {'W256'}
""".replace('W1024',f's{sWK}').replace('W256',f's{sWQ}'))
        for i in range(4):
            a(f"s_add_u32 s{sPl+i}, s{sPS}, {i*73728}")
    def pre_wait(self,a):
        C.wait_word(a,sDBG,C.D_INIT,vt=(24,25))
        a(f"v_lshlrev_b32 v24, 3, v{vL16}\n v_add_u32 v24, s{sFKV}, v24\n v_subrev_u32 v24, 256, v24")
        C.wait_words(a,24,3,base=sWS,vt=25)
```

```python
import hazard
MFI=8; PKI=4
class Node:
    __slots__=('text','lines','kind','dst','src','idx','preds','succs','prio','t','issue','tag','after','ldsbytes','ins','vm','pin','srcAB','srcC','passes','trans','perm','dpp','dsdst','vmdst','nds','nvm','isbar','needds','needvm')
def mk(text,tag=None,after=(),prio_add=0):
    n=Node(); n.text=text; n.lines=[l.strip() for l in text.split('\n') if l.strip()]
    n.ins=[i for i in (hazard.parse(l) for l in n.lines) if i]
    n.dst=set(); n.src=set(); n.kind='other'; n.issue=0; n.tag=tag; n.after=list(after)
    n.srcAB=set(); n.srcC=set(); n.passes=0; n.trans=False; n.perm=False; n.dpp=False
    n.dsdst=set(); n.vmdst=set(); n.nds=0; n.nvm=0; n.isbar=False; n.ldsbytes=0; n.pin=prio_add
    n.needds=[]; n.needvm=[]
    for i in n.ins:
        d={r for r in i.dst if r!=('s','exec')}; s={r for r in i.src if r!=('s','exec')}
        n.dst|=d; n.src|=s
        c=4
        if i.kind=='mfma':
            n.kind='mfma'; n.passes=i.passes; n.srcAB|=i.srcAB; n.srcC|=i.srcC; c=MFI
        elif i.kind=='valu':
            if n.kind=='other' or n.kind=='salu': n.kind='valu'
            if getattr(i,'trans',False): n.trans=True; c=8
            if getattr(i,'perm',False): n.perm=True
            if i.dpp: n.dpp=True
            if i.op.startswith('v_pk_'): c=PKI
        elif i.kind=='ds':
            n.kind='ds'; n.nds+=1
            if i.op.startswith('ds_read'): n.dsdst|=i.dst
            n.ldsbytes+= 1024 if 'b128' in i.op else 512
            if i.op.startswith('ds_write'): c=12 if 'b128' in i.op else 8
        elif i.kind=='vmem':
            n.kind='vmem'; n.nvm+=1; c=8
            if i.dst: n.vmdst|=i.dst
        elif i.op=='s_barrier': n.kind='bar'; n.isbar=True
        elif i.kind=='nop': c=4*i.w
        elif i.kind=='salu':
            if n.kind=='other': n.kind='salu'
        n.issue+=c
    return n
DSLAT=120; VMLAT=500; BARLAT=40; WBAR=70
def lat_raw(p,c,regs):
    if regs & p.dsdst: return DSLAT
    if regs & p.vmdst: return VMLAT
    if p.kind=='mfma':
        base=4*p.passes
        if c.kind=='mfma' and (regs<=c.srcC) and not (regs & c.srcAB): return base
        return base+ 20
    if p.kind=='valu':
        d=p.issue
        if c.kind=='mfma' or c.perm or c.dpp: d+=8
        if p.trans: d+=4
        if any(r[0]=='s' for r in regs): d+=8 if c.kind=='valu' else (20 if c.kind=='vmem' else 0)
        return d
    return p.issue
def schedule(nodes, verbose=False, ldsrate=16, avail=None):
    N=len(nodes)
    for i,n in enumerate(nodes): n.idx=i; n.preds=[]; n.succs=[]
    tags={n.tag:n for n in nodes if n.tag is not None}
    def edge(p,c,d):
        c.preds.append((p,d)); p.succs.append((c,d))
    lastw={}; readers={}
    lastbar=None
    vmorder=None
    for c in nodes:
        for r in c.src:
            if r in lastw:
                p=lastw[r]; edge(p,c,lat_raw(p,c,{r}|((p.dst&c.src))))
        for r in c.dst:
            if r in lastw:
                p=lastw[r]
                if not (r in c.src): edge(p,c,lat_raw(p,c,{r}) if (p.kind=='mfma' or r in p.dsdst or r in p.vmdst) else p.issue)
            for p in readers.get(r,[]):
                if p is c: continue
                d=p.issue
                if p.kind=='mfma' and c.kind=='valu': d=16 if r in p.srcC else 8
                if p.kind=='vmem' and c.kind=='valu': d=p.issue+8
                edge(p,c,d)
        for r in c.src: readers.setdefault(r,[]).append(c)
        for r in c.dst: lastw[r]=c; readers[r]=[x for x in readers.get(r,[]) if x is c]
        for t in c.after:
            if t not in tags: continue
            p=tags[t]
            d=p.issue
            if c.isbar and p.kind=='ds': d=WBAR
            if p.isbar: d=BARLAT
            edge(p,c,d)
        if c.isbar:
            if lastbar: edge(lastbar,c,40)
            lastbar=c
        if c.kind=='vmem':
            if vmorder: edge(vmorder,c,vmorder.issue)
            vmorder=c
    for n in reversed(nodes):
        n.prio=n.issue+n.pin
        for c,d in n.succs: n.prio=max(n.prio,d+c.prio+n.pin)
    done=set(); order=[]; t=0; pipe=0; dsfree=0
    npred={n.idx:len(n.preds) for n in nodes}
    earliest={n.idx:0 for n in nodes}
    if avail:
        seenw=set()
        for n in nodes:
            for r in n.src:
                if r in avail and r not in seenw: earliest[n.idx]=max(earliest[n.idx],avail[r])
            if n.tag in avail: earliest[n.idx]=max(earliest[n.idx],avail[n.tag])
            seenw|=n.dst
    ready=[n for n in nodes if npred[n.idx]==0]
    while len(order)<N:
        cand=[n for n in ready if earliest[n.idx]<=t and not (n.kind=='mfma' and pipe>t)]
        if not cand:
            nxt=min(max(earliest[n.idx], pipe if n.kind=='mfma' else 0) for n in ready)
            t=max(t+1,nxt); continue
        n=max(cand,key=lambda x:(x.prio,-x.idx))
        n.t=t; order.append(n); ready.remove(n)
        extra=0
        if n.kind=='mfma': pipe=t+4*n.passes
        if n.kind=='ds':
            st=max(t,dsfree); dsfree=st+ldsrate*n.ldsbytes//1024; extra=st-t
        for c,d in n.succs:
            dd=d+(extra if d>=DSLAT else 0)
            earliest[c.idx]=max(earliest[c.idx],t+dd)
            npred[c.idx]-=1
            if npred[c.idx]==0: ready.append(c)
        t+=n.issue if not n.isbar else 40
    return order,t
def emit(a,order,ds_init=None,vm_init=None, show_t=False, hooks=None):
    dsq=[]
    vmq=[]
    tagpos={}
    for r in (ds_init or []):
        if isinstance(r,tuple): dsq.append((None,set(r[0]))); tagpos[r[1]]=('ds',len(dsq)-1)
        else: dsq.append((None,set(r)))
    for r in (vm_init or []): vmq.append((None,set(r)))
    dsdone=0; vmdone=0
    for n in order:
        use=(n.src|n.dst)
        need=-1
        for k in range(len(dsq)-1,dsdone-1,-1):
            if dsq[k][1] & use: need=k; break
        if n.isbar:
            for t in n.after:
                if t in tagpos and tagpos[t][0]=='ds': need=max(need,tagpos[t][1])
        if need>=dsdone:
            cnt=min(len(dsq)-1-need,15)
            a(f"s_waitcnt lgkmcnt({cnt})"); dsdone=len(dsq)-cnt
        need=-1
        for k in range(len(vmq)-1,vmdone-1,-1):
            if vmq[k][1] & use: need=k; break
        if need>=vmdone:
            cnt=min(len(vmq)-1-need,63)
            a(f"s_waitcnt vmcnt({cnt})"); vmdone=len(vmq)-cnt
        if show_t: a.c(f"t={n.t}")
        a(n.text)
        if hooks and n.tag in hooks: a(hooks[n.tag])
        for i in n.ins:
            if i.kind=='ds':
                dsq.append((n,set(i.dst) if i.op.startswith('ds_read') else set()))
            elif i.kind=='vmem':
                vmq.append((n,set(i.dst)))
        if n.tag is not None:
            if n.kind=='ds': tagpos[n.tag]=('ds',len(dsq)-1)
    return len(dsq)-dsdone, len(vmq)-vmdone
```

```python
import sys
sys.path.insert(0,'gen')
from common import *
import common as C
import k_r1, r1, r3, r4, r5, rec, rec2, rec3, rec5, hazard
LDSSET=[('q',5),('q',6),('q',7),('q',8),('k',8),('o',0,0),('o',1,0),('o',0,2),('o',1,2)]
NB=96
def prologue(a,name,fake_xcc=None):
    load_ptrs(a)
    a(f"""
  s_cmp_ge_u32 s2, 256
  s_cbranch_scc1 .L{name}_end
  s_getreg_b32 s30, hwreg(HW_REG_XCC_ID, 0, 4)
""")
    if fake_xcc: fake_xcc(a)
    a(f"""
  s_cmp_lg_u32 s{sW}, 0
  s_cbranch_scc1 .L{name}_bar
  s_mov_b64 exec, 1
  s_lshl_b32 s31, s30, 2
  v_mov_b32 v2, s31
  v_mov_b32 v3, 1
  global_atomic_add v4, v2, v3, s[{sDBG}:{sDBG+1}] sc0
  s_waitcnt vmcnt(0)
  v_readfirstlane_b32 s31, v4         ; ticket
  s_add_u32 s32, s30, 1               ; xcc+1
  v_mov_b32 v2, {D_HOME}
  s_cmp_lg_u32 s31, 31
  s_cbranch_scc1 .L{name}_nocas
  v_mov_b32 v6, s32
  v_mov_b32 v7, 0
  global_atomic_cmpswap v2, v[6:7], s[{sDBG}:{sDBG+1}]
.L{name}_nocas:
  s_cmp_ge_u32 s31, 32
  s_cbranch_scc1 .L{name}_shadow
  s_mov_b32 s33, 4000000
.L{name}_hp:
  global_load_dword v5, v2, s[{sDBG}:{sDBG+1}] sc1
  s_waitcnt vmcnt(0)
  v_readfirstlane_b32 s34, v5
  s_cmp_lg_u32 s34, 0
  s_cbranch_scc1 .L{name}_hd
  s_sub_u32 s33, s33, 1
  s_cmp_lg_u32 s33, 0
  s_cbranch_scc1 .L{name}_hp
.L{name}_hd:
  s_cmp_lg_u32 s34, s32
  s_cbranch_scc1 .L{name}_shadow
  s_add_u32 s31, s31, 224
  v_mov_b32 v4, s31
  s_branch .L{name}_wr
.L{name}_shadow:
  v_mov_b32 v2, {D_RANK}
  global_atomic_add v4, v2, v3, s[{sDBG}:{sDBG+1}] sc0
  s_waitcnt vmcnt(0)
.L{name}_wr:
  v_mov_b32 v2, 0
  ds_write_b32 v2, v4
  s_waitcnt lgkmcnt(0)
  s_mov_b64 exec, -1
.L{name}_bar:
  s_barrier
  v_mov_b32 v2, 0
  ds_read_b32 v4, v2
  s_waitcnt lgkmcnt(0)
  v_readfirstlane_b32 s{sRANK}, v4
  s_barrier
""")
def flag1(a,base_srd,off_sreg):
    l=a.newlabel('f1')
    a(f"""
  s_cmp_lg_u32 s{sW}, 0
  s_cbranch_scc1 {l}
  v_mov_b32 v250, 1
  s_mov_b64 exec, 1
  buffer_store_dword v250, off, s[{base_srd}:{base_srd+3}], s{off_sreg} sc1
  s_mov_b64 exec, -1
{l}:
""")
def wait_phase(a,base,n):
    l=a.newlabel('wp')
    a(f"""
  s_cmp_lg_u32 s{sW}, 0
  s_cbranch_scc1 {l}
  v_lshlrev_b32 v248, 2, v{vLANE}
  v_add_u32 v248, {base}, v248
""")
    wait_words(a,248,(1<<min(n,64))-1,sleep=4)
    if n>64:
        a("v_add_u32 v248, 256, v248")
        wait_words(a,248,(1<<(n-64))-1,sleep=4)
    a(f"""
  buffer_inv sc1
  s_waitcnt vmcnt(0)
{l}:
  s_barrier
""")
def fused_kernel(name,ts=False,R=None,fake_xcc=None,NKV=3,NQ=6,NREP=3,NXA=32,NAO=16):
    a=Asm()
    L='.L'+name
    prologue(a,name,fake_xcc)
    st=lambda k,**kw: stamp(a,k,on=ts,**kw)
    st(0)
    a(f"s_cmp_ge_u32 s{sRANK}, 224\n s_cbranch_scc1 {L}_rec")
    winit=lambda a: wait_word(a,sDBG,D_INIT)
    a(f"""
  s_cmp_lg_u32 s{sRANK}, 0
  s_cbranch_scc1 {L}_noinit
  v_lshlrev_b32 v2, 4, v0
  v_add_u32 v2, {FL_OFF}, v2
  v_mov_b32 v4, 0
  v_mov_b32 v5, 0
  v_mov_b32 v6, 0
  v_mov_b32 v7, 0
""")
    for i in range(FL_BYTES//4096):
        a(f"global_store_dwordx4 v2, v[4:7], s[{sWS}:{sWS+1}] sc1\n v_add_u32 v2, 4096, v2")
    a(f"""
  s_waitcnt vmcnt(0)
  s_barrier
  s_cmp_lg_u32 s{sW}, 0
  s_cbranch_scc1 {L}_noinit
  v_mov_b32 v2, {D_INIT}
  v_mov_b32 v4, 1
  s_mov_b64 exec, 1
  global_store_dword v2, v4, s[{sDBG}:{sDBG+1}] sc1
  s_mov_b64 exec, -1
{L}_noinit:
  s_cmp_ge_u32 s{sRANK}, {NB}
  s_cbranch_scc1 {L}_A
""")
    assert 32*NKV<=NB and 16*NQ<=NB and 18*NREP+NXA<=NB
    a(f"s_mov_b32 s{sTASK}, s{sRANK}\n s_cmp_ge_u32 s{sTASK}, {32*NKV}\n s_cbranch_scc1 {L}_kvx")
    k_r1.r1_task(a,'kv',L+'kv',stflag='sc1',NTG=NKV,flags=True,after_w=winit)
    a(f"{L}_kvx:"); st(1)
    a(f"s_mov_b32 s{sTASK}, s{sRANK}\n s_cmp_ge_u32 s{sTASK}, {16*NQ}\n s_cbranch_scc1 {L}_qx")
    k_r1.r1_task(a,'qq',L+'qq',stflag='sc1',NTG=NQ,flags=True,after_w=winit)
    a(f"{L}_qx:"); st(2)
    a(f"s_cmp_ge_u32 s{sRANK}, {18*NREP}\n s_cbranch_scc1 {L}_xa")
    a(f"s_mov_b32 s{sTASK}, s{sRANK}")
    winit(a)
    r5.r5_role(a,L+'bo',sTASK,nrep=NREP)
    st(3)
    a(f"s_branch {L}_end\n{L}_xa:")
    a(f"s_cmp_ge_u32 s{sRANK}, {18*NREP+NXA}\n s_cbranch_scc1 {L}_end")
    a(f"s_sub_u32 s{sTASK}, s{sRANK}, {18*NREP}")
    winit(a)
    r4.r4_role(a,L+'xat',sTASK,nwaves=4*NXA)
    st(3)
    a(f"s_branch {L}_end")
    a(f"{L}_A:\n s_sub_u32 s91, s{sRANK}, {NB}")
    a(f"s_cmp_ge_u32 s91, 64\n s_cbranch_scc1 {L}_avv\n s_mov_b32 s{sTASK}, s91")
    k_r1.r1_task(a,'aqk',L+'aqk',stflag='sc1',NTG=8,after_w=winit)
    a(f"s_branch {L}_apf\n{L}_avv:")
    a(f"s_cmp_ge_u32 s91, 96\n s_cbranch_scc1 {L}_apx\n s_sub_u32 s{sTASK}, s91, 64")
    k_r1.r1_task(a,'avv',L+'avv',stflag='sc1',NTG=8,after_w=winit)
    a(f"{L}_apf:\n s_lshl_b32 s60, s91, 2\n s_add_u32 s60, s60, {F_AP}")
    flag1(a,44,60)
    a(f"s_branch {L}_apw\n{L}_apx:")
    winit(a)
    a(f"{L}_apw:"); st(1)
    wait_phase(a,F_AP,96); st(2)
    a(f"s_mov_b32 s{sTASK}, s91")
    r3.r3_task(a,L+'att',stflag='sc1',nq=2,qstep=4)
    a(f"s_lshl_b32 s60, s91, 2\n s_add_u32 s60, s60, {F_AT}")
    flag1(a,32,60); st(3)
    a(f"s_cmp_ge_u32 s91, {3*NAO}\n s_cbranch_scc1 {L}_end\n s_mov_b32 s{sTASK}, s91")
    wait_phase(a,F_AT,128); st(4)
    k_r1.r1_task(a,'aout',L+'aout',NTG=NAO)
    st(5)
    a(f"s_branch {L}_end")
    a(f"{L}_rec:\n s_sub_u32 s{rec.sH}, s{sRANK}, 224\n s_mov_b32 s99, s{sRANK}")
    R=R or rec2.Rec2(LDSSET,fused=True)
    rec2.rec_role(a,R,30,L+'rec')
    if ts:
        stamp(a,1,slot=99,base=rec.sWS,w=rec.sW)
        a(f"""
  s_cmp_lg_u32 s{rec.sW}, 0
  s_cbranch_scc1 {L}_end
  s_lshl_b32 s94, s99, 6
  s_add_u32 s94, s94, {TS_OFF+16}
  v_mov_b32 v12, s{rec.sSTEP}
  v_mov_b32 v13, s{rec2.sR1}
  v_mov_b32 v14, s{rec2.sR2}
  v_mov_b32 v15, 0
  v_mov_b32 v16, s94
  s_mov_b64 exec, 1
  global_store_dwordx4 v16, v[12:15], s[{rec.sWS}:{rec.sWS+1}]
  s_mov_b64 exec, -1
""")
    a(f"{L}_end:\n s_endpgm")
    a.lines=hazard.fix(a.lines)
    return a
NAME='concat_heads__mha_block__memory_aug_recurrent_mem_tr__prompt'
def header_lines():
    ref=open(f'cdna_kernels/{NAME}.s.ref').read().split('\n')
    return '\n'.join(l for l in ref[:ref.index([l for l in ref if l.startswith('; Override')][0])])+'\n'
def build(path,**kw):
    n=NAME+'_kernel'
    a=fused_kernel(n,**kw)
    t=wrap([(n,a.text())],[(n,256,163840)],header_lines(),single=True)
    open(path,'w').write(t)
    print('bytes',len(t),'lines',len(a.lines))
if __name__=='__main__':
    kw={k:int(v) for k,v in (x.split('=') for x in sys.argv[2:] if '=' in x)}
    ver=kw.pop('v',3)
    rec3.Rec3.t8first=bool(kw.pop('t8first',0))
    R=rec3.Rec3(fused=True,**kw) if ver==3 else (rec5.Rec5(fused=True,**kw) if ver==5 else None)
    build(sys.argv[1] if len(sys.argv)>1 else f'cdna_kernels/{NAME}.s', ts=('ts' in sys.argv), R=R)
```

```python
import sys
sys.path.insert(0,'gen')
from asmlib import *
import rec
from rec import *
import common as C
sFKM=90; sFKV=91
sPM=40
sWSR=44
sPS=48
sMP=49
sPst=50; sPst2=51
sPl=52
sPr=56
sMR=60
sMg=61
sXK=64
sXV=65
sKMo=66
sHP=67
sCNT=68
sR1=69; sR2=73
MREL=M_OFF-P_OFF
class Q:
    def __init__(s,a,name,maxv): s.a=a; s.name=name; s.maxv=maxv; s.n=0; s.pos={}
    def issue(s,tag=None,k=1):
        s.n+=k
        if tag is not None: s.pos[tag]=s.n
    def wait(s,tag):
        c=min(s.n-s.pos[tag],s.maxv)
        s.a(f"s_waitcnt {s.name}({c})")
    def reset(s): s.n=0; s.pos={}
def nops(cyc):
    out=[]; n=cyc//4
    while n>0:
        k=min(n,8); out.append(f"s_nop {k-1}"); n-=k
    return "\n".join(out)

class Rec2(Rec):
    def __init__(self, lds_set, d1=240, d2j=200, d2n=900, stflag='', kmflag='', steps=64, dbgM=False, timing=False, fused=False):
        super().__init__(lds_set,stflag=stflag)
        self.fused=fused
        if fused: kmflag='sc1'; self.xld='sc1'
        self.d1=d1; self.d2j=d2j; self.d2n=d2n; self.stflag=stflag; self.kmflag=kmflag; self.steps=steps; self.dbgM=dbgM; self.timing=timing
    def fr(self,key):
        return self.frag[key]
    def regstr(self,b): return f"{b[0]}[{b[1]}:{b[1]+7}]"
    def scalars(self,a):
        a(f"""
  s_mov_b32 s{sSTEP}, 0
  s_add_u32 s{sPM}, s{sWS}, {P_OFF}
  s_addc_u32 s{sPM+1}, s{sWS+1}, 0
  s_mov_b32 s{sPM+2}, {2*1024*1024}
  s_mov_b32 s{sPM+3}, 0x00020000
  s_mov_b32 s{sWSR}, s{sWS}
  s_mov_b32 s{sWSR+1}, s{sWS+1}
  s_mov_b32 s{sWSR+2}, 0x10000000
  s_mov_b32 s{sWSR+3}, 0x00020000
  s_mov_b32 s{sPS}, 0
  s_mov_b32 s{sMP}, {MREL+MSLOT}
  s_mul_i32 s{sHP}, s{sH}, 9216
  s_lshl_b32 s74, s{sH}, 14
  s_lshl_b32 s75, s{sW}, 11
  s_add_u32 s{sXK}, s74, s75
  s_add_u32 s{sXK}, s{sXK}, {XKV_OFF}
  s_add_u32 s{sXV}, s{sXK}, 8192
  s_lshl_b32 s74, s{sH}, 13
  s_add_u32 s{sKMo}, s74, s75
  s_add_u32 s{sKMo}, s{sKMo}, {KMVM_OFF}
  s_mov_b32 s{sR1}, 0
  s_mov_b32 s{sR2}, 0
""")
        if self.fused:
            a(f"""
  s_mov_b32 s{sFKM}, {C.NULLOFF}
  s_lshl_b32 s74, s{sH}, 2
  s_add_u32 s{sFKV}, s74, {C.F_KV}
""")
    def step_scalars(self,a):
        a(f"""
  s_add_u32 s{sPst}, s{sPS}, s{sHP}
  s_add_u32 s{sPst2}, s{sPst}, 4096
  s_xor_b32 s74, s{sPS}, {PSLOT}
""")
        for i in range(4):
            a(f"s_add_u32 s{sPl+i}, s{sPS}, {i*73728}\n s_add_u32 s{sPr+i}, s74, {i*73728}")
        a(f"""
  s_xor_b32 s{sMR}, s{sMP}, {(MREL+MSLOT)^MREL}
  s_lshl_b32 s74, s{sW}, 10
  s_add_u32 s{sMg}, s{sMP}, s74
  s_add_u32 s{sMg+1}, s{sMg}, 4096
  s_lshl_b32 s74, s{sW}, 8
  s_add_u32 s74, s74, 8192
  s_add_u32 s{sMg+2}, s{sMP}, s74
""")
    def load_m0(self,a):
        a(f"""
  v_mov_b32 v{MA+8}, 0
  v_mov_b32 v{MA+9}, 0
  v_mov_b32 v{MA+10}, 0
  v_mov_b32 v{MA+11}, 0
  v_lshrrev_b32 v24, 4, v{vL16}      ; lane
  v_and_b32 v25, 7, v24
  v_mul_u32_u24 v25, 1152, v25
  v_lshrrev_b32 v24, 3, v24
  v_lshlrev_b32 v24, 4, v24
  v_add_u32 v24, v24, v25            ; r8*1152 + (lane>>3)*16
  s_lshl_b32 s74, s{sW}, 7
  v_add_u32 v25, s74, v24
  global_load_dwordx4 v[{MA}:{MA+3}], v25, s[{sMEM}:{sMEM+1}]
  global_load_dwordx4 v[{MA+4}:{MA+7}], v25, s[{sMEM}:{sMEM+1}] offset:512
  s_lshl_b32 s74, s{sW}, 5
  s_add_u32 s74, s74, 1024
  v_add_u32 v25, s74, v24
  s_mov_b64 exec, 0xffff
  global_load_dwordx4 v[{MA+8}:{MA+11}], v25, s[{sMEM}:{sMEM+1}]
  s_mov_b64 exec, -1
  s_waitcnt vmcnt(0)
""")
    def local_barrier(self,a,xcc_sgpr,lab):
        a(f"""
  s_waitcnt vmcnt(0)
  s_barrier
  {f's_mov_b32 s74, {C.D_LBAR}' if self.fused else f's_lshl_b32 s74, s{xcc_sgpr}, 2'}
  {'s_nop 0' if self.fused else 's_add_u32 s74, s74, 32'}
  v_mov_b32 v12, s74
  v_mov_b32 v13, 1
  s_cmp_lg_u32 s{sW}, 0
  s_cbranch_scc1 {lab}_skip
  s_mov_b64 exec, 1
  global_atomic_add v12, v13, s[{sDBG}:{sDBG+1}]
  s_mov_b32 s75, 2000000
{lab}_poll:
  global_load_dword v14, v12, s[{sDBG}:{sDBG+1}] sc1
  s_waitcnt vmcnt(0)
  v_readfirstlane_b32 s76, v14
  s_sub_u32 s75, s75, 1
  s_cmp_eq_u32 s75, 0
  s_cbranch_scc1 {lab}_done
  s_cmp_lt_u32 s76, 32
  s_cbranch_scc1 {lab}_poll
{lab}_done:
  s_mov_b64 exec, -1
{lab}_skip:
  s_barrier
""")
    def stamp(self,a,k):
        if self.timing: a(f"{self.tinst} s[{4+2*k}:{5+2*k}]")
    def stamp_acc(self,a,n):
        if not self.timing: return
        a("s_waitcnt lgkmcnt(0)")
        for k in range(n-1):
            a(f"s_sub_u32 s74, s{4+2*(k+1)}, s{4+2*k}\n s_add_u32 s{20+k}, s{20+k}, s74")
        if getattr(self,'trace',False):
            l=a.newlabel('tr')
            a(f"""
  s_sub_u32 s74, s{sSTEP}, 30
  s_cmp_ge_u32 s74, 4
  s_cbranch_scc1 {l}
  s_lshl_b32 s75, s{sH}, 2
  s_add_u32 s75, s75, s{sW}
  s_lshl_b32 s75, s75, 2
  s_add_u32 s75, s75, s74
  s_lshl_b32 s75, s75, 5
  s_add_u32 s75, s75, {DBG_OFF+1024*1024+16384}
  v_mov_b32 v48, s4
  v_mov_b32 v49, s6
  v_mov_b32 v50, s8
  v_mov_b32 v51, s10
  v_mov_b32 v52, s75
  s_mov_b64 exec, 1
  buffer_store_dwordx4 v[48:51], v52, s[{sWSR}:{sWSR+3}], 0 offen
  s_nop 1
  v_mov_b32 v48, s12
  v_mov_b32 v49, s14
  v_mov_b32 v50, s16
  v_mov_b32 v51, s18
  buffer_store_dwordx4 v[48:51], v52, s[{sWSR}:{sWSR+3}], 0 offen offset:16
  s_mov_b64 exec, -1
{l}:
""")
    def loop(self,a,w,lab):
        L=Q(a,'lgkmcnt',15)
        sm=lambda d,A,B: f"v_smfmac_f32_16x16x64_bf16 v[{d}:{d+3}], v[{A}:{A+3}], {B}, v{vIdx}"
        Q0,Q1,K0,K1,V0,V1=24,28,32,36,40,44
        accs={('q',0):Q0,('q',1):Q1,('k',0):K0,('k',1):K1,('v',0):V0,('v',1):V1}
        own=[w,4+w]
        rest=[k for k in [8]+list(range(8)) if k not in own]
        order=own+rest
        mats=[('q',0),('k',0),('v',0),('q',1),('k',1),('v',1)]
        ops=[(m,t,ks) for ks in order for (m,t) in mats]
        ldsops=[i for i,(m,t,ks) in enumerate(ops) if self.frag[(m,ks,t)][0]=='lds']
        WBS=[64,72]
        slot_of={}
        for j,i in enumerate(ldsops): slot_of[i]=WBS[j%2]
        def rdfrag(key,slot,tag):
            off=self.frag[key][1]
            a(f"ds_read_b128 v[{slot}:{slot+3}], v{vFR} offset:{off}")
            a(f"ds_read_b128 v[{slot+4}:{slot+7}], v{vFR} offset:{off+1024}")
            L.issue(tag,2)
        for j in range(2):
            i=ldsops[j]; mm,tt,kk=ops[i]
            rdfrag((mm,kk,tt),slot_of[i],None)
        a("s_waitcnt lgkmcnt(0)"); L.reset()
        a(f"{lab}_top:")
        self.stamp(a,0)
        self.step_scalars(a)
        for r in range(24): a(f"v_mov_b32 v{24+r}, 0")
        a(f"ds_write_b128 v{vMB}, v[{MA}:{MA+3}] offset:{w*1024}"); L.issue()
        a(f"ds_write_b128 v{vMB}, v[{MA+4}:{MA+7}] offset:{(4+w)*1024}"); L.issue()
        a(f"s_mov_b64 exec, 0xffff\n ds_write_b128 v{vMB}, v[{MA+8}:{MA+11}] offset:{8192+w*256}\n s_mov_b64 exec, -1"); L.issue('mw')
        a(f"buffer_load_dwordx4 v[{KX}:{KX+3}], v{vL16}, s[{sWSR}:{sWSR+3}], s{sXK} offen {self.xld}")
        a(f"buffer_load_dwordx4 v[{KX+4}:{KX+7}], v{vL16}, s[{sWSR}:{sWSR+3}], s{sXK} offen offset:1024 {self.xld}")
        a(f"buffer_load_dwordx4 v[{VX}:{VX+3}], v{vL16}, s[{sWSR}:{sWSR+3}], s{sXV} offen {self.xld}")
        a(f"buffer_load_dwordx4 v[{VX+4}:{VX+7}], v{vL16}, s[{sWSR}:{sWSR+3}], s{sXV} offen offset:1024 {self.xld}")
        abuf={own[0]:MA,own[1]:MA+4}
        ring=[MA+8,MA,MA+4]
        nxt=2
        rdA=0
        def issueA():
            nonlocal rdA
            if rdA<len(rest):
                ks=rest[rdA]; b=ring[rdA%3]; abuf[ks]=b
                a(f"ds_read_b128 v[{b}:{b+3}], v{vMB} offset:{ks*1024}"); L.issue(('A',ks)); rdA+=1
        resets=[]
        if self.isjob(w):
            resets=[f"s_mov_b64 exec, s[{sJM}:{sJM+1}]\n buffer_store_dwordx4 v[60:63]X"]
        for i,(m,t,ks) in enumerate(ops):
            if i==6:
                L.wait('mw'); a("s_barrier")
                issueA(); issueA()
            if i==12: issueA()
            if i>=18 and i%6==0: issueA_now=True
            else: issueA_now=False
            if i%6==0 and ks not in own: L.wait(('A',ks))
            f=self.frag[(m,ks,t)]
            if f[0]=='reg': B=self.regstr(f[1])
            else:
                s_=slot_of[i]; B=f"v[{s_}:{s_+7}]"
                if ('W',i) in L.pos: L.wait(('W',i))
            a(sm(accs[(m,t)],abuf[ks],B))
            if f[0]=='lds' and nxt<len(ldsops):
                j=ldsops[nxt]; mm,tt,kk=ops[j]
                rdfrag((mm,kk,tt),slot_of[j],('W',j)); nxt+=1
            if issueA_now: issueA()
            if self.isjob(w) and i in (20,26,32,38):
                k=(i-20)//6
                a(f"s_mov_b64 exec, s[{sJM}:{sJM+1}]\n buffer_store_dwordx4 v[76:79], v{vPld}, s[{sPM}:{sPM+3}], s{sPr+k} offen\n s_mov_b64 exec, -1") if False else None
        self.stamp(a,1)
        a("s_nop 7")
        cv=lambda d,x,y: a(f"v_cvt_pk_bf16_f32 v{d}, v{x}, v{y}")
        for k,src in enumerate([Q0,Q1,K0,K1,V0,V1]):
            cv(12+2*k,src,src+1); cv(13+2*k,src+2,src+3)
        oorder=[(k,T) for T in range(9) for k in range(2)]
        olds=[(k,T) for (k,T) in oorder if self.frag[('o',k,T)][0]=='lds']
        oslots=[64,72,56]
        oslot={}
        for j,kt in enumerate(olds): oslot[kt]=oslots[j%3]
        onxt=0
        def rdO():
            nonlocal onxt
            if onxt<len(olds):
                k,T=olds[onxt]; rdfrag(('o',k,T),oslot[(k,T)],('O',k,T)); onxt+=1
        rdO(); rdO()
        tm=lambda d,A: a(f"v_mfma_f32_16x16x16_bf16 v[{d}:{d+3}], v[{A}:{A+1}], v[{vSel}:{vSel+1}], 0")
        a("s_nop 0")
        tm(24,12); tm(28,14); tm(32,16); tm(36,18)
        a("s_nop 5")
        cv(12,24,25); cv(13,26,27); cv(14,28,29); cv(15,30,31)
        cv(16,32,33); cv(17,34,35); cv(18,36,37); cv(19,38,39)
        a(f"buffer_store_dwordx4 v[16:19], v{vL16}, s[{sWSR}:{sWSR+3}], s{sKMo} offen {self.kmflag}")
        a(f"buffer_store_dwordx4 v[20:23], v{vL16}, s[{sWSR}:{sWSR+3}], s{sKMo} offen offset:1024 {self.kmflag}")
        pub=self.fused and w==3
        if pub:
            a(f"v_mov_b32 v24, 1\n s_mov_b64 exec, 1\n buffer_store_dword v24, off, s[{sWSR}:{sWSR+3}], s{sFKM} sc1\n s_mov_b64 exec, -1")
        a(f"s_cmp_eq_u32 s{sSTEP}, {self.steps-1}\n s_cbranch_scc1 {lab}_exit")
        a(f"s_waitcnt vmcnt({3 if pub else 2})")
        a(f"v_mfma_f32_16x16x32_bf16 v[24:27], v[16:19], v[12:15], 0")
        a(f"v_mfma_f32_16x16x32_bf16 v[28:31], v[{KX}:{KX+3}], v[12:15], 0")
        a(f"v_mfma_f32_16x16x32_bf16 v[32:35], v[{KX+4}:{KX+7}], v[12:15], 0")
        a("s_nop 7")
        for r in range(4): a(f"v_cndmask_b32 v{28+r}, v{32+r}, v{28+r}, s[{sMASK8}:{sMASK8+1}]")
        a(f"ds_write_b128 v{vMB}, v[28:31] offset:{LDS_SX-LDS_M+w*1024}"); L.issue()
        a(f"s_mov_b64 exec, 0x00ff00ff\n ds_write_b128 v{vSm}, v[24:27] offset:{w*256}\n s_mov_b64 exec, -1"); L.issue('sw')
        L.wait('sw'); a("s_barrier")
        self.stamp(a,2)
        for k in range(4):
            a(f"ds_read_b128 v[{24+4*k}:{24+4*k+3}], v{vMB} offset:{LDS_SX-LDS_M+k*1024}"); L.issue(('sx',k))
        for k in range(4):
            a(f"ds_read_b128 v[{40+4*k}:{40+4*k+3}], v{vSm} offset:{k*256}"); L.issue(('sm',k))
        L.wait(('sx',3))
        for r in range(4): a(f"v_add_f32 v{24+r}, v{24+r}, v{28+r}\n v_add_f32 v{32+r}, v{32+r}, v{36+r}")
        for r in range(4): a(f"v_add_f32 v{24+r}, v{24+r}, v{32+r}")
        L.wait(('sm',3))
        for r in range(4): a(f"v_add_f32 v{40+r}, v{40+r}, v{44+r}\n v_add_f32 v{48+r}, v{48+r}, v{52+r}")
        for r in range(4): a(f"v_add_f32 v{40+r}, v{40+r}, v{48+r}")
        a(f"""
  v_max3_f32 v12, v24, v25, v26
  v_max3_f32 v13, v27, v40, v41
  v_max3_f32 v12, v12, v42, v43
  v_max_f32 v12, v12, v13
  s_nop 1
  v_max_f32_dpp v12, v12, v12 row_ror:8 row_mask:0xf bank_mask:0xf
  v_mov_b32 v13, v12
  s_nop 1
  v_permlane16_swap_b32 v12, v13
  v_max_f32 v12, v12, v13
  v_mov_b32 v13, v12
  s_nop 1
  v_permlane32_swap_b32 v12, v13
  v_max_f32 v12, v12, v13
  v_mul_f32 v12, s{sC}, v12
""")
        for r in range(4):
            a(f"v_fma_f32 v{24+r}, v{24+r}, s{sC}, -v12\n v_fma_f32 v{40+r}, v{40+r}, s{sC}, -v12")
        for r in range(4): a(f"v_exp_f32 v{24+r}, v{24+r}")
        for r in range(4): a(f"v_exp_f32 v{40+r}, v{40+r}")
        a(f"""
  v_cvt_pk_bf16_f32 v16, v24, v25
  v_cvt_pk_bf16_f32 v17, v26, v27
  v_cvt_pk_bf16_f32 v14, v40, v41
  v_cvt_pk_bf16_f32 v15, v42, v43
  v_mov_b32_dpp v18, v16 row_ror:8 row_mask:0xf bank_mask:0xf
  v_mov_b32_dpp v19, v17 row_ror:8 row_mask:0xf bank_mask:0xf
  v_add_f32 v12, v24, v25
  v_add_f32 v13, v26, v27
  v_add_f32 v44, v40, v41
  v_add_f32 v45, v42, v43
  v_mfma_f32_16x16x16_bf16 v[28:31], v[20:21], v[14:15], 0
  v_mfma_f32_16x16x16_bf16 v[32:35], v[22:23], v[14:15], 0
  v_add_f32 v12, v12, v13
  v_add_f32 v44, v44, v45
  v_fmac_f32 v12, 0x3e800000, v44
  v_mfma_f32_16x16x32_bf16 v[28:31], v[{VX}:{VX+3}], v[16:19], v[28:31]
  v_mfma_f32_16x16x32_bf16 v[32:35], v[{VX+4}:{VX+7}], v[16:19], v[32:35]
  v_add_f32_dpp v12, v12, v12 row_ror:8 row_mask:0xf bank_mask:0xf
  v_mov_b32 v13, v12
  s_nop 1
  v_permlane16_swap_b32 v12, v13
  v_add_f32 v12, v12, v13
  v_mov_b32 v13, v12
  s_nop 1
  v_permlane32_swap_b32 v12, v13
  v_add_f32 v12, v12, v13
  v_rcp_f32 v12, v12
""")
        rdO()
        a("s_nop 1")
        for r in range(8): a(f"v_mul_f32 v{28+r}, v{28+r}, v12")
        cv(36,28,29); cv(37,30,31); cv(38,32,33); cv(39,34,35)
        a(f"s_mov_b64 exec, s[{sMASK8}:{sMASK8+1}]")
        a(f"ds_write_b64 v{vOw}, v[36:37] offset:{(4*w)*128}"); L.issue()
        a(f"ds_write_b64 v{vOw}, v[38:39] offset:{(4*w+2)*128}"); L.issue('ow')
        a("s_mov_b64 exec, -1")
        L.wait('ow'); a("s_barrier")
        self.stamp(a,3)
        a(f"ds_read_b128 v[48:51], v{vMB} offset:{LDS_O-LDS_M}"); L.issue('oa0')
        a(f"ds_read_b128 v[52:55], v{vMB} offset:{LDS_O-LDS_M+1024}"); L.issue('oa1')
        for r in range(36): a(f"v_mov_b32 v{12+r}, 0")
        L.wait('oa1')
        for (k,T) in oorder:
            f=self.frag[('o',k,T)]
            if f[0]=='reg': B=self.regstr(f[1])
            else:
                s_=oslot[(k,T)]; B=f"v[{s_}:{s_+7}]"; L.wait(('O',k,T))
            a(sm(12+4*T,48+4*k,B))
            if f[0]=='lds': rdO()
        self.stamp(a,4)
        L2=[]
        for j in range(2):
            i=ldsops[j]; mm,tt,kk=ops[i]
            rdfrag((mm,kk,tt),slot_of[i],('W',i))
        a("s_nop 3")
        def pack4(T0,c):
            A_,B_,C_,D_=[12+4*(T0+x) for x in range(4)]
            for r in range(4): a(f"v_permlane32_swap_b32 v{A_+r}, v{B_+r}")
            for r in range(4): a(f"v_permlane32_swap_b32 v{C_+r}, v{D_+r}")
            for r in range(4): a(f"v_add_f32 v{A_+r}, v{A_+r}, v{B_+r}")
            for r in range(4): a(f"v_add_f32 v{C_+r}, v{C_+r}, v{D_+r}")
            cv(c,A_,A_+1); cv(c+1,A_+2,A_+3); cv(c+2,C_,C_+1); cv(c+3,C_+2,C_+3)
            a("s_nop 1")
            a(f"v_permlane16_swap_b32 v{c}, v{c+2}\n v_permlane16_swap_b32 v{c+1}, v{c+3}")
        pack4(0,48)
        a(f"buffer_store_dwordx4 v[48:51], v{vPst}, s[{sPM}:{sPM+3}], s{sPst} offen {self.stflag}")
        pack4(4,52)
        a(f"buffer_store_dwordx4 v[52:55], v{vPst}, s[{sPM}:{sPM+3}], s{sPst2} offen {self.stflag}")
        a(f"""
  v_permlane32_swap_b32 v44, v46
  v_permlane32_swap_b32 v45, v47
  v_add_f32 v44, v44, v46
  v_add_f32 v45, v45, v47
  v_cvt_pk_bf16_f32 v44, v44, v45
  buffer_store_dword v44, v{vP8}, s[{sPM}:{sPM+3}], s{sPst} offen {self.stflag}
""")
        self.stamp(a,5)
        a(f"""
  s_add_u32 s{sXK}, s{sXK}, {32*16384}
  s_add_u32 s{sXV}, s{sXV}, {32*16384}
  s_add_u32 s{sKMo}, s{sKMo}, {32*8192}
  s_mov_b32 s{sCNT}, 400000
""")
        if self.fused:
            a(f"""
  s_add_u32 s{sFKV}, s{sFKV}, 128
  s_add_u32 s{sFKM}, s{sFKV}, {C.F_KM-C.F_KV-128}
""")
        if self.isjob(w):
            a(f"""
  s_cmp_eq_u32 s{sJOB}, 0
  s_cbranch_scc1 {lab}_nojob
  v_mov_b32 v56, v{vSel}
  v_mov_b32 v57, v{vSel+1}
  v_mov_b32 v58, v{vSel}
  v_mov_b32 v59, v{vSel+1}
  v_mov_b32 v60, -1
  v_mov_b32 v61, -1
  v_mov_b32 v62, -1
  v_mov_b32 v63, -1
  v_permlane16_swap_b32 v56, v58
  v_permlane16_swap_b32 v57, v59
""")
            for k in range(4):
                a(f"buffer_store_dwordx4 v[60:63], v{vPld}, s[{sPM}:{sPM+3}], s{sPr+k} offen {self.stflag}")
            a(nops(self.d1))
            a(f"{lab}_poll1:")
            for k in range(4):
                a(f"buffer_load_dwordx4 v[{12+4*k}:{12+4*k+3}], v{vPld}, s[{sPM}:{sPM+3}], s{sPl+k} offen sc1")
            a(f"""
  s_waitcnt vmcnt(3)
  v_mfma_f32_16x16x32_bf16 v[28:31], v[12:15], v[56:59], 0
  s_waitcnt vmcnt(2)
  v_mfma_f32_16x16x32_bf16 v[32:35], v[16:19], v[56:59], 0
  s_waitcnt vmcnt(1)
  v_mfma_f32_16x16x32_bf16 v[28:31], v[20:23], v[56:59], v[28:31]
  s_waitcnt vmcnt(0)
  v_mfma_f32_16x16x32_bf16 v[32:35], v[24:27], v[56:59], v[32:35]
  s_nop 7
  v_add_f32 v28, v28, v32
  v_add_f32 v29, v29, v33
  v_add_f32 v30, v30, v34
  v_add_f32 v31, v31, v35
  s_nop 1
  v_permlane32_swap_b32 v28, v30
  v_permlane32_swap_b32 v29, v31
  v_add_f32 v28, v28, v30
  v_add_f32 v29, v29, v31
  v_cmp_u_f32 vcc, v28, v29
  v_cvt_pk_bf16_f32 v28, v28, v29
  s_cbranch_vccz {lab}_got1
  s_add_u32 s{sR1}, s{sR1}, 1
  s_sub_u32 s{sCNT}, s{sCNT}, 1
  s_cmp_lg_u32 s{sCNT}, 0
  s_cbranch_scc1 {lab}_poll1
  s_branch {lab}_exit
{lab}_got1:
  s_mov_b64 exec, s[{sMASK8}:{sMASK8+1}]
  buffer_store_dword v60, v{vPub}, s[{sPM}:{sPM+3}], s{sMR} offen {self.stflag}
  buffer_store_dword v28, v{vPub}, s[{sPM}:{sPM+3}], s{sMP} offen {self.stflag}
""")
            if self.dbgM:
                a(f"""
  s_mul_i32 s74, s{sSTEP}, 9216
  s_add_u32 s74, s74, {DBG_OFF}
  buffer_store_dword v28, v{vPub}, s[{sWSR}:{sWSR+3}], s74 offen
""")
            a("s_mov_b64 exec, -1")
            self.stamp(a,6)
            a(nops(self.d2j))
            a(f"s_branch {lab}_p2\n{lab}_nojob:")
        self.stamp(a,6)
        a(nops(self.d2n))
        b=MA
        a(f"""
{lab}_p2:
  buffer_load_dwordx4 v[{b}:{b+3}], v{vL16}, s[{sPM}:{sPM+3}], s{sMg} offen sc1
  buffer_load_dwordx4 v[{b+4}:{b+7}], v{vL16}, s[{sPM}:{sPM+3}], s{sMg+1} offen sc1
  s_mov_b64 exec, 0xffff
  buffer_load_dwordx4 v[{b+8}:{b+11}], v{vL16}, s[{sPM}:{sPM+3}], s{sMg+2} offen sc1
  s_mov_b64 exec, -1
  {f'buffer_load_dword v26, off, s[{sWSR}:{sWSR+3}], s{sFKV} sc1' if self.fused else ''}
  s_waitcnt vmcnt(0)
  v_max_u32 v24, v{b}, v{b+1}
  v_max3_u32 v24, v24, v{b+2}, v{b+3}
  v_max3_u32 v24, v24, v{b+4}, v{b+5}
  v_max3_u32 v24, v24, v{b+6}, v{b+7}
  v_max3_u32 v25, v{b+8}, v{b+9}, v{b+10}
  v_max_u32 v25, v25, v{b+11}
  v_cmp_eq_u32 vcc, -1, v24
  v_cmp_eq_u32 s[74:75], -1, v25
  s_and_b64 s[74:75], s[74:75], 0xffff
  s_or_b64 vcc, vcc, s[74:75]
  {'v_cmp_eq_u32 s[74:75], 0, v26' if self.fused else ''}
  {'s_or_b64 vcc, vcc, s[74:75]' if self.fused else ''}
  s_cbranch_vccz {lab}_got2
  s_add_u32 s{sR2}, s{sR2}, 1
  s_sub_u32 s{sCNT}, s{sCNT}, 1
  s_cmp_lg_u32 s{sCNT}, 0
  s_cbranch_scc1 {lab}_p2
  s_branch {lab}_exit
{lab}_got2:
""")
        self.stamp(a,7)
        self.stamp_acc(a,8)
        a(f"""
  s_add_u32 s{sSTEP}, s{sSTEP}, 1
  s_xor_b32 s{sPS}, s{sPS}, {PSLOT}
  s_xor_b32 s{sMP}, s{sMP}, {(MREL+MSLOT)^MREL}
  s_waitcnt lgkmcnt(0)
  s_branch {lab}_top
""")
    def isjob(self,w): return w<3
    xld=''
    tinst='s_memtime'

def rec_role(a,R,xcc_sgpr,lab='.Lrec'):
    R.startup(a)
    R.scalars(a)
    R.local_barrier(a,xcc_sgpr,lab+'_lb')
    R.load_m0(a)
    if R.fused:
        if hasattr(R,'pre_wait'): R.pre_wait(a)
        else:
            C.wait_word(a,sDBG,C.D_INIT,vt=(24,25))
            a(f"v_mov_b32 v24, s{sFKV}")
            C.wait_words(a,24,1,base=sWS,vt=25)
    if R.timing:
        for k in range(8): a(f"s_mov_b32 s{20+k}, 0")
        a("s_memtime s[96:97]")
    for w in range(1,4):
        a(f"s_cmp_eq_u32 s{sW}, {w}\n s_cbranch_scc1 {lab}_w{w}")
    for w in range(4):
        a(f"{lab}_w{w}:")
        R.loop(a,w,f"{lab}_w{w}")
        a(f"{lab}_w{w}_exit:")
        if w<3: a(f"s_branch {lab}_done")
    a(f"{lab}_done:")
    if R.fused:
        a(f"""
  s_waitcnt vmcnt(0)
  s_barrier
  s_cmp_lg_u32 s{sW}, 3
  s_cbranch_scc1 {lab}_fin
  s_lshl_b32 s74, s{sH}, 2
  s_add_u32 s74, s74, {C.F_KM+63*128}
  v_mov_b32 v24, 1
  s_mov_b64 exec, 1
  buffer_store_dword v24, off, s[{sWSR}:{sWSR+3}], s74 sc1
  s_mov_b64 exec, -1
{lab}_fin:
""")
def rec_kernel(name,R,stats=True):
    a=Asm()
    a(f"""
  s_load_dwordx2 s[6:7], s[0:1], 88
  s_getreg_b32 s20, hwreg(HW_REG_XCC_ID, 0, 4)
  s_cmp_ge_u32 s2, 256
  s_cbranch_scc1 .L{name}_end
  s_waitcnt lgkmcnt(0)
  s_lshl_b32 s21, s20, 2
  v_mov_b32 v1, s21
  v_mov_b32 v2, 1
  v_cmp_eq_u32 vcc, 0, v0
  s_and_saveexec_b64 s[30:31], vcc
  global_atomic_add v3, v1, v2, s[6:7] sc0
  s_waitcnt vmcnt(0)
  ds_write_b32 v0, v3
  s_waitcnt lgkmcnt(0)
  s_mov_b64 exec, s[30:31]
  s_barrier
  v_mov_b32 v9, 0
  ds_read_b32 v3, v9
  s_waitcnt lgkmcnt(0)
  v_readfirstlane_b32 s{sH}, v3
  s_cmp_lg_u32 s20, 0
  s_cbranch_scc1 .L{name}_end
  s_cmp_ge_u32 s{sH}, 32
  s_cbranch_scc1 .L{name}_end
  s_mov_b32 s90, s20
  s_barrier
  s_memtime s[92:93]
  s_waitcnt lgkmcnt(0)
""")
    rec_role(a,R,90,'.L'+name)
    if stats:
        a(f"""
  s_memtime s[94:95]
  s_waitcnt lgkmcnt(0)
  s_sub_u32 s94, s94, s92
  s_lshl_b32 s74, s{sH}, 2
  s_add_u32 s74, s74, s{sW}
  s_lshl_b32 s74, s74, 4
  s_add_u32 s74, s74, {DBG_OFF+1024*1024}
  v_mov_b32 v12, s94
  v_mov_b32 v13, s{sSTEP}
  v_mov_b32 v14, s{sR1}
  v_mov_b32 v15, s{sR2}
  v_mov_b32 v16, s74
  s_mov_b64 exec, 1
  buffer_store_dwordx4 v[12:15], v16, s[{sWSR}:{sWSR+3}], 0 offen
  s_mov_b64 exec, -1
""")
        if R.timing:
            a(f"""
  s_sub_u32 s96, s96, s92
  s_lshl_b32 s74, s{sH}, 2
  s_add_u32 s74, s74, s{sW}
  s_lshl_b32 s74, s74, 5
  s_add_u32 s74, s74, {DBG_OFF+1024*1024+4096}
  v_mov_b32 v16, s74
  v_mov_b32 v12, s20
  v_mov_b32 v13, s21
  v_mov_b32 v14, s22
  v_mov_b32 v15, s23
  v_mov_b32 v20, s24
  v_mov_b32 v21, s25
  v_mov_b32 v22, s26
  v_mov_b32 v23, s96
  s_mov_b64 exec, 1
  buffer_store_dwordx4 v[12:15], v16, s[{sWSR}:{sWSR+3}], 0 offen
  buffer_store_dwordx4 v[20:23], v16, s[{sWSR}:{sWSR+3}], 0 offen offset:16
  s_mov_b64 exec, -1
""")
    a(f".L{name}_end:\n s_endpgm")
    return a
```

```python
import sys
sys.path.insert(0,'gen')
from asmlib import *
import rec, rec2, sched
from rec import *
from rec2 import *
import common as C
from sched import mk
LDSSET3=[('q',0),('q',1),('q',2),('q',3),('q',8),('o',1,0),('o',0,2),('o',1,2),('o',1,3)]
sC2=88
sTCH=58
sWK=56; sWQ=57
sNR=38
def R(b,n): return {('v',b+i) for i in range(n)}
class Rec3(Rec2):
    def __init__(self, lds_set=None, d1=0, d2j=100, d2n=700, show=False, defer_km=False, touch=True, xsc1=False, tsc1=True, **kw):
        super().__init__(lds_set or LDSSET3, d1=d1, d2j=d2j, d2n=d2n, **kw)
        self.show=show; self.touch=touch
        if xsc1: self.xld='sc1'
        self.tflag='sc1' if tsc1 else ''
    def consts(self,a):
        super().consts(a)
        a(f"""
  v_lshrrev_b32 v38, 1, v12
  v_lshlrev_b32 v38, 1, v38
  v_lshrrev_b32 v39, 3, v13
  v_add_u32 v38, v38, v39
  s_lshl_b32 s77, s{sW}, 2
  v_add_u32 v38, s77, v38
  v_lshlrev_b32 v38, 7, v38
  v_and_b32 v39, 7, v13
  v_lshlrev_b32 v39, 4, v39
  v_add_u32 v38, v38, v39
  v_and_b32 v39, 1, v12
  v_lshlrev_b32 v39, 3, v39
  v_add_u32 v{vPst}, v38, v39
""")
    def scalars(self,a):
        super().scalars(a)
        a(f"s_lshl_b32 s{sWK}, s{sW}, 10\n s_lshl_b32 s{sWQ}, s{sW}, 8\n s_add_u32 s{sWQ}, s{sWQ}, 8192")
        a(f"s_mov_b32 s{sC2}, s{sC}\n s_mov_b32 s{sC2+1}, s{sC}\n s_mov_b64 s[{sNR}:{sNR+1}], 0")
        if self.fused:
            a(f"s_add_u32 s{sFKV}, s{sFKV}, 256")
    def block(self,w):
        N=[]
        def n(t,tag=None,after=(),p=0): N.append(mk(t,tag,after,p))
        fr=self.frag
        idx=f"v{vIdx}"
        sm=lambda d,A,B: f"v_smfmac_f32_16x16x64_bf16 v[{d}:{d+3}], v[{A}:{A+3}], {B}, {idx}"
        cv=lambda d,x,y: n(f"v_cvt_pk_bf16_f32 v{d}, v{x}, v{y}")
        pka=lambda d,x: n(f"v_pk_add_f32 v[{d}:{d+1}], v[{d}:{d+1}], v[{x}:{x+1}]")
        A0,A1,A2=12,16,20
        ring=list(self.ringQK)
        Q0,Q1,K0,K1=32,36,40,44
        KX=48; WB=[56,64]; V0,V1=56,60; VX=64; F=vPld; ONE=vPub
        acc={('q',0):Q0,('q',1):Q1,('k',0):K0,('k',1):K1,('v',0):V0,('v',1):V1}
        own=[w,4+w]
        isL=lambda m,ks: fr[(m,ks,0)][0]=='lds'
        others=[k for k in range(9) if k not in own]
        Ls=[k for k in others if isL('q',k) or isL('k',k)]; Rs=[k for k in others if k not in Ls]
        Ls.sort(key=lambda k:(k!=8,k))
        rest=[]
        while Ls or Rs:
            if Ls: rest.append(Ls.pop(0))
            if Rs: rest.append(Rs.pop(0))
        self.rest=rest
        x=self.xld
        n(f"buffer_load_dwordx4 v[{KX}:{KX+3}], v{vL16}, s[{sWSR}:{sWSR+3}], s{sXK} offen {x}",p=200)
        n(f"buffer_load_dwordx4 v[{KX+4}:{KX+7}], v{vL16}, s[{sWSR}:{sWSR+3}], s{sXK} offen offset:1024 {x}")
        self.extra_top(n,w)
        slot_q=[]
        ops=[]
        def kops(ks): return [('q',0,ks),('q',1,ks),('k',0,ks),('k',1,ks)]
        o0=own[0] if (isL('q',own[0]) or isL('k',own[0])) else own[1]
        o1=own[1] if o0==own[0] else own[0]
        for ks in [o0,o1]+rest: ops+=kops(ks)
        lops=[o for o in ops if fr[(o[0],o[2],o[1])][0]=='lds']
        self.pref=lops[:2]
        slot={o:WB[i%2] for i,o in enumerate(lops)}
        def rdW(key,s_,tagp=None):
            off=fr[key][1]
            n(f"ds_read_b128 v[{s_}:{s_+3}], v{vFR} offset:{off}")
            n(f"ds_read_b128 v[{s_+4}:{s_+7}], v{vFR} offset:{off+1024}")
        abuf={own[0]:A0,own[1]:A1}
        nxtL=2
        barred=False
        ri=0
        def rdA(ks,r,after):
            n(f"ds_read_b128 v[{r}:{r+3}], v{vMB} offset:{ks*1024}",after=after)
        for (m,t,ks) in ops:
            if ks not in abuf:
                if not barred:
                    n("s_barrier",tag='b1',after=['mw']); barred=True
                r=ring[ri%3]; ri+=1
                rdA(ks,r,['b1']); abuf[ks]=r
            f=fr[(m,ks,t)]
            B=self.regstr(f[1]) if f[0]=='reg' else f"v[{slot[(m,t,ks)]}:{slot[(m,t,ks)]+7}]"
            qi=ops.index((m,t,ks))
            n(sm(acc[(m,t)],abuf[ks],B),tag={8:'q8',20:'q20',35:'q35'}.get(qi))
            if f[0]=='lds' and nxtL<len(lops):
                o=lops[nxtL]; rdW((o[0],o[2],o[1]),slot[o]); nxtL+=1
        inring={ks:abuf[ks] for ks in rest[-3:]}
        n(f"buffer_load_dwordx4 v[{VX}:{VX+3}], v{vL16}, s[{sWSR}:{sWSR+3}], s{sXV} offen {x}")
        n(f"buffer_load_dwordx4 v[{VX+4}:{VX+7}], v{vL16}, s[{sWSR}:{sWSR+3}], s{sXV} offen offset:1024 {x}")
        if self.fused and w==3:
            n(f"buffer_load_dword v{F}, off, s[{sWSR}:{sWSR+3}], s{sFKV} sc1")
            n(f"s_mov_b64 exec, 1\n buffer_store_dword v{ONE}, off, s[{sWSR}:{sWSR+3}], s{sFKM} sc1\n s_mov_b64 exec, -1",after=['b1'])
        for r in range(0,8,2): n(f"v_mov_b64 v[{V0+r}:{V0+r+1}], 0")
        tm=lambda d,A: n(f"v_mfma_f32_16x16x16_bf16 v[{d}:{d+3}], v[{A}:{A+1}], v[{vSel}:{vSel+1}], 0")
        for k,src in enumerate([Q0,Q1,K0,K1]):
            cv(12+2*k,src,src+1); cv(13+2*k,src+2,src+3)
        tm(32,12); tm(36,14); tm(40,16); tm(44,18)
        N[-1].tag='t4'
        cv(12,32,33); cv(13,34,35); cv(14,36,37); cv(15,38,39)
        cv(16,40,41); cv(17,42,43); cv(18,44,45); cv(19,46,47)
        n(f"buffer_store_dwordx4 v[16:19], v{vL16}, s[{sWSR}:{sWSR+3}], s{sKMo} offen {self.kmflag}")
        n(f"v_mfma_f32_16x16x32_bf16 v[36:39], v[{KX}:{KX+3}], v[12:15], 0")
        n(f"v_mfma_f32_16x16x32_bf16 v[40:43], v[{KX+4}:{KX+7}], v[12:15], 0")
        n(f"v_mfma_f32_16x16x32_bf16 v[32:35], v[16:19], v[12:15], 0")
        for r in range(4): n(f"v_cndmask_b32 v{36+r}, v{40+r}, v{36+r}, s[{sMASK8}:{sMASK8+1}]")
        n(f"ds_write_b128 v{vMB}, v[36:39] offset:{LDS_SX-LDS_M+w*1024}",tag='sx')
        n(f"s_mov_b64 exec, 0x00ff00ff\n ds_write_b128 v{vSm}, v[32:35] offset:{w*256}\n s_mov_b64 exec, -1",tag='sw')
        n("s_barrier",tag='b2',after=['sx','sw','b1'])
        ring=list(self.ringV)
        vorder=list(rest[-3:])+[k for k in [own[0],own[1]]+rest[:-3]]
        for ks in vorder:
            if ks in inring: r=inring[ks]
            else:
                r=ring[ri%3]; ri+=1
                rdA(ks,r,['b1','sx'])
            for t in range(2):
                f=fr[('v',ks,t)]; assert f[0]=='reg'
                n(sm(acc[('v',t)],r,self.regstr(f[1])),p=-int(self.vprio))
        oth=[k for k in range(4) if k!=w]
        for k,r in zip(oth,(40,44,48)): n(f"ds_read_b128 v[{r}:{r+3}], v{vMB} offset:{LDS_SX-LDS_M+k*1024}",after=['b2'])
        for k,r in zip(oth,(52,72,12)): n(f"ds_read_b128 v[{r}:{r+3}], v{vSm} offset:{k*256}",after=['b2'])
        N.append(mk("v_pk_add_f32 v[36:37], v[36:37], v[40:41]",'m1')); pka(38,42); pka(44,48); pka(46,50); pka(36,44); pka(38,46)
        pka(32,52); pka(34,54); pka(72,12); pka(74,14); pka(32,72); pka(34,74)
        n("v_max3_f32 v72, v36, v37, v38"); n("v_max3_f32 v73, v39, v32, v33")
        n("v_max3_f32 v72, v72, v34, v35"); n("v_max_f32 v72, v72, v73")
        n("v_max_f32_dpp v72, v72, v72 row_ror:8 row_mask:0xf bank_mask:0xf")
        for sw in ('16','32'):
            n("v_mov_b32 v73, v72"); n(f"v_permlane{sw}_swap_b32 v72, v73"); n("v_max_f32 v72, v72, v73")
        n(f"v_mul_f32 v72, s{sC}, v72",tag='m2')
        for b in (36,38,32,34):
            n(f"v_pk_fma_f32 v[{b}:{b+1}], v[{b}:{b+1}], s[{sC2}:{sC2+1}], v[72:73] op_sel_hi:[1,1,0] neg_lo:[0,0,1] neg_hi:[0,0,1]")
        for r in (36,37,38,39,32,33,34,35): n(f"v_exp_f32 v{r}, v{r}",tag='m3' if r==35 else None)
        cv(40,36,37); cv(41,38,39); cv(44,32,33); cv(45,34,35)
        n("v_mov_b32_dpp v42, v40 row_ror:8 row_mask:0xf bank_mask:0xf")
        n("v_mov_b32_dpp v43, v41 row_ror:8 row_mask:0xf bank_mask:0xf")
        n("v_pk_add_f32 v[74:75], v[36:37], v[38:39]"); n("v_add_f32 v73, v74, v75")
        n("v_pk_add_f32 v[74:75], v[32:33], v[34:35]"); n("v_add_f32 v74, v74, v75")
        n("v_fmac_f32 v73, 0x3e800000, v74")
        n("v_add_f32_dpp v73, v73, v73 row_ror:8 row_mask:0xf bank_mask:0xf")
        for sw in ('16','32'):
            n("v_mov_b32 v74, v73"); n(f"v_permlane{sw}_swap_b32 v73, v74"); n("v_add_f32 v73, v73, v74")
        n("v_rcp_f32 v72, v73",tag='m4')
        cv(48,V0,V0+1); cv(49,V0+2,V0+3); cv(50,V1,V1+1); cv(51,V1+2,V1+3)
        n(f"buffer_store_dwordx4 v[48:51], v{vL16}, s[{sWSR}:{sWSR+3}], s{sKMo} offen offset:1024 {self.kmflag}")
        n(f"v_mfma_f32_16x16x32_bf16 v[52:55], v[{VX}:{VX+3}], v[40:43], 0",tag='p0')
        n(f"v_mfma_f32_16x16x32_bf16 v[12:15], v[{VX+4}:{VX+7}], v[40:43], 0",tag='p1')
        n(f"v_mfma_f32_16x16x16_bf16 v[52:55], v[48:49], v[44:45], v[52:55]",tag='p2')
        n(f"v_mfma_f32_16x16x16_bf16 v[12:15], v[50:51], v[44:45], v[12:15]",tag='p3')
        for b in (52,54,12,14): n(f"v_pk_mul_f32 v[{b}:{b+1}], v[{b}:{b+1}], v[72:73] op_sel_hi:[1,0]")
        cv(44,52,53); cv(45,54,55); cv(46,12,13); cv(47,14,15)
        n(f"s_mov_b64 exec, s[{sMASK8}:{sMASK8+1}]\n ds_write_b64 v{vOw}, v[44:45] offset:{(4*w)*128}\n ds_write_b64 v{vOw}, v[46:47] offset:{(4*w+2)*128}\n s_mov_b64 exec, -1",tag='ow')
        n("s_barrier",tag='b3',after=['ow','b2'])
        n(f"ds_read_b128 v[48:51], v{vMB} offset:{LDS_O-LDS_M}",after=['b3'])
        n(f"ds_read_b128 v[52:55], v{vMB} offset:{LDS_O-LDS_M+1024}",after=['b3'])
        self._first_o=True
        if self.fused and w==3:
            n(f"v_cmp_eq_u32 s[{sNR}:{sNR+1}], 0, v{F}",after=['b3'])
        oorder=[(k,T) for p in range(4) for k in range(2) for T in (2*p,2*p+1)]+[(0,8),(1,8)]
        if self.t8first: oorder=oorder[-2:]+oorder[:-2]
        olds=[kt for kt in oorder if fr[('o',kt[0],kt[1])][0]=='lds']
        oslots=[56,64,72]
        oslot={kt:oslots[j%3] for j,kt in enumerate(olds)}
        if self.touch:
            n(f"v_lshlrev_b32 v47, 2, v{vL16}"); n("v_and_b32 v47, 0x7c0, v47"); n(f"v_lshrrev_b32 v46, 9, v{vL16}"); n("v_lshl_or_b32 v47, v46, 13, v47")
            n(f"buffer_load_dword v47, s[{sWSR}:{sWSR+3}], s{sTCH} offen {self.tflag} lds",after=['b3'])
        self.extra_b3(n,w)
        for r in range(12,48,2): n(f"v_mov_b64 v[{r}:{r+1}], 0")
        for kt in olds[:3]: rdW(('o',kt[0],kt[1]),oslot[kt])
        onxt=3
        done=set()
        def pack_pair(p):
            A_=12+8*p; B_=A_+4
            for r in range(4): n(f"v_permlane32_swap_b32 v{A_+r}, v{B_+r}")
            pka(A_,B_); pka(A_+2,B_+2)
            cv(B_,A_,A_+1); cv(B_+1,A_+2,A_+3)
            so=sPst if p<2 else sPst2
            n(f"buffer_store_dwordx2 v[{B_}:{B_+1}], v{vPst}, s[{sPM}:{sPM+3}], s{so} offen offset:{(p&1)*2048} {self.stflag}")
        def pack8():
            n("v_permlane32_swap_b32 v44, v46"); n("v_permlane32_swap_b32 v45, v47")
            pka(44,46); cv(44,44,45)
            n(f"buffer_store_dword v44, v{vP8}, s[{sPM}:{sPM+3}], s{sPst} offen {self.stflag}")
        for (k,T) in oorder:
            f=fr[('o',k,T)]
            B=self.regstr(f[1]) if f[0]=='reg' else f"v[{oslot[(k,T)]}:{oslot[(k,T)]+7}]"
            n(sm(12+4*T,48+4*k,B),tag=('o1' if not done else ('o2' if len(done)==17 else ('o9' if len(done)==8 else None))))
            if f[0]=='lds' and onxt<len(olds):
                kt=olds[onxt]; onxt+=1; rdW(('o',kt[0],kt[1]),oslot[kt])
            done.add((k,T))
            if T==8 and k==1: pack8()
            if T&1 and k==1 and T<8: pack_pair(T//2)
        return N
    def extra_top(self,n,w): pass
    def extra_b3(self,n,w): pass
    ringQK=(24,28,20); ringV=(24,28,20)
    vprio=0; t8first=False; tflag='sc1'
    def pref_frags(self,a,w):
        fr=self.frag
        for i,o in enumerate(self.pref):
            off=fr[(o[0],o[2],o[1])][1]; s_=[56,64][i]
            a(f"ds_read_b128 v[{s_}:{s_+3}], v{vFR} offset:{off}")
            a(f"ds_read_b128 v[{s_+4}:{s_+7}], v{vFR} offset:{off+1024}")
    def idle_common(self,a,w):
        self.pref_frags(a,w)
        for r in range(32,48,2): a(f"v_mov_b64 v[{r}:{r+1}], 0")
    fixx=0
    def adv(self,a):
        a(f"""
  s_add_u32 s{sXK}, s{sXK}, {0 if self.fixx else 32*16384}
  s_add_u32 s{sXV}, s{sXV}, {0 if self.fixx else 32*16384}
  s_add_u32 s{sKMo}, s{sKMo}, {32*8192}
  s_mov_b32 s{sCNT}, 400000
  s_add_u32 s{sTCH}, s{sXK}, {32*16384}
  s_cmp_ge_u32 s{sSTEP}, 62
  s_cselect_b32 s{sTCH}, {C.NULLOFF}, s{sTCH}
""")
        if self.fused:
            a(f"""
  s_lshl_b32 s74, s{sSTEP}, 7
  s_lshl_b32 s75, s{sH}, 2
  s_add_u32 s74, s74, s75
  s_add_u32 s{sFKM}, s74, {C.F_KM}
  s_min_u32 s75, s{sSTEP}, 60
  s_lshl_b32 s75, s75, 7
  s_lshl_b32 s74, s{sH}, 2
  s_add_u32 s74, s74, s75
  s_add_u32 s{sFKV}, s74, {C.F_KV+3*128}
""")
    def loop(self,a,w,lab):
        N=self.block(w)
        avail={}
        for r in R(12,12): avail[r]=0
        avail['b1']=70
        order,t=sched.schedule(N,avail=avail)
        print(f'wave {w}: predicted block cycles {t}, rest {self.rest}')
        self.step_scalars(a)
        a(f"s_add_u32 s{sTCH}, s{sXK}, {32*16384}\n s_mov_b32 m0, {LDS_SX+w*1024}")
        self.idle_common(a,w)
        if w==3: a(f"v_mov_b32 v{vPub}, 1")
        a(f"v_and_b32 v25, 0xf0, v{vL16}\n s_mov_b32 s{sCNT}, 400000\n s_waitcnt lgkmcnt(0)\n s_branch {lab}_have")
        b=12
        a(f"""
{lab}_retry:
  s_add_u32 s{sR2}, s{sR2}, 1
  s_sub_u32 s{sCNT}, s{sCNT}, 1
  s_cmp_eq_u32 s{sCNT}, 0
  s_cbranch_scc1 {lab}_exit
{lab}_gather:
  buffer_load_dwordx4 v[{b}:{b+3}], v{vL16}, s[{sPM}:{sPM+3}], s{sMg} offen sc1
  buffer_load_dwordx4 v[{b+4}:{b+7}], v{vL16}, s[{sPM}:{sPM+3}], s{sMg+1} offen sc1
  buffer_load_dwordx4 v[{b+8}:{b+11}], v25, s[{sPM}:{sPM+3}], s{sMg+2} offen sc1
  s_waitcnt vmcnt(0)
{lab}_have:
  ds_write_b128 v{vMB}, v[12:15] offset:{w*1024}
  ds_write_b128 v{vMB}, v[16:19] offset:{(4+w)*1024}
  s_mov_b64 exec, 0xffff
  ds_write_b128 v{vMB}, v[20:23] offset:{8192+w*256}
  s_mov_b64 exec, -1
  v_max3_u32 v24, v12, v13, v14
  v_max3_u32 v26, v15, v16, v17
  v_max3_u32 v24, v24, v18, v19
  v_max3_u32 v26, v26, v20, v21
  v_max3_u32 v24, v24, v22, v23
  v_max_u32 v24, v24, v26
  v_cmp_eq_u32 vcc, -1, v24
  s_cbranch_vccnz {lab}_retry
""")
        self.stamp(a,0)
        if self.timing: a("s_waitcnt lgkmcnt(0)")
        hooks={}
        if self.timing:
            for k,tg in enumerate(['b1','sw','b2','b3']): hooks[tg]=f"{self.tinst} s[{6+2*k}:{7+2*k}]"
        sched.emit(a,order,ds_init=[R(56,4),R(60,4),R(64,4),R(68,4),set(),set(),(set(),'mw')],show_t=self.show,hooks=hooks)
        self.stamp(a,5)
        a(f"s_cmp_eq_u32 s{sSTEP}, {self.steps-1}\n s_cbranch_scc1 {lab}_exit")
        if self.fused and w==3:
            a(f"""
  s_cmp_eq_u64 s[{sNR}:{sNR+1}], 0
  s_cbranch_scc1 {lab}_fok
  s_mov_b32 s75, 4000000
{lab}_fpoll:
  buffer_load_dword v24, off, s[{sWSR}:{sWSR+3}], s{sFKV} sc1
  s_waitcnt vmcnt(0)
  v_readfirstlane_b32 s74, v24
  s_sub_u32 s75, s75, 1
  s_cmp_eq_u32 s75, 0
  s_cbranch_scc1 {lab}_fok
  s_cmp_eq_u32 s74, 0
  s_cbranch_scc1 {lab}_fpoll
{lab}_fok:
""")
        self.adv(a)
        self.idle_common(a,w)
        a(f"v_and_b32 v25, 0xf0, v{vL16}")
        if self.isjob(w):
            a(f"""
  s_cmp_eq_u32 s{sJOB}, 0
  s_cbranch_scc1 {lab}_nojob
  v_mov_b32 v28, v{vSel}
  v_mov_b32 v29, v{vSel+1}
  v_mov_b32 v30, v{vSel}
  v_mov_b32 v31, v{vSel+1}
  v_mov_b64 v[72:73], -1
  v_mov_b64 v[74:75], -1
  v_permlane16_swap_b32 v28, v30
  v_permlane16_swap_b32 v29, v31
""")
            if self.d1: a(nops(self.d1))
            a(f"{lab}_poll1:")
            for k in range(4):
                a(f"buffer_load_dwordx4 v[{12+4*k}:{12+4*k+3}], v{vPld}, s[{sPM}:{sPM+3}], s{sPl+k} offen sc1")
            a(f"""
  s_waitcnt vmcnt(3)
  v_mfma_f32_16x16x32_bf16 v[48:51], v[12:15], v[28:31], 0
  s_waitcnt vmcnt(2)
  v_mfma_f32_16x16x32_bf16 v[52:55], v[16:19], v[28:31], 0
  s_waitcnt vmcnt(1)
  v_mfma_f32_16x16x32_bf16 v[48:51], v[20:23], v[28:31], v[48:51]
  s_waitcnt vmcnt(0)
  v_mfma_f32_16x16x32_bf16 v[52:55], v[24:27], v[28:31], v[52:55]
  v_pk_add_f32 v[48:49], v[48:49], v[52:53]
  v_pk_add_f32 v[50:51], v[50:51], v[54:55]
  v_permlane32_swap_b32 v48, v50
  v_permlane32_swap_b32 v49, v51
  v_pk_add_f32 v[48:49], v[48:49], v[50:51]
  v_cmp_u_f32 vcc, v48, v49
  v_cvt_pk_bf16_f32 v48, v48, v49
  s_cbranch_vccnz {lab}_again1
  s_mov_b64 exec, s[{sMASK8}:{sMASK8+1}]
  buffer_store_dword v48, v{vPub}, s[{sPM}:{sPM+3}], s{sMP} offen {self.stflag}
  buffer_store_dword v72, v{vPub}, s[{sPM}:{sPM+3}], s{sMR} offen {self.stflag}
""")
            if self.dbgM:
                a(f"""
  s_mul_i32 s74, s{sSTEP}, 9216
  s_add_u32 s74, s74, {DBG_OFF}
  buffer_store_dword v48, v{vPub}, s[{sWSR}:{sWSR+3}], s74 offen
""")
            a("s_mov_b64 exec, -1")
            for k in range(4):
                a(f"buffer_store_dwordx4 v[72:75], v{vPld}, s[{sPM}:{sPM+3}], s{sPl+k} offen {self.stflag}")
            a(f"v_and_b32 v25, 0xf0, v{vL16}")
            self.stamp(a,6)
            self.next_scalars(a)
            if self.d2j: a(nops(self.d2j))
            self.stamp(a,7); self.stamp_acc(a,8)
            a(f"s_branch {lab}_gather")
            a(f"""
{lab}_again1:
  s_add_u32 s{sR1}, s{sR1}, 1
  s_sub_u32 s{sCNT}, s{sCNT}, 1
  s_cmp_lg_u32 s{sCNT}, 0
  s_cbranch_scc1 {lab}_poll1
  s_branch {lab}_exit
{lab}_nojob:
""")
        self.stamp(a,6)
        self.next_scalars(a)
        if self.d2n: a(nops(self.d2n))
        self.stamp(a,7); self.stamp_acc(a,8)
        a(f"s_branch {lab}_gather")
    def next_scalars(self,a):
        a(f"""
  s_add_u32 s{sSTEP}, s{sSTEP}, 1
  s_xor_b32 s{sPS}, s{sPS}, {PSLOT}
  s_xor_b32 s{sMP}, s{sMP}, {(MREL+MSLOT)^MREL}
""")
        self.step_scalars(a)
    def step_scalars(self,a):
        a(f"""
  s_add_u32 s{sPst}, s{sPS}, s{sHP}
  s_add_u32 s{sPst2}, s{sPst}, 4096
  s_xor_b32 s{sMR}, s{sMP}, {(MREL+MSLOT)^MREL}
  s_add_u32 s{sMg}, s{sMR}, {'W1024'}
  s_add_u32 s{sMg+1}, s{sMg}, 4096
  s_add_u32 s{sMg+2}, s{sMR}, {'W256'}
""".replace('W1024',f's{sWK}').replace('W256',f's{sWQ}'))
        for i in range(4):
            a(f"s_add_u32 s{sPl+i}, s{sPS}, {i*73728}")
    def pre_wait(self,a):
        C.wait_word(a,sDBG,C.D_INIT,vt=(24,25))
        a(f"v_lshlrev_b32 v24, 3, v{vL16}\n v_add_u32 v24, s{sFKV}, v24\n v_subrev_u32 v24, 256, v24")
        C.wait_words(a,24,3,base=sWS,vt=25)
```

```python
import sys
sys.path.insert(0,'gen')
from asmlib import *
import rec, rec2, rec3, sched
from rec import *
from rec2 import *
from rec3 import *
import common as C
MREL4=4*PSLOT
assert MREL4+4*MSLOT<=2*MB
sPRs=59
sMRs=87
sRM=82
class Rec5(Rec3):
    marks=['b1','sw','b2','b3']
    ringQK=(24,28,76); ringV=(24,28,20)
    def __init__(self, d1=0, g1=60, d2j=0, g2=100, d2n=700, dr=0, DG=3, DP=3, **kw):
        super().__init__(d1=d1,d2j=d2j,d2n=d2n,**kw)
        self.g1=g1; self.g2=g2; self.dr=dr; self.DG=DG; self.DP=DP
    def mreset_addr(self,a,d,t):
        a(f"""
  v_lshrrev_b32 v{d}, 7, v{vL16}
  v_lshlrev_b32 v{d}, 12, v{d}
  v_and_b32 v{t}, 0x70, v{vL16}
  v_add_u32 v{d}, v{d}, v{t}
""")
    def init_nan(self,a):
        a(f"""
  v_mov_b32 v64, -1
  v_mov_b32 v65, -1
  v_mov_b32 v66, -1
  v_mov_b32 v67, -1
  s_add_u32 s4, s{sWS}, {P_OFF}
  s_addc_u32 s5, s{sWS+1}, 0
  s_mul_i32 s77, s{sW}, {PSLOT}
  s_mul_i32 s79, s{sH}, 9216
  s_add_u32 s77, s77, s79
  v_add_u32 v68, s77, v{vL16}
""")
        for k in range(9):
            a(f"global_store_dwordx4 v68, v[64:67], s[4:5]\n v_add_u32 v68, 1024, v68")
        l=a.newlabel('n4')
        a(f"""
  s_cmp_lg_u32 s{sW}, 3
  s_cbranch_scc1 {l}
  s_mov_b32 s{sRM}, 0xffff
  s_cmp_lt_u32 s{sH}, 8
  s_cselect_b32 s{sRM}, 0xffffff, s{sRM}
  s_mov_b32 s{sRM+1}, 0
""")
        self.mreset_addr(a,68,69)
        a(f"""
  s_lshl_b32 s77, s{sH}, 7
  s_add_u32 s77, s77, {MREL4}
  v_add_u32 v68, s77, v68
  s_mov_b64 exec, s[{sRM}:{sRM+1}]
""")
        for k in range(4):
            a(f"global_store_dwordx4 v68, v[64:67], s[4:5]\n v_add_u32 v68, {MSLOT}, v68")
        a(f"s_mov_b64 exec, -1\n{l}:")
    def scalars(self,a):
        super().scalars(a)
    def extra_top(self,n,w):
        class L(list):
            def __call__(s,txt):
                for l in txt.split('\n'):
                    if l.strip(): s.append(l.strip())
        L_=L(); self.slot_scalars(L_,w)
        for l in L_: n(l)
    def slot_scalars(self,a,w):
        a(f"""
  s_and_b32 s74, s{sSTEP}, 3
  s_mul_i32 s{sPS}, s74, {PSLOT}
  s_add_u32 s{sPst}, s{sPS}, s{sHP}
  s_add_u32 s{sPst2}, s{sPst}, 4096
  s_add_u32 s75, s{sSTEP}, 1
  s_and_b32 s75, s75, 3
  s_mul_i32 s75, s75, {MSLOT}
  s_add_u32 s{sMP}, s75, {MREL4}
  s_add_u32 s{sMg}, s{sMP}, s{sWK}
  s_add_u32 s{sMg+1}, s{sMg}, 4096
  s_add_u32 s{sMg+2}, s{sMP}, s{sWQ}
""")
        if self.isjob(w):
            for i in range(4): a(f"s_add_u32 s{sPl+i}, s{sPS}, {i*73728}")
        a(f"""
  s_add_u32 s76, s{sSTEP}, 3
  s_and_b32 s76, s76, 3
  s_mul_i32 s77, s76, {PSLOT}
  s_add_u32 s{sPRs}, s77, s{sHP}
  s_add_u32 s78, s{sPRs}, 4096
""")
        if w==2: a(f"s_add_u32 s79, s{sPRs}, 8192")
        if w==3:
            a(f"""
  s_mul_i32 s77, s76, {MSLOT}
  s_lshl_b32 s76, s{sH}, 7
  s_add_u32 s77, s77, s76
  s_add_u32 s{sMRs}, s77, {MREL4}
""")
    def extra_b3(self,n,w):
        PM=f"s[{sPM}:{sPM+3}]"
        if w==3:
            n(f"v_lshrrev_b32 v42, 7, v{vL16}"); n("v_lshlrev_b32 v42, 12, v42"); n(f"v_and_b32 v43, 0x70, v{vL16}"); n("v_add_u32 v42, v42, v43")
        n("v_mov_b64 v[44:45], -1"); n("v_mov_b64 v[46:47], -1")
        n(f"buffer_store_dwordx4 v[44:47], v{vL16}, {PM}, s{sPRs} offen offset:{w*1024}")
        n(f"buffer_store_dwordx4 v[44:47], v{vL16}, {PM}, s78 offen offset:{w*1024}")
        if w==2: n(f"buffer_store_dwordx4 v[44:47], v{vL16}, {PM}, s79 offen")
        if w==3: n(f"s_mov_b64 exec, s[{sRM}:{sRM+1}]\n buffer_store_dwordx4 v[44:47], v42, {PM}, s{sMRs} offen\n s_mov_b64 exec, -1")
    def jobshadow(self,a,w):
                    a(f"""
          v_mov_b32 v28, v{vSel}
          v_mov_b32 v29, v{vSel+1}
          v_mov_b32 v30, v{vSel}
          v_mov_b32 v31, v{vSel+1}
        """)
                    self.adv(a)
                    a("v_permlane16_swap_b32 v28, v30\n v_permlane16_swap_b32 v29, v31")
                    self.pref_frags(a,w); self.zero(a,36,46)
                    a(f"v_and_b32 v46, 0xf0, v{vL16}")
    def zero(self,a,lo,hi):
        for r in range(lo,hi,2): a(f"v_mov_b64 v[{r}:{r+1}], 0")
    def loop(self,a,w,lab):
        N=self.block(w)
        avail={}
        for r in R(12,12): avail[r]=0
        avail['b1']=70
        order,t=sched.schedule(N,avail=avail)
        print(f'wave {w}: predicted block cycles {t}, rest {self.rest}')
        PM=f"s[{sPM}:{sPM+3}]"
        a(f"s_add_u32 s{sTCH}, s{sXK}, {32*16384}\n s_mov_b32 m0, {LDS_SX+w*1024}")
        self.pref_frags(a,w); self.zero(a,32,46)
        if w==3: a(f"v_mov_b32 v{vPub}, 1")
        a(f"s_mov_b32 s{sCNT}, 400000\n s_waitcnt lgkmcnt(0)\n s_branch {lab}_g0")
        def gissue(q):
            a(f"buffer_load_dwordx4 v[{q[0]}:{q[0]+3}], v{vL16}, {PM}, s{sMg} offen sc1")
            a(f"buffer_load_dwordx4 v[{q[1]}:{q[1]+3}], v{vL16}, {PM}, s{sMg+1} offen sc1")
            a(f"buffer_load_dwordx4 v[{q[2]}:{q[2]+3}], v46, {PM}, s{sMg+2} offen sc1")
        def gcheck(q):
            a(f"""
  ds_write_b128 v{vMB}, v[{q[0]}:{q[0]+3}] offset:{w*1024}
  ds_write_b128 v{vMB}, v[{q[1]}:{q[1]+3}] offset:{(4+w)*1024}
  v_max3_u32 v24, v{q[0]}, v{q[0]+1}, v{q[0]+2}
  v_max3_u32 v26, v{q[0]+3}, v{q[1]}, v{q[1]+1}
  s_mov_b64 exec, 0xffff
  ds_write_b128 v{vMB}, v[{q[2]}:{q[2]+3}] offset:{8192+w*256}
  s_mov_b64 exec, -1
  v_max3_u32 v24, v24, v{q[1]+2}, v{q[1]+3}
  v_max3_u32 v26, v26, v{q[2]}, v{q[2]+1}
  v_max3_u32 v24, v24, v{q[2]+2}, v{q[2]+3}
  v_max_u32 v24, v24, v26
  v_cmp_eq_u32 vcc, -1, v24
""")
        G0=(12,16,20)
        def gcheck2(q):
            a(f"""
  v_max3_u32 v24, v{q[0]}, v{q[0]+1}, v{q[0]+2}
  v_max3_u32 v26, v{q[0]+3}, v{q[1]}, v{q[1]+1}
  v_max3_u32 v24, v24, v{q[1]+2}, v{q[1]+3}
  v_max3_u32 v26, v26, v{q[2]}, v{q[2]+1}
  v_max3_u32 v24, v24, v{q[2]+2}, v{q[2]+3}
  v_max_u32 v24, v24, v26
  v_cmp_eq_u32 vcc, -1, v24
""")
        a(f"{lab}_gl:")
        a("s_mov_b64 exec, vcc"); gissue(G0); a("s_mov_b64 exec, -1")
        a(f"s_add_u32 s{sR2}, s{sR2}, 1\n s_sub_u32 s{sCNT}, s{sCNT}, 1\n s_cmp_eq_u32 s{sCNT}, 0\n s_cbranch_scc1 {lab}_exit\n s_waitcnt vmcnt({3*(self.DG-1)})")
        a(f"{lab}_g0:")
        gcheck2(G0)
        a(f"s_cbranch_vccnz {lab}_gl")
        a(f"""
  ds_write_b128 v{vMB}, v[12:15] offset:{w*1024}
  ds_write_b128 v{vMB}, v[16:19] offset:{(4+w)*1024}
  s_mov_b64 exec, 0xffff
  ds_write_b128 v{vMB}, v[20:23] offset:{8192+w*256}
  s_mov_b64 exec, -1
""")
        a(f"{lab}_have:\n v_mov_b64 v[46:47], 0")
        self.stamp(a,0)
        if self.timing: a("s_waitcnt lgkmcnt(0)")
        hooks={}
        if self.timing:
            for k,tg in enumerate(self.marks): hooks[tg]=f"{self.tinst} s[{6+2*k}:{7+2*k}]"
        sched.emit(a,order,ds_init=[R(56,4),R(60,4),R(64,4),R(68,4),set(),set(),(set(),'mw')],
                   vm_waw=[R(12,4),R(16,4),R(20,4)]*(self.DG-1),show_t=self.show,hooks=hooks)
        self.stamp(a,5)
        a(f"s_cmp_eq_u32 s{sSTEP}, {self.steps-1}\n s_cbranch_scc1 {lab}_exit")
        if self.fused and w==3:
            a(f"""
  s_cmp_eq_u64 s[{sNR}:{sNR+1}], 0
  s_cbranch_scc1 {lab}_fok
  s_mov_b32 s75, 4000000
{lab}_fpoll:
  buffer_load_dword v28, off, s[{sWSR}:{sWSR+3}], s{sFKV} sc1
  s_waitcnt vmcnt(0)
  v_readfirstlane_b32 s74, v28
  s_sub_u32 s75, s75, 1
  s_cmp_eq_u32 s75, 0
  s_cbranch_scc1 {lab}_fok
  s_cmp_eq_u32 s74, 0
  s_cbranch_scc1 {lab}_fpoll
{lab}_fok:
""")
        if self.isjob(w):
            if w==2: a(f"s_cmp_eq_u32 s{sJOB}, 0\n s_cbranch_scc1 {lab}_nojob")
            if self.d1 and self.DP>1: a(nops(self.d1))
            self.d1b=self.d1 if self.DP==1 else 0
            A=[12,16,20,24]
            def pissue(q):
                for k in range(4): a(f"buffer_load_dwordx4 v[{q[k]}:{q[k]+3}], v{vPld}, {PM}, s{sPl+k} offen sc1")
            def pcheck(q,base,prog):
                for k in range(4):
                    if prog or k==0: a(f"s_waitcnt vmcnt({base+(3-k if prog else 0)})")
                    a(f"v_mfma_f32_16x16x32_bf16 v[32:35], v[{q[k]}:{q[k]+3}], v[28:31], {'0' if k==0 else 'v[32:35]'}")
                a(f"""
  v_max3_u32 v48, v12, v13, v14
  v_max3_u32 v49, v15, v16, v17
  v_max3_u32 v48, v48, v18, v19
  v_max3_u32 v49, v49, v20, v21
  v_max3_u32 v48, v48, v22, v23
  v_max3_u32 v49, v49, v24, v25
  v_max3_u32 v48, v48, v26, v27
  v_max_u32 v48, v48, v49
  v_cmp_eq_u32 s[76:77], -1, v48
  v_permlane32_swap_b32 v32, v34
  v_permlane32_swap_b32 v33, v35
  v_pk_add_f32 v[32:33], v[32:33], v[34:35]
  v_cmp_u_f32 vcc, v32, v33
""")
            if self.DP>1: pissue(A)
            self.jobshadow(a,w)
            if self.DP==1 and self.d1b: a(nops(self.d1b))
            for k in range(self.DP-2):
                if self.g1: a(nops(self.g1))
                pissue(A)
            a("s_mov_b64 s[76:77], -1")
            a(f"{lab}_pl:")
            a("s_mov_b64 exec, s[76:77]"); pissue(A); a("s_mov_b64 exec, -1")
            a(f"s_add_u32 s{sR1}, s{sR1}, 1\n s_sub_u32 s{sCNT}, s{sCNT}, 1\n s_cmp_eq_u32 s{sCNT}, 0\n s_cbranch_scc1 {lab}_exit")
            pcheck(A,4*(self.DP-1),True)
            a(f"s_cbranch_vccnz {lab}_pl")
            a(f"""
{lab}_pub:
  v_cvt_pk_bf16_f32 v28, v32, v33
  s_mov_b64 exec, s[{sMASK8}:{sMASK8+1}]
  buffer_store_dword v28, v{vPub}, {PM}, s{sMP} offen {self.stflag}
""")
            if self.dbgM:
                a(f"""
  s_mul_i32 s74, s{sSTEP}, 9216
  s_add_u32 s74, s74, {DBG_OFF}
  buffer_store_dword v28, v{vPub}, s[{sWSR}:{sWSR+3}], s74 offen
""")
            a("s_mov_b64 exec, -1")
            self.stamp(a,6)
            self.zero(a,32,36)
            if self.d2j: a(nops(self.d2j))
            self.stamp(a,7); self.stamp_acc(a,8)
            a(f"s_branch {lab}_gpre")
            a(f"{lab}_nojob:")
        if w>=2:
            self.adv(a)
            self.pref_frags(a,w)
            self.zero(a,32,46)
            a(f"v_and_b32 v46, 0xf0, v{vL16}")
            self.stamp(a,6)
            if self.d2n: a(nops(self.d2n))
            self.stamp(a,7); self.stamp_acc(a,8)
        a(f"{lab}_gpre:")
        if self.DG==1: a(f"s_add_u32 s{sSTEP}, s{sSTEP}, 1")
        for k in range(self.DG-1):
            gissue(G0)
            if k==0: a(f"s_add_u32 s{sSTEP}, s{sSTEP}, 1")
            if self.g2: a(nops(self.g2))
        a(f"s_mov_b64 vcc, -1\n s_branch {lab}_gl")
```

```python
import hazard
MFI=8; PKI=4; STX4=20
class Node:
    __slots__=('text','lines','kind','dst','src','idx','preds','succs','prio','t','issue','tag','after','ldsbytes','ins','vm','pin','srcAB','srcC','passes','trans','perm','dpp','dsdst','vmdst','nds','nvm','isbar','needds','needvm')
def mk(text,tag=None,after=(),prio_add=0):
    n=Node(); n.text=text; n.lines=[l.strip() for l in text.split('\n') if l.strip()]
    n.ins=[i for i in (hazard.parse(l) for l in n.lines) if i]
    n.dst=set(); n.src=set(); n.kind='other'; n.issue=0; n.tag=tag; n.after=list(after)
    n.srcAB=set(); n.srcC=set(); n.passes=0; n.trans=False; n.perm=False; n.dpp=False
    n.dsdst=set(); n.vmdst=set(); n.nds=0; n.nvm=0; n.isbar=False; n.ldsbytes=0; n.pin=prio_add
    n.needds=[]; n.needvm=[]
    for i in n.ins:
        d={r for r in i.dst if r!=('s','exec')}; s={r for r in i.src if r!=('s','exec')}
        n.dst|=d; n.src|=s
        c=4
        if i.kind=='mfma':
            n.kind='mfma'; n.passes=i.passes; n.srcAB|=i.srcAB; n.srcC|=i.srcC; c=MFI
        elif i.kind=='valu':
            if n.kind=='other' or n.kind=='salu': n.kind='valu'
            if getattr(i,'trans',False): n.trans=True; c=8
            if getattr(i,'perm',False): n.perm=True
            if i.dpp: n.dpp=True
            if i.op.startswith('v_pk_'): c=PKI
        elif i.kind=='ds':
            n.kind='ds'; n.nds+=1
            if i.op.startswith('ds_read'): n.dsdst|=i.dst
            n.ldsbytes+= 1024 if 'b128' in i.op else 512
            if i.op.startswith('ds_write'): c=12 if 'b128' in i.op else 8
        elif i.kind=='vmem':
            n.kind='vmem'; n.nvm+=1; c=8
            if 'store' in i.op and 'x4' in i.op: c=STX4
            if i.dst: n.vmdst|=i.dst
        elif i.op=='s_barrier': n.kind='bar'; n.isbar=True
        elif i.kind=='nop': c=4*i.w
        elif i.kind=='salu':
            if n.kind=='other': n.kind='salu'
        n.issue+=c
    return n
DSLAT=120; VMLAT=500; BARLAT=40; WBAR=70
def lat_raw(p,c,regs):
    if regs & p.dsdst: return DSLAT
    if regs & p.vmdst: return VMLAT
    if p.kind=='mfma':
        base=4*p.passes
        if c.kind=='mfma' and (regs<=c.srcC) and not (regs & c.srcAB): return base
        return base+ 20
    if p.kind=='valu':
        d=p.issue
        if c.kind=='mfma' or c.perm or c.dpp: d+=8
        if p.trans: d+=4
        if any(r[0]=='s' for r in regs): d+=8 if c.kind=='valu' else (20 if c.kind=='vmem' else 0)
        return d
    return p.issue
def schedule(nodes, verbose=False, ldsrate=16, avail=None):
    N=len(nodes)
    for i,n in enumerate(nodes): n.idx=i; n.preds=[]; n.succs=[]
    tags={n.tag:n for n in nodes if n.tag is not None}
    def edge(p,c,d):
        c.preds.append((p,d)); p.succs.append((c,d))
    lastw={}; readers={}
    lastbar=None
    vmorder=None
    for c in nodes:
        for r in c.src:
            if r in lastw:
                p=lastw[r]; edge(p,c,lat_raw(p,c,{r}|((p.dst&c.src))))
        for r in c.dst:
            if r in lastw:
                p=lastw[r]
                if not (r in c.src): edge(p,c,lat_raw(p,c,{r}) if (p.kind=='mfma' or r in p.dsdst or r in p.vmdst) else p.issue)
            for p in readers.get(r,[]):
                if p is c: continue
                d=p.issue
                if p.kind=='mfma' and c.kind=='valu': d=16 if r in p.srcC else 8
                if p.kind=='vmem' and c.kind=='valu': d=p.issue+8
                edge(p,c,d)
        for r in c.src: readers.setdefault(r,[]).append(c)
        for r in c.dst: lastw[r]=c; readers[r]=[x for x in readers.get(r,[]) if x is c]
        for t in c.after:
            if t not in tags: continue
            p=tags[t]
            d=p.issue
            if c.isbar and p.kind=='ds': d=WBAR
            if p.isbar: d=BARLAT
            edge(p,c,d)
        if c.isbar:
            if lastbar: edge(lastbar,c,40)
            lastbar=c
        if c.kind=='vmem':
            if vmorder: edge(vmorder,c,vmorder.issue)
            vmorder=c
    for n in reversed(nodes):
        n.prio=n.issue+n.pin
        for c,d in n.succs: n.prio=max(n.prio,d+c.prio+n.pin)
    done=set(); order=[]; t=0; pipe=0; dsfree=0
    npred={n.idx:len(n.preds) for n in nodes}
    earliest={n.idx:0 for n in nodes}
    if avail:
        seenw=set()
        for n in nodes:
            for r in n.src:
                if r in avail and r not in seenw: earliest[n.idx]=max(earliest[n.idx],avail[r])
            if n.tag in avail: earliest[n.idx]=max(earliest[n.idx],avail[n.tag])
            seenw|=n.dst
    ready=[n for n in nodes if npred[n.idx]==0]
    while len(order)<N:
        cand=[n for n in ready if earliest[n.idx]<=t and not (n.kind=='mfma' and pipe>t)]
        if not cand:
            nxt=min(max(earliest[n.idx], pipe if n.kind=='mfma' else 0) for n in ready)
            t=max(t+1,nxt); continue
        n=max(cand,key=lambda x:(x.prio,-x.idx))
        n.t=t; order.append(n); ready.remove(n)
        extra=0
        if n.kind=='mfma': pipe=t+4*n.passes
        if n.kind=='ds':
            st=max(t,dsfree); dsfree=st+ldsrate*n.ldsbytes//1024; extra=st-t
        for c,d in n.succs:
            dd=d+(extra if d>=DSLAT else 0)
            earliest[c.idx]=max(earliest[c.idx],t+dd)
            npred[c.idx]-=1
            if npred[c.idx]==0: ready.append(c)
        t+=n.issue if not n.isbar else 40
    return order,t
def emit(a,order,ds_init=None,vm_init=None, show_t=False, hooks=None, vm_waw=None):
    dsq=[]
    vmq=[]
    tagpos={}
    for r in (ds_init or []):
        if isinstance(r,tuple): dsq.append((None,set(r[0]))); tagpos[r[1]]=('ds',len(dsq)-1)
        else: dsq.append((None,set(r)))
    for r in (vm_init or []): vmq.append((None,set(r)))
    waw=[set(r) for r in (vm_waw or [])]
    nw0=len(vmq)
    for r in waw: vmq.append((None,set()))
    dsdone=0; vmdone=0
    for n in order:
        use=(n.src|n.dst)
        need=-1
        for k in range(len(dsq)-1,dsdone-1,-1):
            if dsq[k][1] & use: need=k; break
        if n.isbar:
            for t in n.after:
                if t in tagpos and tagpos[t][0]=='ds': need=max(need,tagpos[t][1])
        if need>=dsdone:
            cnt=min(len(dsq)-1-need,15)
            a(f"s_waitcnt lgkmcnt({cnt})"); dsdone=len(dsq)-cnt
        need=-1
        usev=(use-n.vmdst)|n.src if n.kind=='vmem' else use
        for k in range(len(vmq)-1,vmdone-1,-1):
            if vmq[k][1] & usev: need=k; break
        wr=(n.dst-n.vmdst)
        for k,r in enumerate(waw):
            if r & wr: need=max(need,nw0+k)
        if need>=vmdone:
            cnt=min(len(vmq)-1-need,63)
            a(f"s_waitcnt vmcnt({cnt})"); vmdone=len(vmq)-cnt
        if show_t: a.c(f"t={n.t}")
        a(n.text)
        if hooks and n.tag in hooks: a(hooks[n.tag])
        for i in n.ins:
            if i.kind=='ds':
                dsq.append((n,set(i.dst) if i.op.startswith('ds_read') else set()))
            elif i.kind=='vmem':
                vmq.append((n,set(i.dst)))
        if n.tag is not None:
            if n.kind=='ds': tagpos[n.tag]=('ds',len(dsq)-1)
    return len(dsq)-dsdone, len(vmq)-vmdone
```

```python
from common import *
SCALE=128**-0.5
KM6=False
Q=8
K=40
V=72
KM=104
VM=120
SX=136
SM=148
PX=156
PM=164
OT=168
TM=232
def r4_consts(a):
    a(f"""
  v_lshlrev_b32 v2, 4, v{vLANE}          ; lane*16
  v_and_b32 v3, 15, v{vLANE}             ; q
  v_lshrrev_b32 v4, 4, v{vLANE}          ; g
  v_lshrrev_b32 v5, 1, v4
  v_lshlrev_b32 v5, 10, v5
  v_and_b32 v6, 1, v4
  v_lshlrev_b32 v6, 9, v6
  v_add_u32 v5, v5, v6
  v_lshlrev_b32 v6, 4, v3
  v_add_u32 v5, v5, v6                   ; v5
  v_lshlrev_b32 v6, 2, v4
""")
    for r in range(4):
        a(f"v_add_u32 v7, {r}, v6\n v_cmp_le_u32 s[{40+2*r}:{41+2*r}], v7, v3")
    a(f"""
  s_mov_b32 s48, {f2u(SCALE*LOG2E):#x}
  v_mov_b32 v6, 0xff800000
  v_cmp_gt_u32 s[50:51], 32, v{vLANE}     ; lanes g<2
""")
def r4_loads(a,sU,ld='',kmld=''):
    a(f"""
  s_lshl_b32 s52, s{sU}, 13
  s_add_u32 s53, s52, {QX_OFF}
  s_add_u32 s54, s52, {KMVM_OFF}
  s_lshl_b32 s55, s{sU}, 14
  s_add_u32 s55, s55, {XKV_OFF}
""")
    def grp(dst,sreg,n,base):
        for i in range(n):
            off=base+i*1024
            if off%4096==0 and off>0 or (i==0 and base>0 and False): pass
            so=off//4096
            if so>0:
                a(f"s_add_u32 s56, s{sreg}, {so*4096}")
                a(f"buffer_load_dwordx4 v[{dst+4*i}:{dst+4*i+3}], v2, s[32:35], s56 offen offset:{off%4096} {ld}")
            else:
                a(f"buffer_load_dwordx4 v[{dst+4*i}:{dst+4*i+3}], v2, s[32:35], s{sreg} offen offset:{off} {ld}")
    grp(Q,53,8,0); grp(K,55,8,0); grp(V,55,8,8192)
    for w in range(4):
        so=w*2048
        a(f"s_add_u32 s56, s54, {so}")
        a(f"buffer_load_dwordx4 v[{KM+4*w}:{KM+4*w+3}], v2, s[32:35], s56 offen {kmld}")
        a(f"buffer_load_dwordx4 v[{VM+4*w}:{VM+4*w+3}], v2, s[32:35], s56 offen offset:1024 {kmld}")
def red4(a,op,r,t):
    a(f"""
  v_mov_b32 v{t}, v{r}
  s_nop 1
  v_permlane16_swap_b32 v{r}, v{t}
  {op} v{r}, v{r}, v{t}
  v_mov_b32 v{t}, v{r}
  s_nop 1
  v_permlane32_swap_b32 v{r}, v{t}
  {op} v{r}, v{r}, v{t}
""")
def r4_compute(a,sU,stflag=''):
    q=lambda w,qt: f"v[{Q+(w*2+qt)*4}:{Q+(w*2+qt)*4+3}]"
    k=lambda w,kt: f"v[{K+(w*2+kt)*4}:{K+(w*2+kt)*4+3}]"
    sx={(0,0):SX,(0,1):SX+4,(1,1):SX+8}
    a("s_waitcnt vmcnt(16)")
    for w in range(4):
        for (kt,qt),d in sx.items():
            C='0' if w==0 else f"v[{d}:{d+3}]"
            a(f"v_mfma_f32_16x16x32_bf16 v[{d}:{d+3}], {k(w,kt)}, {q(w,qt)}, {C}")
    a("s_waitcnt vmcnt(0)")
    for w in range(4):
        for qt in range(2):
            d=SM+4*qt
            C='0' if w==0 else f"v[{d}:{d+3}]"
            a(f"v_mfma_f32_16x16x32_bf16 v[{d}:{d+3}], v[{KM+4*w}:{KM+4*w+3}], {q(w,qt)}, {C}")
    a("s_nop 7")
    for d in (sx[(0,0)],sx[(1,1)]):
        for r in range(4): a(f"v_cndmask_b32 v{d+r}, v6, v{d+r}, s[{40+2*r}:{41+2*r}]")
    for qt in range(2):
        tiles=[SM+4*qt]+([sx[(0,0)]] if qt==0 else [sx[(0,1)],sx[(1,1)]])
        m=TM+qt; t=TM+2+qt; l=TM+4+qt
        regs=[x+r for x in tiles for r in range(4)]
        a(f"v_max3_f32 v{m}, v{regs[0]}, v{regs[1]}, v{regs[2]}")
        i=3
        while i<len(regs):
            if i+1<len(regs): a(f"v_max3_f32 v{m}, v{m}, v{regs[i]}, v{regs[i+1]}"); i+=2
            else: a(f"v_max_f32 v{m}, v{m}, v{regs[i]}"); i+=1
        red4(a,'v_max_f32',m,t)
        a(f"v_mul_f32 v{m}, s48, v{m}")
        for x in regs: a(f"v_fma_f32 v{x}, v{x}, s48, -v{m}")
        for x in regs: a(f"v_exp_f32 v{x}, v{x}")
        sm=SM+4*qt
        if KM6:
            a(f"v_add_f32 v{l}, v{sm}, v{sm+2}")
        else:
            a(f"v_add_f32 v{l}, v{sm}, v{sm+1}\n v_add_f32 v{t}, v{sm+2}, v{sm+3}\n v_add_f32 v{l}, v{l}, v{t}")
            a(f"v_cndmask_b32 v{l}, 0, v{l}, s[50:51]")
        for x in regs[4:]: a(f"v_add_f32 v{l}, v{l}, v{x}")
        red4(a,'v_add_f32',l,t)
        a(f"v_rcp_f32 v{l}, v{l}")
        a(f"v_cvt_pk_bf16_f32 v{PM+2*qt}, v{sm}, v{sm+1}\n v_cvt_pk_bf16_f32 v{PM+2*qt+1}, v{sm+2}, v{sm+3}")
        p=PX+4*qt
        d0=sx[(0,qt)]
        a(f"v_cvt_pk_bf16_f32 v{p}, v{d0}, v{d0+1}\n v_cvt_pk_bf16_f32 v{p+1}, v{d0+2}, v{d0+3}")
        if qt==0: a(f"v_mov_b32 v{p+2}, 0\n v_mov_b32 v{p+3}, 0")
        else:
            d1=sx[(1,1)]
            a(f"v_cvt_pk_bf16_f32 v{p+2}, v{d1}, v{d1+1}\n v_cvt_pk_bf16_f32 v{p+3}, v{d1+2}, v{d1+3}")
    a("s_nop 1")
    for qt in range(2):
        for w in range(4):
            for t in range(2):
                d=OT+qt*32+(w*2+t)*4
                a(f"v_mfma_f32_16x16x32_bf16 v[{d}:{d+3}], v[{V+(w*2+t)*4}:{V+(w*2+t)*4+3}], v[{PX+4*qt}:{PX+4*qt+3}], 0")
        for w in range(4):
            for t in range(2):
                d=OT+qt*32+(w*2+t)*4
                a(f"v_mfma_f32_16x16x16_bf16 v[{d}:{d+3}], v[{VM+4*w+2*t}:{VM+4*w+2*t+1}], v[{PM+2*qt}:{PM+2*qt+1}], v[{d}:{d+3}]")
    a(f"s_lshl_b32 s52, s{sU}, 13\n s_add_u32 s52, s52, {OX_OFF}\n s_nop 6")
    for qt in range(2):
        l=TM+4+qt
        for w in range(4):
            b=OT+qt*32+w*8
            for r in range(8): a(f"v_mul_f32 v{b+r}, v{b+r}, v{l}")
            o=TM+8+4*(w&1)
            for k2 in range(4): a(f"v_cvt_pk_bf16_f32 v{o+k2}, v{b+2*k2}, v{b+2*k2+1}")
            off=w*2048+qt*256
            if off>=4096:
                a(f"s_add_u32 s56, s52, 4096\n buffer_store_dwordx4 v[{o}:{o+3}], v5, s[32:35], s56 offen offset:{off-4096} {stflag}")
            else:
                a(f"buffer_store_dwordx4 v[{o}:{o+3}], v5, s[32:35], s52 offen offset:{off} {stflag}")
def r4_kernel(name,nwg=256):
    a=Asm(); load_ptrs(a)
    a(f"s_cmp_ge_u32 s2, {nwg}\n s_cbranch_scc1 .L{name}_end")
    srd(a,32,sWS,WS_BYTES)
    r4_consts(a)
    a(f"s_lshl_b32 s60, s2, 2\n s_add_u32 s60, s60, s{sW}\n.L{name}_loop:")
    r4_loads(a,60)
    r4_compute(a,60)
    a(f"s_add_u32 s60, s60, {4*nwg}\n s_cmp_lt_u32 s60, 2048\n s_cbranch_scc1 .L{name}_loop")
    a(f".L{name}_end:\n s_endpgm")
    return a,nwg

def r4_role(a,lab,sIDX,nwaves=128,stamp_fn=None):
    nj=nwaves//32
    srd(a,32,sWS,WS_BYTES)
    r4_consts(a)
    a(f"""
  s_lshl_b32 s60, s{sIDX}, 2
  s_add_u32 s60, s60, s{sW}          ; u
  s_and_b32 s61, s60, 31             ; h
  s_lshr_b32 s62, s60, 5             ; seg
  v_mov_b32 v249, 1
{lab}_loop:
  s_lshl_b32 s63, s62, 7
  s_lshl_b32 s64, s61, 2
  s_add_u32 s64, s64, s63
  s_add_u32 s64, s64, {F_KM}         ; F_KM[s][h]
  s_lshr_b32 s65, s61, 1
  s_lshl_b32 s65, s65, 2
  s_add_u32 s65, s65, s63
  s_add_u32 s65, s65, {F_Q}          ; F_Q[s][h>>1]
  v_mov_b32 v248, s64
  v_mov_b32 v250, s65
  v_cmp_eq_u32 vcc, 0, v{vLANE}
  s_nop 1
  v_cndmask_b32 v248, v250, v248, vcc
""")
    wait_words(a,248,3,sleep=2)
    a(f"s_lshl_b32 s60, s62, 5\n s_add_u32 s60, s60, s61")
    r4_loads(a,60,ld='sc1',kmld='sc1')
    r4_compute(a,60,stflag='sc1')
    a(f"""
  s_add_u32 s64, s64, {F_OX-F_KM}
  s_waitcnt vmcnt(0)
  s_mov_b64 exec, 1
  buffer_store_dword v249, off, s[32:35], s64 sc1
  s_mov_b64 exec, -1
  s_add_u32 s62, s62, {nj}
  s_cmp_lt_u32 s62, 64
  s_cbranch_scc1 {lab}_loop
""")
```

```python
import sys
sys.path.insert(0,'gen')
from asmlib import *
import rec, rec2, rec3, sched
from rec import *
from rec2 import *
from rec3 import *
import common as C
MREL4=4*PSLOT
assert MREL4+4*MSLOT<=2*MB
sPRs=59
sMRs=87
sRM=82
class Rec5(Rec3):
    marks=['b1','sw','b2','b3']
    ringQK=(24,28,76); ringV=(24,28,20)
    def __init__(self, d1=0, g1=60, d2j=0, g2=100, d2n=700, dr=0, DG=3, DP=3, noex=0, **kw):
        self.noex=noex
        super().__init__(d1=d1,d2j=d2j,d2n=d2n,**kw)
        self.g1=g1; self.g2=g2; self.dr=dr; self.DG=DG; self.DP=DP
    def mreset_addr(self,a,d,t):
        a(f"""
  v_lshrrev_b32 v{d}, 7, v{vL16}
  v_lshlrev_b32 v{d}, 12, v{d}
  v_and_b32 v{t}, 0x70, v{vL16}
  v_add_u32 v{d}, v{d}, v{t}
""")
    def init_nan(self,a):
        a(f"""
  v_mov_b32 v64, -1
  v_mov_b32 v65, -1
  v_mov_b32 v66, -1
  v_mov_b32 v67, -1
  s_add_u32 s4, s{sWS}, {P_OFF}
  s_addc_u32 s5, s{sWS+1}, 0
  s_mul_i32 s77, s{sW}, {PSLOT}
  s_mul_i32 s79, s{sH}, 9216
  s_add_u32 s77, s77, s79
  v_add_u32 v68, s77, v{vL16}
""")
        for k in range(9):
            a(f"global_store_dwordx4 v68, v[64:67], s[4:5]\n v_add_u32 v68, 1024, v68")
        l=a.newlabel('n4')
        a(f"""
  s_cmp_lg_u32 s{sW}, 3
  s_cbranch_scc1 {l}
  s_mov_b32 s{sRM}, 0xffff
  s_cmp_lt_u32 s{sH}, 8
  s_cselect_b32 s{sRM}, 0xffffff, s{sRM}
  s_mov_b32 s{sRM+1}, 0
""")
        self.mreset_addr(a,68,69)
        a(f"""
  s_lshl_b32 s77, s{sH}, 7
  s_add_u32 s77, s77, {MREL4}
  v_add_u32 v68, s77, v68
  s_mov_b64 exec, s[{sRM}:{sRM+1}]
""")
        for k in range(4):
            a(f"global_store_dwordx4 v68, v[64:67], s[4:5]\n v_add_u32 v68, {MSLOT}, v68")
        a(f"s_mov_b64 exec, -1\n{l}:")
    def scalars(self,a):
        super().scalars(a)
    def extra_top(self,n,w):
        class L(list):
            def __call__(s,txt):
                for l in txt.split('\n'):
                    if l.strip(): s.append(l.strip())
        L_=L(); self.slot_scalars(L_,w)
        for l in L_: n(l)
    def slot_scalars(self,a,w):
        a(f"""
  s_and_b32 s74, s{sSTEP}, 3
  s_mul_i32 s{sPS}, s74, {PSLOT}
  s_add_u32 s{sPst}, s{sPS}, s{sHP}
  s_add_u32 s{sPst2}, s{sPst}, 4096
  s_add_u32 s75, s{sSTEP}, 1
  s_and_b32 s75, s75, 3
  s_mul_i32 s75, s75, {MSLOT}
  s_add_u32 s{sMP}, s75, {MREL4}
  s_add_u32 s{sMg}, s{sMP}, s{sWK}
  s_add_u32 s{sMg+1}, s{sMg}, 4096
  s_add_u32 s{sMg+2}, s{sMP}, s{sWQ}
""")
        if self.isjob(w):
            for i in range(4): a(f"s_add_u32 s{sPl+i}, s{sPS}, {i*73728}")
        a(f"""
  s_add_u32 s76, s{sSTEP}, 3
  s_and_b32 s76, s76, 3
  s_mul_i32 s77, s76, {PSLOT}
  s_add_u32 s{sPRs}, s77, s{sHP}
  s_add_u32 s78, s{sPRs}, 4096
""")
        if w==2: a(f"s_add_u32 s79, s{sPRs}, 8192")
        if w==3:
            a(f"""
  s_mul_i32 s77, s76, {MSLOT}
  s_lshl_b32 s76, s{sH}, 7
  s_add_u32 s77, s77, s76
  s_add_u32 s{sMRs}, s77, {MREL4}
""")
    def extra_b3(self,n,w):
        PM=f"s[{sPM}:{sPM+3}]"
        if w==3:
            n(f"v_lshrrev_b32 v42, 7, v{vL16}"); n("v_lshlrev_b32 v42, 12, v42"); n(f"v_and_b32 v43, 0x70, v{vL16}"); n("v_add_u32 v42, v42, v43")
        n("v_mov_b64 v[44:45], -1"); n("v_mov_b64 v[46:47], -1")
        n(f"buffer_store_dwordx4 v[44:47], v{vL16}, {PM}, s{sPRs} offen offset:{w*1024}")
        n(f"buffer_store_dwordx4 v[44:47], v{vL16}, {PM}, s78 offen offset:{w*1024}")
        if w==2: n(f"buffer_store_dwordx4 v[44:47], v{vL16}, {PM}, s79 offen")
        if w==3: n(f"s_mov_b64 exec, s[{sRM}:{sRM+1}]\n buffer_store_dwordx4 v[44:47], v42, {PM}, s{sMRs} offen\n s_mov_b64 exec, -1")
    def jobshadow(self,a,w):
                    a(f"""
          v_mov_b32 v28, v{vSel}
          v_mov_b32 v29, v{vSel+1}
          v_mov_b32 v30, v{vSel}
          v_mov_b32 v31, v{vSel+1}
        """)
                    self.adv(a)
                    a("v_permlane16_swap_b32 v28, v30\n v_permlane16_swap_b32 v29, v31")
                    self.pref_frags(a,w); self.zero(a,36,46)
                    a(f"v_and_b32 v46, 0xf0, v{vL16}")
    def job_reduce_tail(self,a):
        a("""
  v_permlane32_swap_b32 v32, v34
  v_permlane32_swap_b32 v33, v35
  v_pk_add_f32 v[32:33], v[32:33], v[34:35]
  v_cmp_u_f32 vcc, v32, v33
""")
    def job_mfma(self,C,Q): return f"v_mfma_f32_16x16x32_bf16 v[32:35], v[{Q}:{Q+3}], v[28:31], {C}"
    def job_pack(self,a): a("v_cvt_pk_bf16_f32 v28, v32, v33")
    vG=vL16
    zextra=()
    def v46(self): return f"v_and_b32 v46, 0xf0, v{vL16}"
    def zero(self,a,lo,hi):
        for r in range(lo,hi,2): a(f"v_mov_b64 v[{r}:{r+1}], 0")
    def loop(self,a,w,lab):
        N=self.block(w)
        avail={}
        for r in R(12,12): avail[r]=0
        avail['b1']=70
        order,t=sched.schedule(N,avail=avail)
        print(f'wave {w}: predicted block cycles {t}, rest {self.rest}', ' '.join(f'{n.tag}:{n.t}' for n in order if n.tag))
        PM=f"s[{sPM}:{sPM+3}]"
        a(f"s_add_u32 s{sTCH}, s{sXK}, {32*16384+(w*2048 if self.touch==2 else 0)}\n s_mov_b32 m0, {LDS_SX+w*1024}")
        self.pref_frags(a,w); self.zero(a,32,46)
        if w==3: a(f"v_mov_b32 v{vPub}, 1")
        a(f"s_mov_b32 s{sCNT}, 400000\n s_waitcnt lgkmcnt(0)\n s_branch {lab}_g0")
        def gissue(q):
            a(f"buffer_load_dwordx4 v[{q[0]}:{q[0]+3}], v{self.vG}, {PM}, s{sMg} offen sc1")
            a(f"buffer_load_dwordx4 v[{q[1]}:{q[1]+3}], v{self.vG}, {PM}, s{sMg+1} offen sc1")
            a(f"buffer_load_dwordx4 v[{q[2]}:{q[2]+3}], v46, {PM}, s{sMg+2} offen sc1")
        def gcheck(q):
            a(f"""
  ds_write_b128 v{vMB}, v[{q[0]}:{q[0]+3}] offset:{w*1024}
  ds_write_b128 v{vMB}, v[{q[1]}:{q[1]+3}] offset:{(4+w)*1024}
  v_max3_u32 v24, v{q[0]}, v{q[0]+1}, v{q[0]+2}
  v_max3_u32 v26, v{q[0]+3}, v{q[1]}, v{q[1]+1}
  s_mov_b64 exec, 0xffff
  ds_write_b128 v{vMB}, v[{q[2]}:{q[2]+3}] offset:{8192+w*256}
  s_mov_b64 exec, -1
  v_max3_u32 v24, v24, v{q[1]+2}, v{q[1]+3}
  v_max3_u32 v26, v26, v{q[2]}, v{q[2]+1}
  v_max3_u32 v24, v24, v{q[2]+2}, v{q[2]+3}
  v_max_u32 v24, v24, v26
  v_cmp_eq_u32 vcc, -1, v24
""")
        G0=(12,16,20)
        def gcheck2(q):
            a(f"""
  v_max3_u32 v24, v{q[0]}, v{q[0]+1}, v{q[0]+2}
  v_max3_u32 v26, v{q[0]+3}, v{q[1]}, v{q[1]+1}
  v_max3_u32 v24, v24, v{q[1]+2}, v{q[1]+3}
  v_max3_u32 v26, v26, v{q[2]}, v{q[2]+1}
  v_max3_u32 v24, v24, v{q[2]+2}, v{q[2]+3}
  v_max_u32 v24, v24, v26
  v_cmp_eq_u32 vcc, -1, v24
""")
        a(f"{lab}_gl:")
        a("s_mov_b64 exec, vcc"); gissue(G0); a("s_mov_b64 exec, -1")
        a(f"s_add_u32 s{sR2}, s{sR2}, 1\n s_sub_u32 s{sCNT}, s{sCNT}, 1\n s_cmp_eq_u32 s{sCNT}, 0\n s_cbranch_scc1 {lab}_exit\n s_waitcnt vmcnt({3*(self.DG-1)})")
        a(f"{lab}_g0:")
        gcheck2(G0)
        a(f"s_cbranch_vccnz {lab}_gl")
        a(f"""
  ds_write_b128 v{vMB}, v[12:15] offset:{w*1024}
  ds_write_b128 v{vMB}, v[16:19] offset:{(4+w)*1024}
  s_mov_b64 exec, 0xffff
  ds_write_b128 v{vMB}, v[20:23] offset:{8192+w*256}
  s_mov_b64 exec, -1
""")
        a(f"{lab}_have:\n v_mov_b64 v[46:47], 0")
        self.stamp(a,0)
        if self.timing: a("s_waitcnt lgkmcnt(0)")
        hooks={}
        if self.timing:
            for k,tg in enumerate(self.marks): hooks[tg]=f"{self.tinst} s[{6+2*k}:{7+2*k}]"
        sched.emit(a,order,ds_init=[R(56,4),R(60,4),R(64,4),R(68,4),set(),set(),(set(),'mw')],
                   vm_waw=[R(12,4),R(16,4),R(20,4)]*(self.DG-1),show_t=self.show,hooks=hooks)
        self.stamp(a,5)
        a(f"s_cmp_eq_u32 s{sSTEP}, {self.steps-1}\n s_cbranch_scc1 {lab}_exit")
        if self.fused and w==3:
            a(f"""
  s_cmp_eq_u64 s[{sNR}:{sNR+1}], 0
  s_cbranch_scc1 {lab}_fok
  s_mov_b32 s75, 4000000
{lab}_fpoll:
  buffer_load_dword v28, off, s[{sWSR}:{sWSR+3}], s{sFKV} sc1
  s_waitcnt vmcnt(0)
  v_readfirstlane_b32 s74, v28
  s_sub_u32 s75, s75, 1
  s_cmp_eq_u32 s75, 0
  s_cbranch_scc1 {lab}_fok
  s_cmp_eq_u32 s74, 0
  s_cbranch_scc1 {lab}_fpoll
{lab}_fok:
""")
        if self.noex:
            self.stamp(a,6); self.stamp(a,7); self.stamp_acc(a,8)
            self.adv(a); self.pref_frags(a,w); self.zero(a,32,46)
            for r in range(12,24): a(f"v_mov_b32 v{r}, 0x3c003c00")
            a(f"s_add_u32 s{sSTEP}, s{sSTEP}, 1\n s_branch {lab}_g0")
            return
        if self.isjob(w):
            if w==2: a(f"s_cmp_eq_u32 s{sJOB}, 0\n s_cbranch_scc1 {lab}_nojob")
            if self.d1 and self.DP>1: a(nops(self.d1))
            self.d1b=self.d1 if self.DP==1 else 0
            A=[12,16,20,24]
            def pissue(q):
                for k in range(4): a(f"buffer_load_dwordx4 v[{q[k]}:{q[k]+3}], v{vPld}, {PM}, s{sPl+k} offen sc1")
            def pcheck(q,base,prog):
                for k in range(4):
                    if prog or k==0: a(f"s_waitcnt vmcnt({base+(3-k if prog else 0)})")
                    a(self.job_mfma('0' if k==0 else 'v[32:35]',q[k]))
                a(f"""
  v_max3_u32 v48, v12, v13, v14
  v_max3_u32 v49, v15, v16, v17
  v_max3_u32 v48, v48, v18, v19
  v_max3_u32 v49, v49, v20, v21
  v_max3_u32 v48, v48, v22, v23
  v_max3_u32 v49, v49, v24, v25
  v_max3_u32 v48, v48, v26, v27
  v_max_u32 v48, v48, v49
  v_cmp_eq_u32 s[76:77], -1, v48
""")
                self.job_reduce_tail(a)
            if self.DP>1: pissue(A)
            self.jobshadow(a,w)
            if self.DP==1 and self.d1b: a(nops(self.d1b))
            for k in range(self.DP-2):
                if self.g1: a(nops(self.g1))
                pissue(A)
            a("s_mov_b64 s[76:77], -1")
            a(f"{lab}_pl:")
            a("s_mov_b64 exec, s[76:77]"); pissue(A); a("s_mov_b64 exec, -1")
            a(f"s_add_u32 s{sR1}, s{sR1}, 1\n s_sub_u32 s{sCNT}, s{sCNT}, 1\n s_cmp_eq_u32 s{sCNT}, 0\n s_cbranch_scc1 {lab}_exit")
            pcheck(A,4*(self.DP-1),True)
            a(f"s_cbranch_vccnz {lab}_pl")
            a(f"""
{lab}_pub:
""")
            self.job_pack(a)
            a(f"""
  s_mov_b64 exec, s[{sMASK8}:{sMASK8+1}]
  buffer_store_dword v28, v{vPub}, {PM}, s{sMP} offen {self.stflag}
""")
            if self.dbgM:
                a(f"""
  s_mul_i32 s74, s{sSTEP}, 9216
  s_add_u32 s74, s74, {DBG_OFF}
  buffer_store_dword v28, v{vPub}, s[{sWSR}:{sWSR+3}], s74 offen
""")
            a("s_mov_b64 exec, -1")
            self.stamp(a,6)
            self.zero(a,32,36)
            if self.d2j: a(nops(self.d2j))
            self.stamp(a,7); self.stamp_acc(a,8)
            a(f"s_branch {lab}_gpre")
            a(f"{lab}_nojob:")
        if w>=2:
            self.adv(a)
            self.pref_frags(a,w)
            self.zero(a,32,46)
            for r in self.zextra: a(f"v_mov_b64 v[{r}:{r+1}], 0")
            a(self.v46())
            self.stamp(a,6)
            if self.d2n: a(nops(self.d2n))
            self.stamp(a,7); self.stamp_acc(a,8)
        a(f"{lab}_gpre:")
        if self.DG==1: a(f"s_add_u32 s{sSTEP}, s{sSTEP}, 1")
        for k in range(self.DG-1):
            gissue(G0)
            if k==0: a(f"s_add_u32 s{sSTEP}, s{sSTEP}, 1")
            if self.g2: a(nops(self.g2))
        a(f"s_mov_b64 vcc, -1\n s_branch {lab}_gl")
```

```python
import sys
sys.path.insert(0,'gen')
from asmlib import *
import rec, rec2, rec3, rec5, sched
from rec import *
from rec2 import *
from rec3 import *
from rec5 import *
from sched import mk
import common as C
vL4=7
sEVEN=84
sPst3=81
sLO=100
from rec3 import sTCH
class Rec6(Rec5):
    def consts(self,a):
        super().consts(a)
        a(f"""
  s_mov_b32 s{sLO}, -1
  s_mov_b32 s{sLO+1}, 0
  s_mov_b32 s{sEVEN}, 0x55555555
  s_mov_b32 s{sEVEN+1}, 0x55555555
  v_mov_b32 v36, 0xeeee
  v_mov_b32 v38, 0x4444
  v_cndmask_b32 v{vIdx}, v36, v38, s[{sEVEN}:{sEVEN+1}]
  v_lshrrev_b32 v36, 1, v13          ; n>>1
  v_and_b32 v37, 1, v13              ; n&1
  v_lshlrev_b32 v38, 1, v12          ; 2g
  v_mov_b32 v39, 0x3f803f80
  v_cmp_eq_u32 vcc, v36, v38
  v_cndmask_b32 v{vSel}, 0, v39, vcc
  v_add_u32 v38, 1, v38
  v_cmp_eq_u32 vcc, v36, v38
  v_cndmask_b32 v{vSel+1}, 0, v39, vcc
  v_lshlrev_b32 v38, 5, v36
  v_lshlrev_b32 v39, 3, v12
  v_add_u32 v38, v38, v39
  v_add_u32 v{vOw}, {LDS_O}, v38
  v_lshlrev_b32 v38, 3, v12
  v_add_u32 v38, v38, v36
  v_lshlrev_b32 v38, 3, v38
  v_add_u32 v{vSm}, {LDS_SM}, v38
  s_lshl_b32 s77, s{sW}, 5
  s_add_u32 s77, s77, s{sH}
  s_cmp_lt_u32 s77, 72
  s_cselect_b32 s77, s77, 0
  s_lshl_b32 s79, s77, 7             ; J*128
  v_and_b32 v38, 7, v13              ; u8
  v_lshrrev_b32 v39, 2, v38
  v_lshlrev_b32 v39, 6, v39          ; (u8>>2)*64
  v_and_b32 v38, 3, v38
  v_lshlrev_b32 v38, 3, v38          ; (u8&3)*8
  v_add_u32 v38, v38, v39
  v_lshrrev_b32 v39, 1, v12
  v_lshlrev_b32 v39, 5, v39          ; p*32
  v_add_u32 v38, v38, v39
  v_and_b32 v39, 1, v12
  v_lshlrev_b32 v39, 2, v39          ; (g&1)*4
  v_add_u32 v38, v38, v39
  v_add_u32 v{vPub}, s79, v38
  v_lshlrev_b32 v{vL4}, 2, v31
""")
    def load_m0(self,a):
        a(f"""
  v_mov_b32 v{MA+8}, 0
  v_mov_b32 v{MA+9}, 0
  v_mov_b32 v{MA+10}, 0
  v_mov_b32 v{MA+11}, 0
  v_lshrrev_b32 v24, 4, v{vL16}      ; lane
  v_and_b32 v25, 15, v24             ; n
  v_lshrrev_b32 v26, 1, v25          ; row m
  v_mul_u32_u24 v26, 1152, v26
  v_and_b32 v25, 1, v25
  v_lshrrev_b32 v24, 4, v24          ; g
  v_lshlrev_b32 v24, 1, v24
  v_add_u32 v24, v24, v25            ; 2g+half
  v_lshlrev_b32 v24, 4, v24
  v_add_u32 v24, v24, v26
  s_lshl_b32 s74, s{sW}, 7           ; ks=w
  v_add_u32 v25, s74, v24
  global_load_dwordx4 v[{MA}:{MA+3}], v25, s[{sMEM}:{sMEM+1}]
  global_load_dwordx4 v[{MA+4}:{MA+7}], v25, s[{sMEM}:{sMEM+1}] offset:512
  s_lshl_b32 s74, s{sW}, 5
  s_add_u32 s74, s74, 1024
  v_add_u32 v25, s74, v24
  s_mov_b64 exec, 0xffff
  global_load_dwordx4 v[{MA+8}:{MA+11}], v25, s[{sMEM}:{sMEM+1}]
  s_mov_b64 exec, -1
  s_waitcnt vmcnt(0)
""")
    def slot_scalars(self,a,w):
        super().slot_scalars(a,w)
        a(f"s_add_u32 s{sPst3}, s{sPst}, 8192")
    def selr(self,a):
        a(f"""
  v_lshrrev_b32 v36, 4, v{vL16}
  v_and_b32 v37, 1, v36
  v_lshlrev_b32 v37, 4, v37
  v_mov_b32 v38, 0x3f80
  v_lshlrev_b32 v37, v37, v38
  v_bfe_u32 v36, v36, 1, 2
""")
        for r in range(4):
            a(f"v_cmp_eq_u32 vcc, {r}, v36\n v_cndmask_b32 v{28+r}, 0, v37, vcc")
    def jobshadow(self,a,w):
        self.selr(a)
        self.adv(a)
        self.pref_frags(a,w); self.zero(a,36,46)
        for r in self.zextra: a(f"v_mov_b64 v[{r}:{r+1}], 0")
        a(self.v46())
    zextra=()
    qfirst=0
    def block(self,w):
        N=[]
        def n(t,tag=None,after=(),p=0): N.append(mk(t,tag,after,p))
        fr=self.frag
        idx=f"v{vIdx}"
        EV=f"s[{sEVEN}:{sEVEN+1}]"
        QP="quad_perm:[1,0,3,2] row_mask:0xf bank_mask:0xf"
        sm=lambda d,A,B: f"v_smfmac_f32_16x16x64_bf16 v[{d}:{d+3}], v[{A}:{A+3}], {B}, {idx}"
        cv=lambda d,x,y: n(f"v_cvt_pk_bf16_f32 v{d}, v{x}, v{y}")
        pka=lambda d,x: n(f"v_pk_add_f32 v[{d}:{d+1}], v[{d}:{d+1}], v[{x}:{x+1}]")
        A0,A1,A2=12,16,20
        ring=list(self.ringQK)
        Q0,Q1,K0,K1=32,36,40,44
        KX=48; WB=[56,64]; V0,V1=56,60; VX=64; F=vPld; ONE=vPub
        acc={('q',0):Q0,('q',1):Q1,('k',0):K0,('k',1):K1,('v',0):V0,('v',1):V1}
        own=[w,4+w]
        isL=lambda m,ks: fr[(m,ks,0)][0]=='lds'
        others=[k for k in range(9) if k not in own]
        Ls=[k for k in others if isL('q',k) or isL('k',k)]; Rs=[k for k in others if k not in Ls]
        Ls.sort(key=lambda k:(k!=8,k))
        rest=[]
        while Ls or Rs:
            if Ls: rest.append(Ls.pop(0))
            if Rs: rest.append(Rs.pop(0))
        self.rest=rest
        x=self.xld
        n(f"buffer_load_dwordx4 v[{KX}:{KX+3}], v{vL16}, s[{sWSR}:{sWSR+3}], s{sXK} offen {x}",p=200)
        n(f"buffer_load_dwordx4 v[{KX+4}:{KX+7}], v{vL16}, s[{sWSR}:{sWSR+3}], s{sXK} offen offset:1024 {x}")
        self.extra_top(n,w)
        ops=[]
        def kops(ks): return [('q',0,ks),('q',1,ks),('k',0,ks),('k',1,ks)]
        o0=own[0] if (isL('q',own[0]) or isL('k',own[0])) else own[1]
        o1=own[1] if o0==own[0] else own[0]
        for ks in [o0,o1]+rest: ops+=kops(ks)
        lops=[o for o in ops if fr[(o[0],o[2],o[1])][0]=='lds']
        self.pref=lops[:2]
        slot={o:WB[i%2] for i,o in enumerate(lops)}
        def rdW(key,s_,tagp=None):
            off=fr[key][1]
            n(f"ds_read_b128 v[{s_}:{s_+3}], v{vFR} offset:{off}")
            n(f"ds_read_b128 v[{s_+4}:{s_+7}], v{vFR} offset:{off+1024}")
        abuf={own[0]:A0,own[1]:A1}
        nxtL=2
        barred=False
        ri=0
        def rdA(ks,r,after):
            n(f"ds_read_b128 v[{r}:{r+3}], v{vMB} offset:{ks*1024}",after=after)
        for (m,t,ks) in ops:
            if ks not in abuf:
                if not barred:
                    n("s_barrier",tag='b1',after=['mw']); barred=True
                r=ring[ri%3]; ri+=1
                rdA(ks,r,['b1']); abuf[ks]=r
            f=fr[(m,ks,t)]
            B=self.regstr(f[1]) if f[0]=='reg' else f"v[{slot[(m,t,ks)]}:{slot[(m,t,ks)]+7}]"
            qi=ops.index((m,t,ks))
            n(sm(acc[(m,t)],abuf[ks],B),tag={8:'q8',20:'q20',35:'q35'}.get(qi))
            if f[0]=='lds' and nxtL<len(lops):
                o=lops[nxtL]; rdW((o[0],o[2],o[1]),slot[o]); nxtL+=1
        inring={ks:abuf[ks] for ks in rest[-3:]}
        n(f"buffer_load_dwordx4 v[{VX}:{VX+3}], v{vL16}, s[{sWSR}:{sWSR+3}], s{sXV} offen {x}")
        n(f"buffer_load_dwordx4 v[{VX+4}:{VX+7}], v{vL16}, s[{sWSR}:{sWSR+3}], s{sXV} offen offset:1024 {x}")
        if self.touch==2:
            n(f"v_lshlrev_b32 v6, 2, v{vL16}"); n(f"buffer_load_dword v6, v6, s[{sWSR}:{sWSR+3}], s{sTCH} offen {self.tflag}")
        if self.fused and w==3:
            n(f"buffer_load_dword v{F}, off, s[{sWSR}:{sWSR+3}], s{sFKV} sc1")
            n(f"s_mov_b64 exec, 1\n buffer_store_dword v{ONE}, off, s[{sWSR}:{sWSR+3}], s{sFKM} sc1\n s_mov_b64 exec, -1",after=['b1'])
        for r in range(0,8,2): n(f"v_mov_b64 v[{V0+r}:{V0+r+1}], 0")
        tm=lambda d,A: n(f"v_mfma_f32_16x16x16_bf16 v[{d}:{d+3}], v[{A}:{A+1}], v[{vSel}:{vSel+1}], 0")
        for k,src in enumerate([Q0,Q1,K0,K1]):
            cv(12+2*k,src,src+1); cv(13+2*k,src+2,src+3)
        tm(32,12); tm(36,14); tm(40,16); tm(44,18)
        N[-1].tag='t4'
        cv(12,32,33); cv(13,34,35); cv(14,36,37); cv(15,38,39)
        cv(16,40,41); cv(17,42,43); cv(18,44,45); cv(19,46,47)
        n(f"buffer_store_dwordx4 v[16:19], v{vL16}, s[{sWSR}:{sWSR+3}], s{sKMo} offen {self.kmflag}")
        n(f"v_mfma_f32_16x16x32_bf16 v[36:39], v[{KX}:{KX+3}], v[12:15], 0")
        n(f"v_mfma_f32_16x16x32_bf16 v[40:43], v[{KX+4}:{KX+7}], v[12:15], 0")
        n(f"v_mfma_f32_16x16x32_bf16 v[32:35], v[16:19], v[12:15], 0")
        for r in range(4): n(f"v_cndmask_b32 v{36+r}, v{40+r}, v{36+r}, {EV}")
        n(f"ds_write_b128 v{vMB}, v[36:39] offset:{LDS_SX-LDS_M+w*1024}",tag='sx')
        n(f"s_mov_b64 exec, {EV}\n ds_write2_b32 v{vSm}, v32, v34 offset0:{w*64} offset1:{w*64+1}\n s_mov_b64 exec, -1",tag='sw')
        n("s_barrier",tag='b2',after=['sx','sw','b1'])
        ring=list(self.ringV)
        vorder=list(rest[-3:])+[k for k in [own[0],own[1]]+rest[:-3]]
        for ks in vorder:
            if ks in inring: r=inring[ks]
            else:
                r=ring[ri%3]; ri+=1
                rdA(ks,r,['b1','sx'])
            for t in range(2):
                f=fr[('v',ks,t)]; assert f[0]=='reg'
                n(sm(acc[('v',t)],r,self.regstr(f[1])),p=-int(self.vprio))
        oth=[k for k in range(4) if k!=w]
        for k,r in zip(oth,(40,44,48)): n(f"ds_read_b128 v[{r}:{r+3}], v{vMB} offset:{LDS_SX-LDS_M+k*1024}",after=['b2'])
        for k,r in zip(oth,(52,72,12)): n(f"ds_read_b64 v[{r}:{r+1}], v{vSm} offset:{k*256}",after=['b2'])
        N.append(mk("v_pk_add_f32 v[36:37], v[36:37], v[40:41]",'m1')); pka(38,42); pka(44,48); pka(46,50); pka(36,44); pka(38,46)
        pka(52,72); n("v_add_f32 v32, v32, v12"); n("v_add_f32 v34, v34, v13")
        n("v_add_f32 v32, v32, v52"); n("v_add_f32 v34, v34, v53")
        n("v_max3_f32 v72, v36, v37, v38"); n("v_max3_f32 v73, v39, v32, v34")
        n("v_max_f32 v72, v72, v73")
        n(f"v_max_f32_dpp v72, v72, v72 {QP}")
        for sw in ('16','32'):
            n("v_mov_b32 v73, v72"); n(f"v_permlane{sw}_swap_b32 v72, v73"); n("v_max_f32 v72, v72, v73")
        n(f"v_mul_f32 v72, s{sC}, v72",tag='m2')
        for b in (36,38):
            n(f"v_pk_fma_f32 v[{b}:{b+1}], v[{b}:{b+1}], s[{sC2}:{sC2+1}], v[72:73] op_sel_hi:[1,1,0] neg_lo:[0,0,1] neg_hi:[0,0,1]")
        for b in (32,34): n(f"v_fma_f32 v{b}, v{b}, s{sC}, -v72")
        for r in (36,37,38,39,32,34): n(f"v_exp_f32 v{r}, v{r}",tag='m3' if r==34 else None)
        cv(40,36,37); cv(41,38,39); cv(44,32,32); cv(45,34,34)
        n(f"v_mov_b32_dpp v42, v40 {QP}")
        n(f"v_mov_b32_dpp v43, v41 {QP}")
        n("v_add_f32 v73, v36, v37"); n("v_add_f32 v74, v38, v39"); n("v_add_f32 v75, v32, v34")
        n("v_add_f32 v73, v73, v74")
        n("v_fmac_f32 v73, 0.5, v75")
        n(f"v_add_f32_dpp v73, v73, v73 {QP}")
        for sw in ('16','32'):
            n("v_mov_b32 v74, v73"); n(f"v_permlane{sw}_swap_b32 v73, v74"); n("v_add_f32 v73, v73, v74")
        n("v_rcp_f32 v72, v73",tag='m4')
        cv(48,V0,V0+1); cv(49,V0+2,V0+3); cv(50,V1,V1+1); cv(51,V1+2,V1+3)
        n(f"buffer_store_dwordx4 v[48:51], v{vL16}, s[{sWSR}:{sWSR+3}], s{sKMo} offen offset:1024 {self.kmflag}")
        n(f"v_mfma_f32_16x16x32_bf16 v[52:55], v[{VX}:{VX+3}], v[40:43], 0",tag='p0')
        n(f"v_mfma_f32_16x16x32_bf16 v[12:15], v[{VX+4}:{VX+7}], v[40:43], 0",tag='p1')
        n(f"v_mfma_f32_16x16x16_bf16 v[52:55], v[48:49], v[44:45], v[52:55]",tag='p2')
        n(f"v_mfma_f32_16x16x16_bf16 v[12:15], v[50:51], v[44:45], v[12:15]",tag='p3')
        for b in (52,54,12,14): n(f"v_pk_mul_f32 v[{b}:{b+1}], v[{b}:{b+1}], v[72:73] op_sel_hi:[1,0]")
        cv(44,52,53); cv(45,54,55); cv(46,12,13); cv(47,14,15)
        n(f"s_mov_b64 exec, {EV}\n ds_write_b64 v{vOw}, v[44:45] offset:{(2*w)*256}\n ds_write_b64 v{vOw}, v[46:47] offset:{(2*w+1)*256}\n s_mov_b64 exec, -1",tag='ow')
        n("s_barrier",tag='b3',after=['ow','b2'])
        n(f"ds_read_b128 v[48:51], v{vMB} offset:{LDS_O-LDS_M}",after=['b3'])
        n(f"ds_read_b128 v[52:55], v{vMB} offset:{LDS_O-LDS_M+1024}",after=['b3'])
        if self.fused and w==3:
            n(f"v_cmp_eq_u32 s[{sNR}:{sNR+1}], 0, v{F}",after=['b3'])
        oorder=[(k,T) for p in range(4) for k in range(2) for T in (2*p,2*p+1)]+[(0,8),(1,8)]
        if self.t8first: oorder=oorder[-2:]+oorder[:-2]
        olds=[kt for kt in oorder if fr[('o',kt[0],kt[1])][0]=='lds']
        oslots=[56,64,72]
        oslot={kt:oslots[j%3] for j,kt in enumerate(olds)}
        self.extra_b3(n,w)
        for r in range(12,48,2): n(f"v_mov_b64 v[{r}:{r+1}], 0")
        for kt in olds[:3]: rdW(('o',kt[0],kt[1]),oslot[kt])
        onxt=3
        done=set(); packed=set()
        PM=f"s[{sPM}:{sPM+3}]"
        def pack(T):
            D=12+4*T
            n(f"v_add_f32 v{D}, v{D}, v{D+1}"); n(f"v_add_f32 v{D+2}, v{D+2}, v{D+3}")
            cv(D,D,D+2)
            tau=(8*(T//2)+2*w+(T&1)) if T<8 else 32+w
            off=tau*256
            so=(sPst,sPst2,sPst3)[off//4096]
            n(f"buffer_store_dword v{D}, v{vL4}, {PM}, s{so} offen offset:{off%4096} {self.stflag}")
        for (k,T) in oorder:
            f=fr[('o',k,T)]
            B=self.regstr(f[1]) if f[0]=='reg' else f"v[{oslot[(k,T)]}:{oslot[(k,T)]+7}]"
            n(sm(12+4*T,48+4*k,B),tag=('o1' if not done else ('o2' if len(done)==17 else ('o9' if len(done)==8 else None))))
            if f[0]=='lds' and onxt<len(olds):
                kt=olds[onxt]; onxt+=1; rdW(('o',kt[0],kt[1]),oslot[kt])
            done.add((k,T))
            if k==1: pack(T)
        return N
    def job_reduce_tail(self,a):
        for r in range(32,36): a(f"v_add_f32_dpp v{r}, v{r}, v{r} row_ror:8 row_mask:0xf bank_mask:0xf")
        a("v_cmp_u_f32 vcc, v32, v32")
    def job_mfma(self,C,Q): return f"v_mfma_f32_16x16x32_bf16 v[32:35], v[28:31], v[{Q}:{Q+3}], {C}"
    def job_pack(self,a):
        a("v_cvt_pk_bf16_f32 v28, v32, v34\n v_cvt_pk_bf16_f32 v29, v33, v35\n v_cndmask_b32 v28, v29, v28, s[%d:%d]"%(sLO,sLO+1))
```

```python
import hazard
import re
STX4=20
PKGAP=36
LOOK=4
V2=4; V3=5
class Node:
    __slots__=('text','lines','kind','dst','src','idx','preds','succs','prio','t','issue','tag','after','ldsbytes','ins','vm','pin','srcAB','srcC','passes','trans','perm','dpp','dsdst','vmdst','nds','nvm','isbar','needds','needvm','alt','altissue','mfi','pk','hasvalu','wait')
def pk_alt(line):
    m=re.fullmatch(r'v_pk_(add|mul)_f32 v\[(\d+):\d+\], v\[(\d+):\d+\], v\[(\d+):\d+\]( op_sel_hi:\[1,0\])?',line)
    if m:
        op,d,x,y,bc=m.group(1),int(m.group(2)),int(m.group(3)),int(m.group(4)),m.group(5)
        if bc: assert y not in (d,d+1)
        return f"v_{op}_f32 v{d}, v{x}, v{y}\n v_{op}_f32 v{d+1}, v{x+1}, v{y if bc else y+1}", 2*V2
    m=re.fullmatch(r'v_pk_fma_f32 v\[(\d+):\d+\], v\[(\d+):\d+\], s\[(\d+):\d+\], v\[(\d+):\d+\] op_sel_hi:\[1,1,0\] neg_lo:\[0,0,1\] neg_hi:\[0,0,1\]',line)
    if m:
        d,x,sc,y=(int(m.group(k)) for k in (1,2,3,4))
        return f"v_fma_f32 v{d}, v{x}, s{sc}, -v{y}\n v_fma_f32 v{d+1}, v{x+1}, s{sc}, -v{y}", 2*V3
    raise Exception('no alt for '+line)
def vcost(i):
    if getattr(i,'trans',False) or getattr(i,'perm',False): return 8
    op=i.op
    if op.startswith(('v_pk_','v_cvt_pk','v_max3','v_fma_','v_cndmask','v_mov_b64','v_lshl_or','v_mul_lo')) or i.dpp or any(len(o)==10 for o in i.ops): return V3
    return V2
def mk(text,tag=None,after=(),prio_add=0):
    n=Node(); n.text=text; n.lines=[l.strip() for l in text.split('\n') if l.strip()]
    n.ins=[i for i in (hazard.parse(l) for l in n.lines) if i]
    n.dst=set(); n.src=set(); n.kind='other'; n.issue=0; n.tag=tag; n.after=list(after)
    n.srcAB=set(); n.srcC=set(); n.passes=0; n.trans=False; n.perm=False; n.dpp=False
    n.dsdst=set(); n.vmdst=set(); n.nds=0; n.nvm=0; n.isbar=False; n.ldsbytes=0; n.pin=prio_add
    n.needds=[]; n.needvm=[]; n.alt=None; n.mfi=0; n.pk=False; n.hasvalu=False; n.wait=0
    for i in n.ins:
        d={r for r in i.dst if r!=('s','exec')}; s={r for r in i.src if r!=('s','exec')}
        n.dst|=d; n.src|=s
        c=4
        if i.kind=='mfma':
            n.kind='mfma'; n.passes=i.passes; n.srcAB|=i.srcAB; n.srcC|=i.srcC; c=4
            n.mfi=12 if 'smfmac' in i.op else (4 if 'x16_' in i.op and '16x16' in i.op else 8)
        elif i.kind=='valu':
            if n.kind=='other' or n.kind=='salu': n.kind='valu'
            n.hasvalu=True
            if getattr(i,'trans',False): n.trans=True
            if getattr(i,'perm',False): n.perm=True
            if i.dpp: n.dpp=True
            c=vcost(i)
            if i.op.startswith('v_pk_'):
                assert len(n.ins)==1
                n.pk=True; n.alt,n.altissue=pk_alt(n.lines[0])
        elif i.kind=='ds':
            n.kind='ds'; n.nds+=1
            if i.op.startswith('ds_read'): n.dsdst|=i.dst
            n.ldsbytes+= (1024 if 'b128' in i.op else 512)*(1 if i.op.startswith('ds_read') else 3)
            if i.op.startswith('ds_write'): c=8
        elif i.kind=='vmem':
            n.kind='vmem'; n.nvm+=1; c=8
            if 'store' in i.op and 'x4' in i.op: c=STX4
            if i.dst: n.vmdst|=i.dst
        elif i.op=='s_barrier': n.kind='bar'; n.isbar=True
        elif i.kind=='nop': c=4*i.w
        elif i.kind=='salu':
            if n.kind=='other': n.kind='salu'
        n.issue+=c
    return n
DSLAT=120; VMLAT=500; BARLAT=40; WBAR=70; MLAT=16
def lat_raw(p,c,regs):
    if regs & p.dsdst: return DSLAT
    if regs & p.vmdst: return VMLAT
    if p.kind=='mfma':
        base=4*p.passes
        if c.kind=='mfma' and (regs<=c.srcC) and not (regs & c.srcAB): return base
        return base+MLAT
    if p.kind=='valu':
        d=p.issue
        if c.kind=='mfma' or c.perm or c.dpp: d+=8
        if p.trans: d+=4
        if any(r[0]=='s' for r in regs): d+=8 if c.kind=='valu' else (20 if c.kind=='vmem' else 0)
        return d
    return p.issue
def schedule(nodes, verbose=False, ldsrate=16, avail=None):
    N=len(nodes)
    for i,n in enumerate(nodes): n.idx=i; n.preds=[]; n.succs=[]
    tags={n.tag:n for n in nodes if n.tag is not None}
    def edge(p,c,d):
        c.preds.append((p,d)); p.succs.append((c,d))
    lastw={}; readers={}
    lastbar=None
    vmorder=None
    for c in nodes:
        for r in c.src:
            if r in lastw:
                p=lastw[r]; edge(p,c,lat_raw(p,c,{r}|((p.dst&c.src))))
                if r in p.dsdst or r in p.vmdst: c.wait=4
        for r in c.dst:
            if r in lastw:
                p=lastw[r]
                if not (r in c.src): edge(p,c,lat_raw(p,c,{r}) if (p.kind=='mfma' or r in p.dsdst or r in p.vmdst) else p.issue)
            for p in readers.get(r,[]):
                if p is c: continue
                d=p.issue
                if p.kind=='mfma' and c.kind=='valu': d=16 if r in p.srcC else 8
                if p.kind=='vmem' and c.kind=='valu': d=p.issue+8
                edge(p,c,d)
        for r in c.src: readers.setdefault(r,[]).append(c)
        for r in c.dst: lastw[r]=c; readers[r]=[x for x in readers.get(r,[]) if x is c]
        for t in c.after:
            if t not in tags: continue
            p=tags[t]
            d=p.issue
            if c.isbar and p.kind=='ds': d=WBAR
            if p.isbar: d=BARLAT
            edge(p,c,d)
        if c.isbar:
            if lastbar: edge(lastbar,c,40)
            lastbar=c
        if c.kind=='vmem':
            if vmorder: edge(vmorder,c,vmorder.issue)
            vmorder=c
    for n in reversed(nodes):
        n.prio=max(n.issue,n.mfi)+n.pin
        for c,d in n.succs: n.prio=max(n.prio,d+c.prio+n.pin)
    done=set(); order=[]; t=0; pipe=0; dsfree=0; vfree=0; lastm=-1000
    npred={n.idx:len(n.preds) for n in nodes}
    earliest={n.idx:0 for n in nodes}
    if avail:
        seenw=set()
        for n in nodes:
            for r in n.src:
                if r in avail and r not in seenw: earliest[n.idx]=max(earliest[n.idx],avail[r])
            if n.tag in avail: earliest[n.idx]=max(earliest[n.idx],avail[n.tag])
            seenw|=n.dst
    ready=[n for n in nodes if npred[n.idx]==0]
    def start(n):
        s=max(earliest[n.idx],t+n.wait if n.wait else t)
        if n.kind=='mfma': s=max(s,pipe,vfree)
        elif n.hasvalu: s=max(s,vfree)
        return s
    while len(order)<N:
        st={n.idx:start(n) for n in ready}
        cand=[n for n in ready if st[n.idx]<=t+n.wait]
        def blocks(m):
            s=st[m.idx]
            for c in ready:
                if c is m or not c.hasvalu or c.prio<=m.prio: continue
                delay=s+m.mfi-max(st[c.idx],s)
                if st[c.idx]<s+m.mfi and delay>LOOK and c.prio>m.prio+delay: return True
            return False
        cand2=[n for n in cand if not (n.kind=='mfma' and blocks(n))]
        if not cand2:
            nxt=min(st[n.idx]-n.wait for n in ready if st[n.idx]-n.wait>t) if any(st[n.idx]-n.wait>t for n in ready) else t+1
            t=max(t+1,min(nxt,t+4)); continue
        n=max(cand2,key=lambda x:(x.prio,-x.idx))
        s=st[n.idx]
        n.t=s; order.append(n); ready.remove(n)
        extra=0
        iss=n.issue
        if n.pk and s<lastm+PKGAP:
            n.text=n.alt; iss=n.altissue
        if n.kind=='mfma': pipe=s+4*n.passes; vfree=s+n.mfi; lastm=s
        elif n.hasvalu: vfree=s+iss
        if n.kind=='ds':
            x=max(s,dsfree); dsfree=x+ldsrate*n.ldsbytes//1024; extra=x-s
        for c,d in n.succs:
            dd=d+(extra if d>=WBAR and n.kind=='ds' else 0)+(iss-n.issue if n.pk else 0)
            earliest[c.idx]=max(earliest[c.idx],s+dd)
            npred[c.idx]-=1
            if npred[c.idx]==0: ready.append(c)
        t=s+(iss if not n.isbar else 40)
    return order,max(t,vfree)
def emit(a,order,ds_init=None,vm_init=None, show_t=False, hooks=None, vm_waw=None):
    dsq=[]
    vmq=[]
    tagpos={}
    for r in (ds_init or []):
        if isinstance(r,tuple): dsq.append((None,set(r[0]))); tagpos[r[1]]=('ds',len(dsq)-1)
        else: dsq.append((None,set(r)))
    for r in (vm_init or []): vmq.append((None,set(r)))
    waw=[set(r) for r in (vm_waw or [])]
    nw0=len(vmq)
    for r in waw: vmq.append((None,set()))
    dsdone=0; vmdone=0
    for n in order:
        use=(n.src|n.dst)
        need=-1
        for k in range(len(dsq)-1,dsdone-1,-1):
            if dsq[k][1] & use: need=k; break
        if n.isbar:
            for t in n.after:
                if t in tagpos and tagpos[t][0]=='ds': need=max(need,tagpos[t][1])
        if need>=dsdone:
            cnt=min(len(dsq)-1-need,15)
            a(f"s_waitcnt lgkmcnt({cnt})"); dsdone=len(dsq)-cnt
        need=-1
        usev=(use-n.vmdst)|n.src if n.kind=='vmem' else use
        for k in range(len(vmq)-1,vmdone-1,-1):
            if vmq[k][1] & usev: need=k; break
        wr=(n.dst-n.vmdst)
        for k,r in enumerate(waw):
            if r & wr: need=max(need,nw0+k)
        if need>=vmdone:
            cnt=min(len(vmq)-1-need,63)
            a(f"s_waitcnt vmcnt({cnt})"); vmdone=len(vmq)-cnt
        if show_t: a.c(f"t={n.t}")
        a(n.text)
        if hooks and n.tag in hooks: a(hooks[n.tag])
        for i in n.ins:
            if i.kind=='ds':
                dsq.append((n,set(i.dst) if i.op.startswith('ds_read') else set()))
            elif i.kind=='vmem':
                vmq.append((n,set(i.dst)))
        if n.tag is not None:
            if n.kind=='ds': tagpos[n.tag]=('ds',len(dsq)-1)
    return len(dsq)-dsdone, len(vmq)-vmdone
```

```python
import sys
sys.path.insert(0,'gen')
from common import *
import common as C
import k_r1, r1, r3, r4, r5, rec, rec2, rec3, rec5, rec6, sched, hazard
LDSSET=[('q',5),('q',6),('q',7),('q',8),('k',8),('o',0,0),('o',1,0),('o',0,2),('o',1,2)]
NB=96
def prologue(a,name,fake_xcc=None):
    load_ptrs(a)
    a(f"""
  s_cmp_ge_u32 s2, 256
  s_cbranch_scc1 .L{name}_end
  s_getreg_b32 s30, hwreg(HW_REG_XCC_ID, 0, 4)
""")
    if fake_xcc: fake_xcc(a)
    a(f"""
  s_cmp_lg_u32 s{sW}, 0
  s_cbranch_scc1 .L{name}_bar
  s_mov_b64 exec, 1
  s_lshl_b32 s31, s30, 2
  v_mov_b32 v2, s31
  v_mov_b32 v3, 1
  global_atomic_add v4, v2, v3, s[{sDBG}:{sDBG+1}] sc0
  s_waitcnt vmcnt(0)
  v_readfirstlane_b32 s31, v4         ; ticket
  s_add_u32 s32, s30, 1               ; xcc+1
  v_mov_b32 v2, {D_HOME}
  s_cmp_lg_u32 s31, 31
  s_cbranch_scc1 .L{name}_nocas
  v_mov_b32 v6, s32
  v_mov_b32 v7, 0
  global_atomic_cmpswap v2, v[6:7], s[{sDBG}:{sDBG+1}]
.L{name}_nocas:
  s_cmp_ge_u32 s31, 32
  s_cbranch_scc1 .L{name}_shadow
  s_mov_b32 s33, 4000000
.L{name}_hp:
  global_load_dword v5, v2, s[{sDBG}:{sDBG+1}] sc1
  s_waitcnt vmcnt(0)
  v_readfirstlane_b32 s34, v5
  s_cmp_lg_u32 s34, 0
  s_cbranch_scc1 .L{name}_hd
  s_sub_u32 s33, s33, 1
  s_cmp_lg_u32 s33, 0
  s_cbranch_scc1 .L{name}_hp
.L{name}_hd:
  s_cmp_lg_u32 s34, s32
  s_cbranch_scc1 .L{name}_shadow
  s_add_u32 s31, s31, 224
  v_mov_b32 v4, s31
  s_branch .L{name}_wr
.L{name}_shadow:
  v_mov_b32 v2, {D_RANK}
  global_atomic_add v4, v2, v3, s[{sDBG}:{sDBG+1}] sc0
  s_waitcnt vmcnt(0)
  v_readfirstlane_b32 s31, v4
  s_cmp_ge_u32 s31, 224
  s_cselect_b32 s31, 256, s31
  v_mov_b32 v4, s31
.L{name}_wr:
  v_mov_b32 v2, 0
  ds_write_b32 v2, v4
  s_waitcnt lgkmcnt(0)
  s_mov_b64 exec, -1
.L{name}_bar:
  s_barrier
  v_mov_b32 v2, 0
  ds_read_b32 v4, v2
  s_waitcnt lgkmcnt(0)
  v_readfirstlane_b32 s{sRANK}, v4
  s_barrier
""")
def flag1(a,base_srd,off_sreg):
    l=a.newlabel('f1')
    a(f"""
  s_cmp_lg_u32 s{sW}, 0
  s_cbranch_scc1 {l}
  v_mov_b32 v250, 1
  s_mov_b64 exec, 1
  buffer_store_dword v250, off, s[{base_srd}:{base_srd+3}], s{off_sreg} sc1
  s_mov_b64 exec, -1
{l}:
""")
def wait_phase(a,base,n):
    l=a.newlabel('wp')
    a(f"""
  s_cmp_lg_u32 s{sW}, 0
  s_cbranch_scc1 {l}
  v_lshlrev_b32 v248, 2, v{vLANE}
  v_add_u32 v248, {base}, v248
""")
    wait_words(a,248,(1<<min(n,64))-1,sleep=4)
    if n>64:
        a("v_add_u32 v248, 256, v248")
        wait_words(a,248,(1<<(n-64))-1,sleep=4)
    a(f"""
  buffer_inv sc1
  s_waitcnt vmcnt(0)
{l}:
  s_barrier
""")
def fused_kernel(name,ts=False,R=None,fake_xcc=None,NKV=3,NQ=6,NREP=3,NXA=32,NAO=16):
    a=Asm()
    L='.L'+name
    prologue(a,name,fake_xcc)
    st=lambda k,**kw: stamp(a,k,on=ts,**kw)
    a(f"s_cmp_ge_u32 s{sRANK}, 256\n s_cbranch_scc1 {L}_end")
    st(0)
    a(f"s_cmp_ge_u32 s{sRANK}, 224\n s_cbranch_scc1 {L}_rec")
    winit=lambda a: wait_word(a,sDBG,D_INIT)
    a(f"""
  s_cmp_lg_u32 s{sRANK}, 0
  s_cbranch_scc1 {L}_noinit
  v_lshlrev_b32 v2, 4, v0
  v_add_u32 v2, {FL_OFF}, v2
  v_mov_b32 v4, 0
  v_mov_b32 v5, 0
  v_mov_b32 v6, 0
  v_mov_b32 v7, 0
""")
    for i in range(FL_BYTES//4096):
        a(f"global_store_dwordx4 v2, v[4:7], s[{sWS}:{sWS+1}] sc1\n v_add_u32 v2, 4096, v2")
    a(f"""
  s_waitcnt vmcnt(0)
  s_barrier
  s_cmp_lg_u32 s{sW}, 0
  s_cbranch_scc1 {L}_noinit
  v_mov_b32 v2, {D_INIT}
  v_mov_b32 v4, 1
  s_mov_b64 exec, 1
  global_store_dword v2, v4, s[{sDBG}:{sDBG+1}] sc1
  s_mov_b64 exec, -1
{L}_noinit:
  s_cmp_ge_u32 s{sRANK}, {NB}
  s_cbranch_scc1 {L}_A
""")
    assert 32*NKV<=NB and 16*NQ<=NB and 18*NREP+NXA<=NB
    a(f"s_mov_b32 s{sTASK}, s{sRANK}\n s_cmp_ge_u32 s{sTASK}, {32*NKV}\n s_cbranch_scc1 {L}_kvx")
    k_r1.r1_task(a,'kv',L+'kv',stflag='sc1',NTG=NKV,flags=True,after_w=winit)
    a(f"{L}_kvx:"); st(1)
    a(f"s_mov_b32 s{sTASK}, s{sRANK}\n s_cmp_ge_u32 s{sTASK}, {16*NQ}\n s_cbranch_scc1 {L}_qx")
    k_r1.r1_task(a,'qq',L+'qq',stflag='sc1',NTG=NQ,flags=True,after_w=winit)
    a(f"{L}_qx:"); st(2)
    a(f"s_cmp_ge_u32 s{sRANK}, {18*NREP}\n s_cbranch_scc1 {L}_xa")
    a(f"s_mov_b32 s{sTASK}, s{sRANK}")
    winit(a)
    r5.r5_role(a,L+'bo',sTASK,nrep=NREP)
    st(3)
    a(f"s_branch {L}_end\n{L}_xa:")
    a(f"s_cmp_ge_u32 s{sRANK}, {18*NREP+NXA}\n s_cbranch_scc1 {L}_end")
    a(f"s_sub_u32 s{sTASK}, s{sRANK}, {18*NREP}")
    winit(a)
    r4.r4_role(a,L+'xat',sTASK,nwaves=4*NXA)
    st(3)
    a(f"s_branch {L}_end")
    a(f"{L}_A:\n s_sub_u32 s91, s{sRANK}, {NB}")
    a(f"s_cmp_ge_u32 s91, 64\n s_cbranch_scc1 {L}_avv\n s_mov_b32 s{sTASK}, s91")
    k_r1.r1_task(a,'aqk',L+'aqk',stflag='sc1',NTG=8,after_w=winit)
    a(f"s_branch {L}_apf\n{L}_avv:")
    a(f"s_cmp_ge_u32 s91, 96\n s_cbranch_scc1 {L}_apx\n s_sub_u32 s{sTASK}, s91, 64")
    k_r1.r1_task(a,'avv',L+'avv',stflag='sc1',NTG=8,after_w=winit)
    a(f"{L}_apf:\n s_lshl_b32 s60, s91, 2\n s_add_u32 s60, s60, {F_AP}")
    flag1(a,44,60)
    a(f"s_branch {L}_apw\n{L}_apx:")
    winit(a)
    a(f"{L}_apw:"); st(1)
    wait_phase(a,F_AP,96); st(2)
    a(f"s_mov_b32 s{sTASK}, s91")
    r3.r3_task(a,L+'att',stflag='sc1',nq=2,qstep=4)
    a(f"s_lshl_b32 s60, s91, 2\n s_add_u32 s60, s60, {F_AT}")
    flag1(a,32,60); st(3)
    a(f"s_cmp_ge_u32 s91, {3*NAO}\n s_cbranch_scc1 {L}_end\n s_mov_b32 s{sTASK}, s91")
    wait_phase(a,F_AT,128); st(4)
    k_r1.r1_task(a,'aout',L+'aout',NTG=NAO,stflag=r5.OST)
    st(5)
    a(f"s_branch {L}_end")
    a(f"{L}_rec:\n s_sub_u32 s{rec.sH}, s{sRANK}, 224\n s_mov_b32 s99, s{sRANK}")
    R=R or rec2.Rec2(LDSSET,fused=True)
    rec2.rec_role(a,R,30,L+'rec')
    if ts:
        stamp(a,1,slot=99,base=rec.sWS,w=rec.sW)
        a(f"""
  s_cmp_lg_u32 s{rec.sW}, 0
  s_cbranch_scc1 {L}_end
  s_lshl_b32 s94, s99, 6
  s_add_u32 s94, s94, {TS_OFF+16}
  v_mov_b32 v12, s{rec.sSTEP}
  v_mov_b32 v13, s{rec2.sR1}
  v_mov_b32 v14, s{rec2.sR2}
  v_mov_b32 v15, 0
  v_mov_b32 v16, s94
  s_mov_b64 exec, 1
  global_store_dwordx4 v16, v[12:15], s[{rec.sWS}:{rec.sWS+1}]
  s_mov_b64 exec, -1
""")
    a(f"{L}_end:\n s_endpgm")
    a.lines=hazard.fix(a.lines)
    return a
NAME='concat_heads__mha_block__memory_aug_recurrent_mem_tr__prompt'
def header_lines():
    ref=open(f'cdna_kernels/{NAME}.s.ref').read().split('\n')
    return '\n'.join(l for l in ref[:ref.index([l for l in ref if l.startswith('; Override')][0])])+'\n'
def build(path,**kw):
    n=NAME+'_kernel'
    a=fused_kernel(n,**kw)
    t=wrap([(n,a.text())],[(n,256,163840)],header_lines(),single=True)
    open(path,'w').write(t)
    print('bytes',len(t),'lines',len(a.lines))
if __name__=='__main__':
    kw={k:int(v) for k,v in (x.split('=') for x in sys.argv[2:] if '=' in x)}
    ver=kw.pop('v',3)
    rec3.Rec3.t8first=bool(kw.pop('t8first',0))
    sched.LOOK=kw.pop('look',12)
    r4.KM6=(ver>=6)
    r5.OST=['','sc1','sc0 sc1','nt','sc0 sc1 nt'][kw.pop('owt',0)]
    R={3:rec3.Rec3,5:rec5.Rec5,6:rec6.Rec6}[ver](fused=True,**kw)
    build(sys.argv[1] if len(sys.argv)>1 else f'cdna_kernels/{NAME}.s', ts=('ts' in sys.argv), R=R)
```

```python
import sys
sys.path.insert(0,'gen')
from asmlib import *
import rec, rec2, sched
from rec import *
from rec2 import *
import common as C
from sched import mk
LDSSET3=[('q',0),('q',1),('q',2),('q',3),('q',8),('o',1,0),('o',0,2),('o',1,2),('o',1,3)]
sC2=88
sTCH=58
sWK=56; sWQ=57
sNR=38
def R(b,n): return {('v',b+i) for i in range(n)}
class Rec3(Rec2):
    def __init__(self, lds_set=None, d1=0, d2j=100, d2n=700, show=False, defer_km=False, touch=True, xsc1=False, tsc1=True, **kw):
        super().__init__(lds_set or LDSSET3, d1=d1, d2j=d2j, d2n=d2n, **kw)
        self.show=show; self.touch=touch
        if xsc1: self.xld='sc1'
        self.tflag='sc1' if tsc1 else ''
    def consts(self,a):
        super().consts(a)
        a(f"""
  v_lshrrev_b32 v38, 1, v12
  v_lshlrev_b32 v38, 1, v38
  v_lshrrev_b32 v39, 3, v13
  v_add_u32 v38, v38, v39
  s_lshl_b32 s77, s{sW}, 2
  v_add_u32 v38, s77, v38
  v_lshlrev_b32 v38, 7, v38
  v_and_b32 v39, 7, v13
  v_lshlrev_b32 v39, 4, v39
  v_add_u32 v38, v38, v39
  v_and_b32 v39, 1, v12
  v_lshlrev_b32 v39, 3, v39
  v_add_u32 v{vPst}, v38, v39
""")
    def scalars(self,a):
        super().scalars(a)
        a(f"s_lshl_b32 s{sWK}, s{sW}, 10\n s_lshl_b32 s{sWQ}, s{sW}, 8\n s_add_u32 s{sWQ}, s{sWQ}, 8192")
        a(f"s_mov_b32 s{sC2}, s{sC}\n s_mov_b32 s{sC2+1}, s{sC}\n s_mov_b64 s[{sNR}:{sNR+1}], 0")
        if self.fused:
            a(f"s_add_u32 s{sFKV}, s{sFKV}, 256")
    def block(self,w):
        N=[]
        def n(t,tag=None,after=(),p=0): N.append(mk(t,tag,after,p))
        fr=self.frag
        idx=f"v{vIdx}"
        sm=lambda d,A,B: f"v_smfmac_f32_16x16x64_bf16 v[{d}:{d+3}], v[{A}:{A+3}], {B}, {idx}"
        cv=lambda d,x,y: n(f"v_cvt_pk_bf16_f32 v{d}, v{x}, v{y}")
        pka=lambda d,x: n(f"v_pk_add_f32 v[{d}:{d+1}], v[{d}:{d+1}], v[{x}:{x+1}]")
        A0,A1,A2=12,16,20
        ring=list(self.ringQK)
        Q0,Q1,K0,K1=32,36,40,44
        KX=48; WB=[56,64]; V0,V1=56,60; VX=64; F=vPld; ONE=vPub
        acc={('q',0):Q0,('q',1):Q1,('k',0):K0,('k',1):K1,('v',0):V0,('v',1):V1}
        own=[w,4+w]
        isL=lambda m,ks: fr[(m,ks,0)][0]=='lds'
        others=[k for k in range(9) if k not in own]
        Ls=[k for k in others if isL('q',k) or isL('k',k)]; Rs=[k for k in others if k not in Ls]
        Ls.sort(key=lambda k:(k!=8,k))
        rest=[]
        while Ls or Rs:
            if Ls: rest.append(Ls.pop(0))
            if Rs: rest.append(Rs.pop(0))
        self.rest=rest
        x=self.xld
        n(f"buffer_load_dwordx4 v[{KX}:{KX+3}], v{vL16}, s[{sWSR}:{sWSR+3}], s{sXK} offen {x}",p=200)
        n(f"buffer_load_dwordx4 v[{KX+4}:{KX+7}], v{vL16}, s[{sWSR}:{sWSR+3}], s{sXK} offen offset:1024 {x}")
        self.extra_top(n,w)
        slot_q=[]
        ops=[]
        def kops(ks): return [('q',0,ks),('q',1,ks),('k',0,ks),('k',1,ks)]
        o0=own[0] if (isL('q',own[0]) or isL('k',own[0])) else own[1]
        o1=own[1] if o0==own[0] else own[0]
        for ks in [o0,o1]+rest: ops+=kops(ks)
        lops=[o for o in ops if fr[(o[0],o[2],o[1])][0]=='lds']
        self.pref=lops[:2]
        slot={o:WB[i%2] for i,o in enumerate(lops)}
        def rdW(key,s_,tagp=None):
            off=fr[key][1]
            n(f"ds_read_b128 v[{s_}:{s_+3}], v{vFR} offset:{off}")
            n(f"ds_read_b128 v[{s_+4}:{s_+7}], v{vFR} offset:{off+1024}")
        abuf={own[0]:A0,own[1]:A1}
        nxtL=2
        barred=False
        ri=0
        def rdA(ks,r,after):
            n(f"ds_read_b128 v[{r}:{r+3}], v{vMB} offset:{ks*1024}",after=after)
        for (m,t,ks) in ops:
            if ks not in abuf:
                if not barred:
                    n("s_barrier",tag='b1',after=['mw']); barred=True
                r=ring[ri%3]; ri+=1
                rdA(ks,r,['b1']); abuf[ks]=r
            f=fr[(m,ks,t)]
            B=self.regstr(f[1]) if f[0]=='reg' else f"v[{slot[(m,t,ks)]}:{slot[(m,t,ks)]+7}]"
            qi=ops.index((m,t,ks))
            n(sm(acc[(m,t)],abuf[ks],B),tag={8:'q8',20:'q20',35:'q35'}.get(qi))
            if f[0]=='lds' and nxtL<len(lops):
                o=lops[nxtL]; rdW((o[0],o[2],o[1]),slot[o]); nxtL+=1
        inring={ks:abuf[ks] for ks in rest[-3:]}
        n(f"buffer_load_dwordx4 v[{VX}:{VX+3}], v{vL16}, s[{sWSR}:{sWSR+3}], s{sXV} offen {x}")
        n(f"buffer_load_dwordx4 v[{VX+4}:{VX+7}], v{vL16}, s[{sWSR}:{sWSR+3}], s{sXV} offen offset:1024 {x}")
        if self.fused and w==3:
            n(f"buffer_load_dword v{F}, off, s[{sWSR}:{sWSR+3}], s{sFKV} sc1")
            n(f"s_mov_b64 exec, 1\n buffer_store_dword v{ONE}, off, s[{sWSR}:{sWSR+3}], s{sFKM} sc1\n s_mov_b64 exec, -1",after=['b1'])
        for r in range(0,8,2): n(f"v_mov_b64 v[{V0+r}:{V0+r+1}], 0")
        tm=lambda d,A: n(f"v_mfma_f32_16x16x16_bf16 v[{d}:{d+3}], v[{A}:{A+1}], v[{vSel}:{vSel+1}], 0")
        for k,src in enumerate([Q0,Q1,K0,K1]):
            cv(12+2*k,src,src+1); cv(13+2*k,src+2,src+3)
        tm(32,12); tm(36,14); tm(40,16); tm(44,18)
        N[-1].tag='t4'
        cv(12,32,33); cv(13,34,35); cv(14,36,37); cv(15,38,39)
        cv(16,40,41); cv(17,42,43); cv(18,44,45); cv(19,46,47)
        n(f"buffer_store_dwordx4 v[16:19], v{vL16}, s[{sWSR}:{sWSR+3}], s{sKMo} offen {self.kmflag}")
        n(f"v_mfma_f32_16x16x32_bf16 v[36:39], v[{KX}:{KX+3}], v[12:15], 0")
        n(f"v_mfma_f32_16x16x32_bf16 v[40:43], v[{KX+4}:{KX+7}], v[12:15], 0")
        n(f"v_mfma_f32_16x16x32_bf16 v[32:35], v[16:19], v[12:15], 0")
        for r in range(4): n(f"v_cndmask_b32 v{36+r}, v{40+r}, v{36+r}, s[{sMASK8}:{sMASK8+1}]")
        n(f"ds_write_b128 v{vMB}, v[36:39] offset:{LDS_SX-LDS_M+w*1024}",tag='sx')
        n(f"s_mov_b64 exec, 0x00ff00ff\n ds_write_b128 v{vSm}, v[32:35] offset:{w*256}\n s_mov_b64 exec, -1",tag='sw')
        n("s_barrier",tag='b2',after=['sx','sw','b1'])
        ring=list(self.ringV)
        vorder=list(rest[-3:])+[k for k in [own[0],own[1]]+rest[:-3]]
        for ks in vorder:
            if ks in inring: r=inring[ks]
            else:
                r=ring[ri%3]; ri+=1
                rdA(ks,r,['b1','sx'])
            for t in range(2):
                f=fr[('v',ks,t)]; assert f[0]=='reg'
                n(sm(acc[('v',t)],r,self.regstr(f[1])),p=-int(self.vprio))
        oth=[k for k in range(4) if k!=w]
        for k,r in zip(oth,(40,44,48)): n(f"ds_read_b128 v[{r}:{r+3}], v{vMB} offset:{LDS_SX-LDS_M+k*1024}",after=['b2'])
        for k,r in zip(oth,(52,72,12)): n(f"ds_read_b128 v[{r}:{r+3}], v{vSm} offset:{k*256}",after=['b2'])
        N.append(mk("v_pk_add_f32 v[36:37], v[36:37], v[40:41]",'m1')); pka(38,42); pka(44,48); pka(46,50); pka(36,44); pka(38,46)
        pka(32,52); pka(34,54); pka(72,12); pka(74,14); pka(32,72); pka(34,74)
        n("v_max3_f32 v72, v36, v37, v38"); n("v_max3_f32 v73, v39, v32, v33")
        n("v_max3_f32 v72, v72, v34, v35"); n("v_max_f32 v72, v72, v73")
        n("v_max_f32_dpp v72, v72, v72 row_ror:8 row_mask:0xf bank_mask:0xf")
        for sw in ('16','32'):
            n("v_mov_b32 v73, v72"); n(f"v_permlane{sw}_swap_b32 v72, v73"); n("v_max_f32 v72, v72, v73")
        n(f"v_mul_f32 v72, s{sC}, v72",tag='m2')
        for b in (36,38,32,34):
            n(f"v_pk_fma_f32 v[{b}:{b+1}], v[{b}:{b+1}], s[{sC2}:{sC2+1}], v[72:73] op_sel_hi:[1,1,0] neg_lo:[0,0,1] neg_hi:[0,0,1]")
        for r in (36,37,38,39,32,33,34,35): n(f"v_exp_f32 v{r}, v{r}",tag='m3' if r==35 else None)
        cv(40,36,37); cv(41,38,39); cv(44,32,33); cv(45,34,35)
        n("v_mov_b32_dpp v42, v40 row_ror:8 row_mask:0xf bank_mask:0xf")
        n("v_mov_b32_dpp v43, v41 row_ror:8 row_mask:0xf bank_mask:0xf")
        n("v_pk_add_f32 v[74:75], v[36:37], v[38:39]"); n("v_add_f32 v73, v74, v75")
        n("v_pk_add_f32 v[74:75], v[32:33], v[34:35]"); n("v_add_f32 v74, v74, v75")
        n("v_fmac_f32 v73, 0x3e800000, v74")
        n("v_add_f32_dpp v73, v73, v73 row_ror:8 row_mask:0xf bank_mask:0xf")
        for sw in ('16','32'):
            n("v_mov_b32 v74, v73"); n(f"v_permlane{sw}_swap_b32 v73, v74"); n("v_add_f32 v73, v73, v74")
        n("v_rcp_f32 v72, v73",tag='m4')
        cv(48,V0,V0+1); cv(49,V0+2,V0+3); cv(50,V1,V1+1); cv(51,V1+2,V1+3)
        n(f"buffer_store_dwordx4 v[48:51], v{vL16}, s[{sWSR}:{sWSR+3}], s{sKMo} offen offset:1024 {self.kmflag}")
        n(f"v_mfma_f32_16x16x32_bf16 v[52:55], v[{VX}:{VX+3}], v[40:43], 0",tag='p0')
        n(f"v_mfma_f32_16x16x32_bf16 v[12:15], v[{VX+4}:{VX+7}], v[40:43], 0",tag='p1')
        n(f"v_mfma_f32_16x16x16_bf16 v[52:55], v[48:49], v[44:45], v[52:55]",tag='p2')
        n(f"v_mfma_f32_16x16x16_bf16 v[12:15], v[50:51], v[44:45], v[12:15]",tag='p3')
        for b in (52,54,12,14): n(f"v_pk_mul_f32 v[{b}:{b+1}], v[{b}:{b+1}], v[72:73] op_sel_hi:[1,0]")
        cv(44,52,53); cv(45,54,55); cv(46,12,13); cv(47,14,15)
        n(f"s_mov_b64 exec, s[{sMASK8}:{sMASK8+1}]\n ds_write_b64 v{vOw}, v[44:45] offset:{(4*w)*128}\n ds_write_b64 v{vOw}, v[46:47] offset:{(4*w+2)*128}\n s_mov_b64 exec, -1",tag='ow')
        n("s_barrier",tag='b3',after=['ow','b2'])
        n(f"ds_read_b128 v[48:51], v{vMB} offset:{LDS_O-LDS_M}",after=['b3'])
        n(f"ds_read_b128 v[52:55], v{vMB} offset:{LDS_O-LDS_M+1024}",after=['b3'])
        self._first_o=True
        if self.fused and w==3:
            n(f"v_cmp_eq_u32 s[{sNR}:{sNR+1}], 0, v{F}",after=['b3'])
        oorder=[(k,T) for p in range(4) for k in range(2) for T in (2*p,2*p+1)]+[(0,8),(1,8)]
        if self.t8first: oorder=oorder[-2:]+oorder[:-2]
        olds=[kt for kt in oorder if fr[('o',kt[0],kt[1])][0]=='lds']
        oslots=[56,64,72]
        oslot={kt:oslots[j%3] for j,kt in enumerate(olds)}
        if self.touch:
            n(f"v_lshlrev_b32 v47, 2, v{vL16}"); n("v_and_b32 v47, 0x7c0, v47"); n(f"v_lshrrev_b32 v46, 9, v{vL16}"); n("v_lshl_or_b32 v47, v46, 13, v47")
            n(f"buffer_load_dword v47, s[{sWSR}:{sWSR+3}], s{sTCH} offen {self.tflag} lds",after=['b3'])
        self.extra_b3(n,w)
        for r in range(12,48,2): n(f"v_mov_b64 v[{r}:{r+1}], 0")
        for kt in olds[:3]: rdW(('o',kt[0],kt[1]),oslot[kt])
        onxt=3
        done=set()
        def pack_pair(p):
            A_=12+8*p; B_=A_+4
            for r in range(4): n(f"v_permlane32_swap_b32 v{A_+r}, v{B_+r}")
            pka(A_,B_); pka(A_+2,B_+2)
            cv(B_,A_,A_+1); cv(B_+1,A_+2,A_+3)
            so=sPst if p<2 else sPst2
            n(f"buffer_store_dwordx2 v[{B_}:{B_+1}], v{vPst}, s[{sPM}:{sPM+3}], s{so} offen offset:{(p&1)*2048} {self.stflag}")
        def pack8():
            n("v_permlane32_swap_b32 v44, v46"); n("v_permlane32_swap_b32 v45, v47")
            pka(44,46); cv(44,44,45)
            n(f"buffer_store_dword v44, v{vP8}, s[{sPM}:{sPM+3}], s{sPst} offen {self.stflag}")
        for (k,T) in oorder:
            f=fr[('o',k,T)]
            B=self.regstr(f[1]) if f[0]=='reg' else f"v[{oslot[(k,T)]}:{oslot[(k,T)]+7}]"
            n(sm(12+4*T,48+4*k,B),tag=('o1' if not done else ('o2' if len(done)==17 else ('o9' if len(done)==8 else None))))
            if f[0]=='lds' and onxt<len(olds):
                kt=olds[onxt]; onxt+=1; rdW(('o',kt[0],kt[1]),oslot[kt])
            done.add((k,T))
            if T==8 and k==1: pack8()
            if T&1 and k==1 and T<8: pack_pair(T//2)
        return N
    def extra_top(self,n,w): pass
    def extra_b3(self,n,w): pass
    ringQK=(24,28,20); ringV=(24,28,20)
    vprio=0; t8first=False; tflag='sc1'
    def pref_frags(self,a,w):
        fr=self.frag
        for i,o in enumerate(self.pref):
            off=fr[(o[0],o[2],o[1])][1]; s_=[56,64][i]
            a(f"ds_read_b128 v[{s_}:{s_+3}], v{vFR} offset:{off}")
            a(f"ds_read_b128 v[{s_+4}:{s_+7}], v{vFR} offset:{off+1024}")
    def idle_common(self,a,w):
        self.pref_frags(a,w)
        for r in range(32,48,2): a(f"v_mov_b64 v[{r}:{r+1}], 0")
    fixx=0
    def adv(self,a):
        a(f"""
  s_add_u32 s{sXK}, s{sXK}, {0 if self.fixx else 32*16384}
  s_add_u32 s{sXV}, s{sXV}, {0 if self.fixx else 32*16384}
  s_add_u32 s{sKMo}, s{sKMo}, {32*8192}
  s_mov_b32 s{sCNT}, 400000
  s_lshl_b32 s74, s{sW}, {11 if self.touch==2 else 31}
  s_and_b32 s74, s74, 0x1800
  s_add_u32 s{sTCH}, s{sXK}, {32*16384}
  s_add_u32 s{sTCH}, s{sTCH}, s74
  s_cmp_ge_u32 s{sSTEP}, 62
  s_cselect_b32 s{sTCH}, {C.NULLOFF}, s{sTCH}
""")
        if self.fused:
            a(f"""
  s_lshl_b32 s74, s{sSTEP}, 7
  s_lshl_b32 s75, s{sH}, 2
  s_add_u32 s74, s74, s75
  s_add_u32 s{sFKM}, s74, {C.F_KM}
  s_min_u32 s75, s{sSTEP}, 60
  s_lshl_b32 s75, s75, 7
  s_lshl_b32 s74, s{sH}, 2
  s_add_u32 s74, s74, s75
  s_add_u32 s{sFKV}, s74, {C.F_KV+3*128}
""")
    def loop(self,a,w,lab):
        N=self.block(w)
        avail={}
        for r in R(12,12): avail[r]=0
        avail['b1']=70
        order,t=sched.schedule(N,avail=avail)
        print(f'wave {w}: predicted block cycles {t}, rest {self.rest}')
        self.step_scalars(a)
        a(f"s_add_u32 s{sTCH}, s{sXK}, {32*16384}\n s_mov_b32 m0, {LDS_SX+w*1024}")
        self.idle_common(a,w)
        if w==3: a(f"v_mov_b32 v{vPub}, 1")
        a(f"v_and_b32 v25, 0xf0, v{vL16}\n s_mov_b32 s{sCNT}, 400000\n s_waitcnt lgkmcnt(0)\n s_branch {lab}_have")
        b=12
        a(f"""
{lab}_retry:
  s_add_u32 s{sR2}, s{sR2}, 1
  s_sub_u32 s{sCNT}, s{sCNT}, 1
  s_cmp_eq_u32 s{sCNT}, 0
  s_cbranch_scc1 {lab}_exit
{lab}_gather:
  buffer_load_dwordx4 v[{b}:{b+3}], v{vL16}, s[{sPM}:{sPM+3}], s{sMg} offen sc1
  buffer_load_dwordx4 v[{b+4}:{b+7}], v{vL16}, s[{sPM}:{sPM+3}], s{sMg+1} offen sc1
  buffer_load_dwordx4 v[{b+8}:{b+11}], v25, s[{sPM}:{sPM+3}], s{sMg+2} offen sc1
  s_waitcnt vmcnt(0)
{lab}_have:
  ds_write_b128 v{vMB}, v[12:15] offset:{w*1024}
  ds_write_b128 v{vMB}, v[16:19] offset:{(4+w)*1024}
  s_mov_b64 exec, 0xffff
  ds_write_b128 v{vMB}, v[20:23] offset:{8192+w*256}
  s_mov_b64 exec, -1
  v_max3_u32 v24, v12, v13, v14
  v_max3_u32 v26, v15, v16, v17
  v_max3_u32 v24, v24, v18, v19
  v_max3_u32 v26, v26, v20, v21
  v_max3_u32 v24, v24, v22, v23
  v_max_u32 v24, v24, v26
  v_cmp_eq_u32 vcc, -1, v24
  s_cbranch_vccnz {lab}_retry
""")
        self.stamp(a,0)
        if self.timing: a("s_waitcnt lgkmcnt(0)")
        hooks={}
        if self.timing:
            for k,tg in enumerate(['b1','sw','b2','b3']): hooks[tg]=f"{self.tinst} s[{6+2*k}:{7+2*k}]"
        sched.emit(a,order,ds_init=[R(56,4),R(60,4),R(64,4),R(68,4),set(),set(),(set(),'mw')],show_t=self.show,hooks=hooks)
        self.stamp(a,5)
        a(f"s_cmp_eq_u32 s{sSTEP}, {self.steps-1}\n s_cbranch_scc1 {lab}_exit")
        if self.fused and w==3:
            a(f"""
  s_cmp_eq_u64 s[{sNR}:{sNR+1}], 0
  s_cbranch_scc1 {lab}_fok
  s_mov_b32 s75, 4000000
{lab}_fpoll:
  buffer_load_dword v24, off, s[{sWSR}:{sWSR+3}], s{sFKV} sc1
  s_waitcnt vmcnt(0)
  v_readfirstlane_b32 s74, v24
  s_sub_u32 s75, s75, 1
  s_cmp_eq_u32 s75, 0
  s_cbranch_scc1 {lab}_fok
  s_cmp_eq_u32 s74, 0
  s_cbranch_scc1 {lab}_fpoll
{lab}_fok:
""")
        self.adv(a)
        self.idle_common(a,w)
        a(f"v_and_b32 v25, 0xf0, v{vL16}")
        if self.isjob(w):
            a(f"""
  s_cmp_eq_u32 s{sJOB}, 0
  s_cbranch_scc1 {lab}_nojob
  v_mov_b32 v28, v{vSel}
  v_mov_b32 v29, v{vSel+1}
  v_mov_b32 v30, v{vSel}
  v_mov_b32 v31, v{vSel+1}
  v_mov_b64 v[72:73], -1
  v_mov_b64 v[74:75], -1
  v_permlane16_swap_b32 v28, v30
  v_permlane16_swap_b32 v29, v31
""")
            if self.d1: a(nops(self.d1))
            a(f"{lab}_poll1:")
            for k in range(4):
                a(f"buffer_load_dwordx4 v[{12+4*k}:{12+4*k+3}], v{vPld}, s[{sPM}:{sPM+3}], s{sPl+k} offen sc1")
            a(f"""
  s_waitcnt vmcnt(3)
  v_mfma_f32_16x16x32_bf16 v[48:51], v[12:15], v[28:31], 0
  s_waitcnt vmcnt(2)
  v_mfma_f32_16x16x32_bf16 v[52:55], v[16:19], v[28:31], 0
  s_waitcnt vmcnt(1)
  v_mfma_f32_16x16x32_bf16 v[48:51], v[20:23], v[28:31], v[48:51]
  s_waitcnt vmcnt(0)
  v_mfma_f32_16x16x32_bf16 v[52:55], v[24:27], v[28:31], v[52:55]
  v_pk_add_f32 v[48:49], v[48:49], v[52:53]
  v_pk_add_f32 v[50:51], v[50:51], v[54:55]
  v_permlane32_swap_b32 v48, v50
  v_permlane32_swap_b32 v49, v51
  v_pk_add_f32 v[48:49], v[48:49], v[50:51]
  v_cmp_u_f32 vcc, v48, v49
  v_cvt_pk_bf16_f32 v48, v48, v49
  s_cbranch_vccnz {lab}_again1
  s_mov_b64 exec, s[{sMASK8}:{sMASK8+1}]
  buffer_store_dword v48, v{vPub}, s[{sPM}:{sPM+3}], s{sMP} offen {self.stflag}
  buffer_store_dword v72, v{vPub}, s[{sPM}:{sPM+3}], s{sMR} offen {self.stflag}
""")
            if self.dbgM:
                a(f"""
  s_mul_i32 s74, s{sSTEP}, 9216
  s_add_u32 s74, s74, {DBG_OFF}
  buffer_store_dword v48, v{vPub}, s[{sWSR}:{sWSR+3}], s74 offen
""")
            a("s_mov_b64 exec, -1")
            for k in range(4):
                a(f"buffer_store_dwordx4 v[72:75], v{vPld}, s[{sPM}:{sPM+3}], s{sPl+k} offen {self.stflag}")
            a(f"v_and_b32 v25, 0xf0, v{vL16}")
            self.stamp(a,6)
            self.next_scalars(a)
            if self.d2j: a(nops(self.d2j))
            self.stamp(a,7); self.stamp_acc(a,8)
            a(f"s_branch {lab}_gather")
            a(f"""
{lab}_again1:
  s_add_u32 s{sR1}, s{sR1}, 1
  s_sub_u32 s{sCNT}, s{sCNT}, 1
  s_cmp_lg_u32 s{sCNT}, 0
  s_cbranch_scc1 {lab}_poll1
  s_branch {lab}_exit
{lab}_nojob:
""")
        self.stamp(a,6)
        self.next_scalars(a)
        if self.d2n: a(nops(self.d2n))
        self.stamp(a,7); self.stamp_acc(a,8)
        a(f"s_branch {lab}_gather")
    def next_scalars(self,a):
        a(f"""
  s_add_u32 s{sSTEP}, s{sSTEP}, 1
  s_xor_b32 s{sPS}, s{sPS}, {PSLOT}
  s_xor_b32 s{sMP}, s{sMP}, {(MREL+MSLOT)^MREL}
""")
        self.step_scalars(a)
    def step_scalars(self,a):
        a(f"""
  s_add_u32 s{sPst}, s{sPS}, s{sHP}
  s_add_u32 s{sPst2}, s{sPst}, 4096
  s_xor_b32 s{sMR}, s{sMP}, {(MREL+MSLOT)^MREL}
  s_add_u32 s{sMg}, s{sMR}, {'W1024'}
  s_add_u32 s{sMg+1}, s{sMg}, 4096
  s_add_u32 s{sMg+2}, s{sMR}, {'W256'}
""".replace('W1024',f's{sWK}').replace('W256',f's{sWQ}'))
        for i in range(4):
            a(f"s_add_u32 s{sPl+i}, s{sPS}, {i*73728}")
    def pre_wait(self,a):
        C.wait_word(a,sDBG,C.D_INIT,vt=(24,25))
        a(f"v_lshlrev_b32 v24, 3, v{vL16}\n v_add_u32 v24, s{sFKV}, v24\n v_subrev_u32 v24, 256, v24")
        C.wait_words(a,24,3,base=sWS,vt=25)
```

```python
import sys
sys.path.insert(0,'gen')
from asmlib import *

MB=1<<20
XKV_OFF=0
QX_OFF=32*MB
KMVM_OFF=48*MB
P_OFF=64*MB
PSLOT=32*9216
M_OFF=65*MB
MSLOT=9216
DBG_OFF=66*MB
LDS_M=147456
LDS_O=LDS_M+9216
LDS_SX=LDS_O+2048
LDS_SM=LDS_SX+4096
LDS_END=163840
assert LDS_SM+1024==LDS_END
WROW=8192
SCALE=128**-0.5
LOG2E=1.4426950408889634
import struct
D_HOME=64
def f2u(x): return struct.unpack('<I',struct.pack('<f',x))[0]

def chunk_list(lds_set):
    allc=[('q',k) for k in range(9)]+[('k',k) for k in range(9)]+[('v',k) for k in range(9)]
    allc+=[('o',k,u) for k in range(2) for u in range(4)]+[('o8',)]
    regc=[c for c in allc if c not in lds_set]
    assert len(regc)==27 and len(lds_set)==9
    return regc+list(lds_set)
def frag_key(c,t):
    if c[0] in 'qkv' and len(c)==2: return (c[0],c[1],t)
    if c[0]=='o': return ('o',c[1],2*c[2]+t)
    return ('o',t,8)

vL16=0; vFR=1; vMB=2; vIdx=3; vSel=4
vPst=6; vP8=7; vPld=8; vOw=9; vSm=10; vT1=11; vPub=11
MA=12
ACC=24
KX=48; VX=56; WB=64
sWS=28; sDBG=30; sMEM=32; sH=34; sW=35; sSTEP=36; sJOB=37
sPST=40
sPLD=44
sPUB=52
sMRS=54
sMLD=56
sXKV=58
sKM=60
sPRS=62
sMASK8=70
sRETRY=72
sT=74
sC=80
sJM=82
sJM8=84
sTM=86
sMLD2=88

class Rec:
    def __init__(self, lds_set, dbg=False, stflag='', steps=64, timing=False):
        self.lds_set=list(lds_set)
        self.chunks=chunk_list(self.lds_set)
        self.dbg=dbg; self.stflag=stflag; self.steps=steps; self.timing=timing
        self.frag={}
        n=0
        for ci,c in enumerate(self.chunks[:27]):
            for t in range(2):
                if n<22: base=('v',80+8*n)
                else: base=('a',8*(n-22))
                self.frag[frag_key(c,t)]=('reg',base); n+=1
        for k,c in enumerate(self.chunks[27:]):
            for t in range(2):
                self.frag[frag_key(c,t)]=('lds',k*4096+t*2048)


    def startup(self,a):
        a(f"""
  s_load_dwordx2 s[4:5], s[0:1], 40
  s_load_dwordx2 s[6:7], s[0:1], 48
  s_load_dwordx2 s[8:9], s[0:1], 56
  s_load_dwordx2 s[10:11], s[0:1], 64
  s_load_dwordx2 s[{sMEM}:{sMEM+1}], s[0:1], 32
  s_load_dwordx2 s[{sWS}:{sWS+1}], s[0:1], 96
  s_load_dwordx2 s[{sDBG}:{sDBG+1}], s[0:1], 88
  v_lshrrev_b32 v12, 6, v0
  v_and_b32 v31, 63, v0
  v_readfirstlane_b32 s{sW}, v12
  s_waitcnt lgkmcnt(0)
""")
        for i,b in enumerate((12,16,20,24)):
            a(f"""
  s_mov_b32 s{b}, s{4+2*i}
  s_mov_b32 s{b+1}, s{5+2*i}
  s_mov_b32 s{b+2}, {576*8192}
  s_mov_b32 s{b+3}, 0x00020000
""")
        a(f"""
  v_lshrrev_b32 v12, 4, v31         ; rr / g
  v_and_b32 v13, 15, v31            ; c16 / n
  v_and_b32 v14, 1, v12
  v_lshlrev_b32 v14, 1, v14         ; 2*(rr&1)
  v_xor_b32 v14, v13, v14           ; c16 ^ 2(rr&1)
""")
        for q in range(4):
            a(f"""
  v_xor_b32 v15, {4*q}, v14
  v_add_u32 v28, {4*q}, v12
  v_lshlrev_b32 v29, 13, v28
  v_lshlrev_b32 v30, 4, v15
  v_add_u32 v{16+q}, v29, v30
  v_mul_u32_u24 v29, 1152, v28
  v_add_u32 v{20+q}, v29, v30
  v_lshrrev_b32 v36, 1, v15
  v_and_b32 v36, 1, v36             ; t
  v_mul_u32_u24 v36, {64*1152}, v36
  v_add_u32 v29, v29, v36
  v_lshrrev_b32 v36, 2, v15         ; w'
  v_lshlrev_b32 v36, 1, v36
  v_and_b32 v37, 1, v15
  v_add_u32 v36, v36, v37
  v_lshlrev_b32 v36, 4, v36
  v_add_u32 v29, v29, v36
  v_add_u32 v{24+q}, 1024, v29
""")
        a(f"""
  s_lshl_b32 s74, s{sW}, 17         ; 16w*8192
  s_lshl_b32 s75, s{sH}, 8
  s_add_u32 s74, s74, s75           ; qkv scalar base
  s_mul_i32 s75, s{sH}, 147456
  s_mul_i32 s76, s{sW}, {16*1152}
  s_add_u32 s75, s75, s76
  s_mul_i32 s76, s{sW}, 36864
""")
        D=int(__import__("os").environ.get("RD","8"))
        def dma(ci):
            c=self.chunks[ci]; slot=ci%9
            if c[0] in 'qkv' and len(c)==2:
                srd={'q':12,'k':16,'v':20}[c[0]]; vb=16; so=f"s_add_u32 s78, s74, {c[1]*64*8192}"
            elif c[0]=='o':
                srd=24; vb=20; so=f"s_add_u32 s78, s75, {c[1]*64*1152+c[2]*256}"
            else:
                srd=24; vb=24; so="s_mov_b32 s78, s75"
            a(so)
            for q in range(4):
                a(f"s_add_u32 m0, s76, {slot*4096+q*1024}")
                a("s_nop 0")
                a(f"buffer_load_dwordx4 v{vb+q}, s[{srd}:{srd+3}], s78 offen lds")
        for ci in range(D): dma(ci)
        a(f"""
  v_lshrrev_b32 v36, 2, v13         ; r = p>>2
  v_and_b32 v47, 3, v13             ; c
  v_lshrrev_b32 v38, 1, v12         ; gb>>1
  v_and_b32 v39, 1, v12             ; gb&1
  v_mul_u32_u24 v40, 36864, v38
  v_lshrrev_b32 v41, 1, v36         ; r>>1
  v_and_b32 v42, 1, v36             ; r&1
  v_lshlrev_b32 v43, 3, v41
  v_lshlrev_b32 v44, 2, v39
  v_add_u32 v43, v43, v44
  v_add_u32 v43, v43, v42
  v_lshlrev_b32 v43, 8, v43
  v_add_u32 v40, v40, v43
  v_lshlrev_b32 v43, 1, v42
  v_add_u32 v43, v43, v44
  v_lshlrev_b32 v45, 3, v41
  v_add_u32 v43, v43, v45           ; s
  v_lshrrev_b32 v45, 1, v47         ; c>>1
  s_lshl_b32 s77, s{sW}, 2
  v_add_u32 v45, s77, v45           ; 4w + (c>>1)
  v_xor_b32 v45, v45, v43
  v_lshlrev_b32 v45, 4, v45
  v_and_b32 v46, 1, v47
  v_lshlrev_b32 v46, 3, v46
  v_add_u32 v45, v45, v46
  v_add_u32 v32, v40, v45
  v_xor_b32 v45, 32, v45
  v_add_u32 v33, v40, v45
  v_add_u32 v34, 73728, v32
  v_add_u32 v35, 73728, v33
""")
        self.consts(a)
        spec=getattr(self,'spec',None)
        if not spec: self.init_nan(a)
        for ci,c in enumerate(self.chunks):
            slot=ci%9
            nleft=min(len(self.chunks)-1-ci, D-1)
            a(f"s_waitcnt vmcnt({4*nleft}) lgkmcnt(0)")
            a("s_barrier")
            if spec and ci==8:
                a(f"v_mov_b32 v61, {D_HOME}\n global_load_dword v60, v61, s[{sDBG}:{sDBG+1}] sc1")
            if spec and ci==8+D:
                l=a.newlabel('sp')
                a(f"""
  s_mov_b32 s77, 4000000
{l}:
  v_readfirstlane_b32 s79, v60
  s_cmp_eq_u32 s79, s98
  s_cbranch_scc1 {l}_ok
  s_cmp_lg_u32 s79, 0
  s_cbranch_scc1 {spec}
  global_load_dword v60, v61, s[{sDBG}:{sDBG+1}] sc1
  s_waitcnt vmcnt(0)
  s_sub_u32 s77, s77, 1
  s_cmp_lg_u32 s77, 0
  s_cbranch_scc1 {l}
  s_branch {spec}
{l}_ok:
""")
                self.init_nan(a)
            if ci+D<len(self.chunks): dma(ci+D)
            for t in range(2):
                f=self.frag[frag_key(c,t)]
                for i in range(4):
                    av=32+t+2*(i>>1)
                    off=slot*4096+(i&1)*512
                    if f[0]=='reg':
                        b=f[1]; d=f"{b[0]}[{b[1]+2*i}:{b[1]+2*i+1}]"
                    else:
                        d=f"v[{48+8*t+2*i}:{48+8*t+2*i+1}]"
                    a(f"ds_read_b64_tr_b16 {d}, v{av} offset:{off}")
            if ci>=27:
                a("s_waitcnt lgkmcnt(0)\n s_barrier")
                for t in range(2):
                    for hf in range(2):
                        a(f"ds_write_b128 v{vFR}, v[{48+8*t+4*hf}:{48+8*t+4*hf+3}] offset:{slot*4096+t*2048+hf*1024}")
        a("s_waitcnt lgkmcnt(0)")

    def consts(self,a):
        a(f"""
  v_lshlrev_b32 v{vL16}, 4, v31
  v_add_u32 v{vFR}, s76, v{vL16}
  v_add_u32 v{vMB}, {LDS_M}, v{vL16}
  v_mov_b32 v36, 0x4444
  v_mov_b32 v38, 0xeeee
  v_cmp_gt_u32 vcc, 8, v13
  s_mov_b32 s{sMASK8}, 0x00ff00ff
  s_mov_b32 s{sMASK8+1}, 0x00ff00ff
  v_cndmask_b32 v{vIdx}, v38, v36, vcc
  v_and_b32 v36, 7, v13             ; n&7
  v_and_b32 v38, 1, v12
  v_lshlrev_b32 v38, 2, v38         ; 4*(gb&1)
  v_sub_u32 v38, v36, v38
  v_mov_b32 v39, 0x3f80
  v_mov_b32 v40, 0x3f800000
  v_cmp_eq_u32 vcc, 0, v38
  v_cndmask_b32 v{vSel}, 0, v39, vcc
  v_cmp_eq_u32 vcc, 1, v38
  v_cndmask_b32 v{vSel}, v{vSel}, v40, vcc
  v_cmp_eq_u32 vcc, 2, v38
  v_cndmask_b32 v{vSel+1}, 0, v39, vcc
  v_cmp_eq_u32 vcc, 3, v38
  v_cndmask_b32 v{vSel+1}, v{vSel+1}, v40, vcc
  v_and_b32 v38, 1, v12
  v_lshlrev_b32 v38, 4, v38
  v_lshrrev_b32 v39, 1, v12
  v_lshlrev_b32 v39, 1, v39
  v_add_u32 v38, v38, v39
  v_lshrrev_b32 v39, 3, v13
  v_add_u32 v38, v38, v39
  s_lshl_b32 s77, s{sW}, 2
  v_add_u32 v38, s77, v38
  v_lshlrev_b32 v38, 7, v38
  v_lshlrev_b32 v36, 4, v36         ; (n&7)*16
  v_add_u32 v{vPst}, v38, v36
  ; pattern = (n&7)*16 + {{0,8,4,12}}[g]
  v_and_b32 v38, 1, v12
  v_lshlrev_b32 v38, 3, v38
  v_lshrrev_b32 v39, 1, v12
  v_lshlrev_b32 v39, 2, v39
  v_add_u32 v38, v38, v39
  v_add_u32 v38, v38, v36           ; pattern
  v_lshrrev_b32 v39, 3, v13
  s_lshl_b32 s77, s{sW}, 1
  s_add_u32 s77, s77, 64
  v_add_u32 v39, s77, v39
  v_lshlrev_b32 v39, 7, v39
  v_add_u32 v{vP8}, v39, v38
  s_lshl_b32 s77, s{sW}, 5
  s_add_u32 s77, s77, s{sH}
  s_cmp_lt_u32 s77, 72
  s_cselect_b32 s{sJOB}, 1, 0
  s_cselect_b64 s[{sJM}:{sJM+1}], -1, 0
  s_cselect_b32 s77, s77, 0
  s_and_b64 s[{sJM8}:{sJM8+1}], s[{sJM}:{sJM+1}], s[{sMASK8}:{sMASK8+1}]
  s_lshl_b32 s79, s77, 7             ; J*128
  v_add_u32 v{vPub}, s79, v38
  v_lshrrev_b32 v39, 3, v31
  v_mul_u32_u24 v39, 9216, v39
  v_add_u32 v39, v39, v36
  v_add_u32 v{vPld}, s79, v39
  v_lshrrev_b32 v39, 1, v12
  v_lshlrev_b32 v39, 7, v39
  v_and_b32 v38, 1, v12
  v_lshlrev_b32 v38, 3, v38
  v_add_u32 v39, v39, v38
  v_add_u32 v39, v39, v36
  v_add_u32 v{vOw}, {LDS_O}, v39
  v_and_b32 v38, 1, v12
  v_lshlrev_b32 v38, 7, v38
  v_add_u32 v38, v38, v36
  v_add_u32 v{vSm}, {LDS_SM}, v38
  s_mov_b32 s{sC}, {f2u(SCALE*LOG2E):#x}
""")

    def init_nan(self,a):
        a(f"""
  v_mov_b32 v64, -1
  v_mov_b32 v65, -1
  v_mov_b32 v66, -1
  v_mov_b32 v67, -1
  s_add_u32 s4, s{sWS}, {P_OFF}
  s_addc_u32 s5, s{sWS+1}, 0
  s_cmp_eq_u32 s{sJOB}, 0
  s_cbranch_scc1 .Lnan_skip{id(self)%100000}
""")
        for sl in range(2):
            for i in range(4):
                a(f"v_add_u32 v68, {sl*PSLOT+i*73728}, v{vPld}")
                a(f"global_store_dwordx4 v68, v[64:67], s[4:5] {self.stflag}")
        a(f"""
  s_add_u32 s4, s{sWS}, {M_OFF}
  s_addc_u32 s5, s{sWS+1}, 0
  v_add_u32 v68, {MSLOT}, v{vPub}
  s_mov_b64 exec, s[{sMASK8}:{sMASK8+1}]
  global_store_dword v{vPub}, v64, s[4:5] {self.stflag}
  global_store_dword v68, v64, s[4:5] {self.stflag}
  s_mov_b64 exec, -1
.Lnan_skip{id(self)%100000}:
""")

    def start_sync(self,a,xcc_sgpr):
        a(f"""
  s_waitcnt vmcnt(0)
  s_barrier
  s_lshl_b32 s74, s{xcc_sgpr}, 2
  s_add_u32 s74, s74, 32
  v_mov_b32 v12, s74
  v_mov_b32 v13, 1
  s_cmp_lg_u32 s{sW}, 0
  s_cbranch_scc1 .Lrs_skip
  s_mov_b64 exec, 1
  global_atomic_add v12, v13, s[{sDBG}:{sDBG+1}]
  s_mov_b32 s75, 2000000
.Lrs_poll:
  global_load_dword v14, v12, s[{sDBG}:{sDBG+1}] sc1
  s_waitcnt vmcnt(0)
  v_readfirstlane_b32 s76, v14
  s_sub_u32 s75, s75, 1
  s_cmp_eq_u32 s75, 0
  s_cbranch_scc1 .Lrs_done
  s_cmp_lt_u32 s76, 32
  s_cbranch_scc1 .Lrs_poll
.Lrs_done:
  s_mov_b64 exec, -1
.Lrs_skip:
  s_barrier
""")
        a(f"""
  v_lshrrev_b32 v24, 4, v{vL16}      ; lane
  v_and_b32 v25, 7, v24
  v_mul_u32_u24 v25, 1152, v25
  v_lshrrev_b32 v24, 3, v24
  v_lshlrev_b32 v24, 4, v24
  v_add_u32 v24, v24, v25            ; r8*1152 + (lane>>3)*16
  s_lshl_b32 s74, s{sW}, 7
  v_add_u32 v25, s74, v24
  global_load_dwordx4 v[{MA}:{MA+3}], v25, s[{sMEM}:{sMEM+1}]
  global_load_dwordx4 v[{MA+4}:{MA+7}], v25, s[{sMEM}:{sMEM+1}] offset:512
  s_lshl_b32 s74, s{sW}, 5
  s_add_u32 s74, s74, 1024
  v_add_u32 v25, s74, v24
  s_mov_b64 exec, 0xffff
  global_load_dwordx4 v[{MA+8}:{MA+11}], v25, s[{sMEM}:{sMEM+1}]
  s_mov_b64 exec, -1
""")
        a(f"""
  s_mov_b32 s{sSTEP}, 0
  s_mul_i32 s74, s{sH}, 9216
  s_add_u32 s74, s74, {P_OFF}
  s_add_u32 s{sPST}, s{sWS}, s74
  s_addc_u32 s{sPST+1}, s{sWS+1}, 0
  s_add_u32 s{sPST+2}, s{sPST}, 4096
  s_addc_u32 s{sPST+3}, s{sPST+1}, 0
""")
        for i in range(4):
            a(f"""
  s_add_u32 s{sPLD+2*i}, s{sWS}, {P_OFF+i*73728}
  s_addc_u32 s{sPLD+2*i+1}, s{sWS+1}, 0
  s_add_u32 s{sPRS+2*i}, s{sWS}, {P_OFF+PSLOT+i*73728}
  s_addc_u32 s{sPRS+2*i+1}, s{sWS+1}, 0
""")
        a(f"""
  s_add_u32 s{sPUB}, s{sWS}, {M_OFF+MSLOT}
  s_addc_u32 s{sPUB+1}, s{sWS+1}, 0
  s_add_u32 s{sMRS}, s{sWS}, {M_OFF}
  s_addc_u32 s{sMRS+1}, s{sWS+1}, 0
  s_lshl_b32 s74, s{sW}, 10
  s_add_u32 s74, s74, {M_OFF+MSLOT}
  s_add_u32 s{sMLD}, s{sWS}, s74
  s_addc_u32 s{sMLD+1}, s{sWS+1}, 0
  s_lshl_b32 s74, s{sW}, 8
  s_add_u32 s74, s74, {M_OFF+MSLOT+8192}
  s_add_u32 s{sMLD2}, s{sWS}, s74
  s_addc_u32 s{sMLD2+1}, s{sWS+1}, 0
  s_lshl_b32 s74, s{sH}, 14
  s_lshl_b32 s75, s{sW}, 11
  s_add_u32 s74, s74, s75
  s_add_u32 s74, s74, {XKV_OFF}
  s_add_u32 s{sXKV}, s{sWS}, s74
  s_addc_u32 s{sXKV+1}, s{sWS+1}, 0
  s_lshl_b32 s74, s{sH}, 13
  s_lshl_b32 s75, s{sW}, 11
  s_add_u32 s74, s74, s75
  s_add_u32 s74, s74, {KMVM_OFF}
  s_add_u32 s{sKM}, s{sWS}, s74
  s_addc_u32 s{sKM+1}, s{sWS+1}, 0
  s_waitcnt vmcnt(0)
""")
```

```python
import sys
sys.path.insert(0,'gen')
from asmlib import *
import rec
from rec import *
import common as C
sFKM=90; sFKV=91
sPM=40
sWSR=44
sPS=48
sMP=49
sPst=50; sPst2=51
sPl=52
sPr=56
sMR=60
sMg=61
sXK=64
sXV=65
sKMo=66
sHP=67
sCNT=68
sR1=69; sR2=73
MREL=M_OFF-P_OFF
class Q:
    def __init__(s,a,name,maxv): s.a=a; s.name=name; s.maxv=maxv; s.n=0; s.pos={}
    def issue(s,tag=None,k=1):
        s.n+=k
        if tag is not None: s.pos[tag]=s.n
    def wait(s,tag):
        c=min(s.n-s.pos[tag],s.maxv)
        s.a(f"s_waitcnt {s.name}({c})")
    def reset(s): s.n=0; s.pos={}
def nops(cyc):
    out=[]; n=cyc//4
    while n>0:
        k=min(n,8); out.append(f"s_nop {k-1}"); n-=k
    return "\n".join(out)

class Rec2(Rec):
    s0=0; poff=P_OFF; lbar=C.D_LBAR; last=63; t2n=0; team2=False
    def __init__(self, lds_set, d1=240, d2j=200, d2n=900, stflag='', kmflag='', steps=64, dbgM=False, timing=False, fused=False):
        super().__init__(lds_set,stflag=stflag)
        self.fused=fused
        if fused: kmflag='sc1'; self.xld='sc1'
        self.d1=d1; self.d2j=d2j; self.d2n=d2n; self.stflag=stflag; self.kmflag=kmflag; self.steps=steps; self.dbgM=dbgM; self.timing=timing
    def fr(self,key):
        return self.frag[key]
    def regstr(self,b): return f"{b[0]}[{b[1]}:{b[1]+7}]"
    def scalars(self,a):
        a(f"""
  s_mov_b32 s{sSTEP}, {self.s0}
  s_add_u32 s{sPM}, s{sWS}, {self.poff}
  s_addc_u32 s{sPM+1}, s{sWS+1}, 0
  s_mov_b32 s{sPM+2}, {2*1024*1024}
  s_mov_b32 s{sPM+3}, 0x00020000
  s_mov_b32 s{sWSR}, s{sWS}
  s_mov_b32 s{sWSR+1}, s{sWS+1}
  s_mov_b32 s{sWSR+2}, 0x10000000
  s_mov_b32 s{sWSR+3}, 0x00020000
  s_mov_b32 s{sPS}, 0
  s_mov_b32 s{sMP}, {MREL+MSLOT}
  s_mul_i32 s{sHP}, s{sH}, 9216
  s_lshl_b32 s74, s{sH}, 14
  s_lshl_b32 s75, s{sW}, 11
  s_add_u32 s{sXK}, s74, s75
  s_add_u32 s{sXK}, s{sXK}, {XKV_OFF+self.s0*32*16384}
  s_add_u32 s{sXV}, s{sXK}, 8192
  s_lshl_b32 s74, s{sH}, 13
  s_add_u32 s{sKMo}, s74, s75
  s_add_u32 s{sKMo}, s{sKMo}, {KMVM_OFF+self.s0*32*8192}
  s_mov_b32 s{sR1}, 0
  s_mov_b32 s{sR2}, 0
""")
        if self.fused:
            a(f"""
  s_mov_b32 s{sFKM}, {C.NULLOFF}
  s_lshl_b32 s74, s{sH}, 2
  s_add_u32 s{sFKV}, s74, {C.F_KV+self.s0*128}
""")
    def step_scalars(self,a):
        a(f"""
  s_add_u32 s{sPst}, s{sPS}, s{sHP}
  s_add_u32 s{sPst2}, s{sPst}, 4096
  s_xor_b32 s74, s{sPS}, {PSLOT}
""")
        for i in range(4):
            a(f"s_add_u32 s{sPl+i}, s{sPS}, {i*73728}\n s_add_u32 s{sPr+i}, s74, {i*73728}")
        a(f"""
  s_xor_b32 s{sMR}, s{sMP}, {(MREL+MSLOT)^MREL}
  s_lshl_b32 s74, s{sW}, 10
  s_add_u32 s{sMg}, s{sMP}, s74
  s_add_u32 s{sMg+1}, s{sMg}, 4096
  s_lshl_b32 s74, s{sW}, 8
  s_add_u32 s74, s74, 8192
  s_add_u32 s{sMg+2}, s{sMP}, s74
""")
    def load_m0(self,a):
        a(f"""
  v_mov_b32 v{MA+8}, 0
  v_mov_b32 v{MA+9}, 0
  v_mov_b32 v{MA+10}, 0
  v_mov_b32 v{MA+11}, 0
  v_lshrrev_b32 v24, 4, v{vL16}      ; lane
  v_and_b32 v25, 7, v24
  v_mul_u32_u24 v25, 1152, v25
  v_lshrrev_b32 v24, 3, v24
  v_lshlrev_b32 v24, 4, v24
  v_add_u32 v24, v24, v25            ; r8*1152 + (lane>>3)*16
  s_lshl_b32 s74, s{sW}, 7
  v_add_u32 v25, s74, v24
  global_load_dwordx4 v[{MA}:{MA+3}], v25, s[{sMEM}:{sMEM+1}]
  global_load_dwordx4 v[{MA+4}:{MA+7}], v25, s[{sMEM}:{sMEM+1}] offset:512
  s_lshl_b32 s74, s{sW}, 5
  s_add_u32 s74, s74, 1024
  v_add_u32 v25, s74, v24
  s_mov_b64 exec, 0xffff
  global_load_dwordx4 v[{MA+8}:{MA+11}], v25, s[{sMEM}:{sMEM+1}]
  s_mov_b64 exec, -1
  s_waitcnt vmcnt(0)
""")
    def local_barrier(self,a,xcc_sgpr,lab):
        a(f"""
  s_waitcnt vmcnt(0)
  s_barrier
  {f's_mov_b32 s74, {self.lbar}' if self.fused else f's_lshl_b32 s74, s{xcc_sgpr}, 2'}
  {'s_nop 0' if self.fused else 's_add_u32 s74, s74, 32'}
  v_mov_b32 v12, s74
  v_mov_b32 v13, 1
  s_cmp_lg_u32 s{sW}, 0
  s_cbranch_scc1 {lab}_skip
  s_mov_b64 exec, 1
  global_atomic_add v12, v13, s[{sDBG}:{sDBG+1}]
  s_mov_b32 s75, 2000000
{lab}_poll:
  global_load_dword v14, v12, s[{sDBG}:{sDBG+1}] sc1
  s_waitcnt vmcnt(0)
  v_readfirstlane_b32 s76, v14
  s_sub_u32 s75, s75, 1
  s_cmp_eq_u32 s75, 0
  s_cbranch_scc1 {lab}_done
  s_cmp_lt_u32 s76, 32
  s_cbranch_scc1 {lab}_poll
{lab}_done:
  s_mov_b64 exec, -1
{lab}_skip:
  s_barrier
""")
    def stamp(self,a,k):
        if self.timing: a(f"{self.tinst} s[{4+2*k}:{5+2*k}]")
    def stamp_acc(self,a,n):
        if not self.timing: return
        a("s_waitcnt lgkmcnt(0)")
        for k in range(n-1):
            a(f"s_sub_u32 s74, s{4+2*(k+1)}, s{4+2*k}\n s_add_u32 s{20+k}, s{20+k}, s74")
        if getattr(self,'trace',False):
            l=a.newlabel('tr')
            a(f"""
  s_sub_u32 s74, s{sSTEP}, 30
  s_cmp_ge_u32 s74, 4
  s_cbranch_scc1 {l}
  s_lshl_b32 s75, s{sH}, 2
  s_add_u32 s75, s75, s{sW}
  s_lshl_b32 s75, s75, 2
  s_add_u32 s75, s75, s74
  s_lshl_b32 s75, s75, 5
  s_add_u32 s75, s75, {DBG_OFF+1024*1024+16384}
  v_mov_b32 v48, s4
  v_mov_b32 v49, s6
  v_mov_b32 v50, s8
  v_mov_b32 v51, s10
  v_mov_b32 v52, s75
  s_mov_b64 exec, 1
  buffer_store_dwordx4 v[48:51], v52, s[{sWSR}:{sWSR+3}], 0 offen
  s_nop 1
  v_mov_b32 v48, s12
  v_mov_b32 v49, s14
  v_mov_b32 v50, s16
  v_mov_b32 v51, s18
  buffer_store_dwordx4 v[48:51], v52, s[{sWSR}:{sWSR+3}], 0 offen offset:16
  s_mov_b64 exec, -1
{l}:
""")
    def loop(self,a,w,lab):
        L=Q(a,'lgkmcnt',15)
        sm=lambda d,A,B: f"v_smfmac_f32_16x16x64_bf16 v[{d}:{d+3}], v[{A}:{A+3}], {B}, v{vIdx}"
        Q0,Q1,K0,K1,V0,V1=24,28,32,36,40,44
        accs={('q',0):Q0,('q',1):Q1,('k',0):K0,('k',1):K1,('v',0):V0,('v',1):V1}
        own=[w,4+w]
        rest=[k for k in [8]+list(range(8)) if k not in own]
        order=own+rest
        mats=[('q',0),('k',0),('v',0),('q',1),('k',1),('v',1)]
        ops=[(m,t,ks) for ks in order for (m,t) in mats]
        ldsops=[i for i,(m,t,ks) in enumerate(ops) if self.frag[(m,ks,t)][0]=='lds']
        WBS=[64,72]
        slot_of={}
        for j,i in enumerate(ldsops): slot_of[i]=WBS[j%2]
        def rdfrag(key,slot,tag):
            off=self.frag[key][1]
            a(f"ds_read_b128 v[{slot}:{slot+3}], v{vFR} offset:{off}")
            a(f"ds_read_b128 v[{slot+4}:{slot+7}], v{vFR} offset:{off+1024}")
            L.issue(tag,2)
        for j in range(2):
            i=ldsops[j]; mm,tt,kk=ops[i]
            rdfrag((mm,kk,tt),slot_of[i],None)
        a("s_waitcnt lgkmcnt(0)"); L.reset()
        a(f"{lab}_top:")
        self.stamp(a,0)
        self.step_scalars(a)
        for r in range(24): a(f"v_mov_b32 v{24+r}, 0")
        a(f"ds_write_b128 v{vMB}, v[{MA}:{MA+3}] offset:{w*1024}"); L.issue()
        a(f"ds_write_b128 v{vMB}, v[{MA+4}:{MA+7}] offset:{(4+w)*1024}"); L.issue()
        a(f"s_mov_b64 exec, 0xffff\n ds_write_b128 v{vMB}, v[{MA+8}:{MA+11}] offset:{8192+w*256}\n s_mov_b64 exec, -1"); L.issue('mw')
        a(f"buffer_load_dwordx4 v[{KX}:{KX+3}], v{vL16}, s[{sWSR}:{sWSR+3}], s{sXK} offen {self.xld}")
        a(f"buffer_load_dwordx4 v[{KX+4}:{KX+7}], v{vL16}, s[{sWSR}:{sWSR+3}], s{sXK} offen offset:1024 {self.xld}")
        a(f"buffer_load_dwordx4 v[{VX}:{VX+3}], v{vL16}, s[{sWSR}:{sWSR+3}], s{sXV} offen {self.xld}")
        a(f"buffer_load_dwordx4 v[{VX+4}:{VX+7}], v{vL16}, s[{sWSR}:{sWSR+3}], s{sXV} offen offset:1024 {self.xld}")
        abuf={own[0]:MA,own[1]:MA+4}
        ring=[MA+8,MA,MA+4]
        nxt=2
        rdA=0
        def issueA():
            nonlocal rdA
            if rdA<len(rest):
                ks=rest[rdA]; b=ring[rdA%3]; abuf[ks]=b
                a(f"ds_read_b128 v[{b}:{b+3}], v{vMB} offset:{ks*1024}"); L.issue(('A',ks)); rdA+=1
        resets=[]
        if self.isjob(w):
            resets=[f"s_mov_b64 exec, s[{sJM}:{sJM+1}]\n buffer_store_dwordx4 v[60:63]X"]
        for i,(m,t,ks) in enumerate(ops):
            if i==6:
                L.wait('mw'); a("s_barrier")
                issueA(); issueA()
            if i==12: issueA()
            if i>=18 and i%6==0: issueA_now=True
            else: issueA_now=False
            if i%6==0 and ks not in own: L.wait(('A',ks))
            f=self.frag[(m,ks,t)]
            if f[0]=='reg': B=self.regstr(f[1])
            else:
                s_=slot_of[i]; B=f"v[{s_}:{s_+7}]"
                if ('W',i) in L.pos: L.wait(('W',i))
            a(sm(accs[(m,t)],abuf[ks],B))
            if f[0]=='lds' and nxt<len(ldsops):
                j=ldsops[nxt]; mm,tt,kk=ops[j]
                rdfrag((mm,kk,tt),slot_of[j],('W',j)); nxt+=1
            if issueA_now: issueA()
            if self.isjob(w) and i in (20,26,32,38):
                k=(i-20)//6
                a(f"s_mov_b64 exec, s[{sJM}:{sJM+1}]\n buffer_store_dwordx4 v[76:79], v{vPld}, s[{sPM}:{sPM+3}], s{sPr+k} offen\n s_mov_b64 exec, -1") if False else None
        self.stamp(a,1)
        a("s_nop 7")
        cv=lambda d,x,y: a(f"v_cvt_pk_bf16_f32 v{d}, v{x}, v{y}")
        for k,src in enumerate([Q0,Q1,K0,K1,V0,V1]):
            cv(12+2*k,src,src+1); cv(13+2*k,src+2,src+3)
        oorder=[(k,T) for T in range(9) for k in range(2)]
        olds=[(k,T) for (k,T) in oorder if self.frag[('o',k,T)][0]=='lds']
        oslots=[64,72,56]
        oslot={}
        for j,kt in enumerate(olds): oslot[kt]=oslots[j%3]
        onxt=0
        def rdO():
            nonlocal onxt
            if onxt<len(olds):
                k,T=olds[onxt]; rdfrag(('o',k,T),oslot[(k,T)],('O',k,T)); onxt+=1
        rdO(); rdO()
        tm=lambda d,A: a(f"v_mfma_f32_16x16x16_bf16 v[{d}:{d+3}], v[{A}:{A+1}], v[{vSel}:{vSel+1}], 0")
        a("s_nop 0")
        tm(24,12); tm(28,14); tm(32,16); tm(36,18)
        a("s_nop 5")
        cv(12,24,25); cv(13,26,27); cv(14,28,29); cv(15,30,31)
        cv(16,32,33); cv(17,34,35); cv(18,36,37); cv(19,38,39)
        a(f"buffer_store_dwordx4 v[16:19], v{vL16}, s[{sWSR}:{sWSR+3}], s{sKMo} offen {self.kmflag}")
        a(f"buffer_store_dwordx4 v[20:23], v{vL16}, s[{sWSR}:{sWSR+3}], s{sKMo} offen offset:1024 {self.kmflag}")
        pub=self.fused and w==3
        if pub:
            a(f"v_mov_b32 v24, 1\n s_mov_b64 exec, 1\n buffer_store_dword v24, off, s[{sWSR}:{sWSR+3}], s{sFKM} sc1\n s_mov_b64 exec, -1")
        a(f"s_cmp_eq_u32 s{sSTEP}, {self.steps-1}\n s_cbranch_scc1 {lab}_exit")
        a(f"s_waitcnt vmcnt({3 if pub else 2})")
        a(f"v_mfma_f32_16x16x32_bf16 v[24:27], v[16:19], v[12:15], 0")
        a(f"v_mfma_f32_16x16x32_bf16 v[28:31], v[{KX}:{KX+3}], v[12:15], 0")
        a(f"v_mfma_f32_16x16x32_bf16 v[32:35], v[{KX+4}:{KX+7}], v[12:15], 0")
        a("s_nop 7")
        for r in range(4): a(f"v_cndmask_b32 v{28+r}, v{32+r}, v{28+r}, s[{sMASK8}:{sMASK8+1}]")
        a(f"ds_write_b128 v{vMB}, v[28:31] offset:{LDS_SX-LDS_M+w*1024}"); L.issue()
        a(f"s_mov_b64 exec, 0x00ff00ff\n ds_write_b128 v{vSm}, v[24:27] offset:{w*256}\n s_mov_b64 exec, -1"); L.issue('sw')
        L.wait('sw'); a("s_barrier")
        self.stamp(a,2)
        for k in range(4):
            a(f"ds_read_b128 v[{24+4*k}:{24+4*k+3}], v{vMB} offset:{LDS_SX-LDS_M+k*1024}"); L.issue(('sx',k))
        for k in range(4):
            a(f"ds_read_b128 v[{40+4*k}:{40+4*k+3}], v{vSm} offset:{k*256}"); L.issue(('sm',k))
        L.wait(('sx',3))
        for r in range(4): a(f"v_add_f32 v{24+r}, v{24+r}, v{28+r}\n v_add_f32 v{32+r}, v{32+r}, v{36+r}")
        for r in range(4): a(f"v_add_f32 v{24+r}, v{24+r}, v{32+r}")
        L.wait(('sm',3))
        for r in range(4): a(f"v_add_f32 v{40+r}, v{40+r}, v{44+r}\n v_add_f32 v{48+r}, v{48+r}, v{52+r}")
        for r in range(4): a(f"v_add_f32 v{40+r}, v{40+r}, v{48+r}")
        a(f"""
  v_max3_f32 v12, v24, v25, v26
  v_max3_f32 v13, v27, v40, v41
  v_max3_f32 v12, v12, v42, v43
  v_max_f32 v12, v12, v13
  s_nop 1
  v_max_f32_dpp v12, v12, v12 row_ror:8 row_mask:0xf bank_mask:0xf
  v_mov_b32 v13, v12
  s_nop 1
  v_permlane16_swap_b32 v12, v13
  v_max_f32 v12, v12, v13
  v_mov_b32 v13, v12
  s_nop 1
  v_permlane32_swap_b32 v12, v13
  v_max_f32 v12, v12, v13
  v_mul_f32 v12, s{sC}, v12
""")
        for r in range(4):
            a(f"v_fma_f32 v{24+r}, v{24+r}, s{sC}, -v12\n v_fma_f32 v{40+r}, v{40+r}, s{sC}, -v12")
        for r in range(4): a(f"v_exp_f32 v{24+r}, v{24+r}")
        for r in range(4): a(f"v_exp_f32 v{40+r}, v{40+r}")
        a(f"""
  v_cvt_pk_bf16_f32 v16, v24, v25
  v_cvt_pk_bf16_f32 v17, v26, v27
  v_cvt_pk_bf16_f32 v14, v40, v41
  v_cvt_pk_bf16_f32 v15, v42, v43
  v_mov_b32_dpp v18, v16 row_ror:8 row_mask:0xf bank_mask:0xf
  v_mov_b32_dpp v19, v17 row_ror:8 row_mask:0xf bank_mask:0xf
  v_add_f32 v12, v24, v25
  v_add_f32 v13, v26, v27
  v_add_f32 v44, v40, v41
  v_add_f32 v45, v42, v43
  v_mfma_f32_16x16x16_bf16 v[28:31], v[20:21], v[14:15], 0
  v_mfma_f32_16x16x16_bf16 v[32:35], v[22:23], v[14:15], 0
  v_add_f32 v12, v12, v13
  v_add_f32 v44, v44, v45
  v_fmac_f32 v12, 0x3e800000, v44
  v_mfma_f32_16x16x32_bf16 v[28:31], v[{VX}:{VX+3}], v[16:19], v[28:31]
  v_mfma_f32_16x16x32_bf16 v[32:35], v[{VX+4}:{VX+7}], v[16:19], v[32:35]
  v_add_f32_dpp v12, v12, v12 row_ror:8 row_mask:0xf bank_mask:0xf
  v_mov_b32 v13, v12
  s_nop 1
  v_permlane16_swap_b32 v12, v13
  v_add_f32 v12, v12, v13
  v_mov_b32 v13, v12
  s_nop 1
  v_permlane32_swap_b32 v12, v13
  v_add_f32 v12, v12, v13
  v_rcp_f32 v12, v12
""")
        rdO()
        a("s_nop 1")
        for r in range(8): a(f"v_mul_f32 v{28+r}, v{28+r}, v12")
        cv(36,28,29); cv(37,30,31); cv(38,32,33); cv(39,34,35)
        a(f"s_mov_b64 exec, s[{sMASK8}:{sMASK8+1}]")
        a(f"ds_write_b64 v{vOw}, v[36:37] offset:{(4*w)*128}"); L.issue()
        a(f"ds_write_b64 v{vOw}, v[38:39] offset:{(4*w+2)*128}"); L.issue('ow')
        a("s_mov_b64 exec, -1")
        L.wait('ow'); a("s_barrier")
        self.stamp(a,3)
        a(f"ds_read_b128 v[48:51], v{vMB} offset:{LDS_O-LDS_M}"); L.issue('oa0')
        a(f"ds_read_b128 v[52:55], v{vMB} offset:{LDS_O-LDS_M+1024}"); L.issue('oa1')
        for r in range(36): a(f"v_mov_b32 v{12+r}, 0")
        L.wait('oa1')
        for (k,T) in oorder:
            f=self.frag[('o',k,T)]
            if f[0]=='reg': B=self.regstr(f[1])
            else:
                s_=oslot[(k,T)]; B=f"v[{s_}:{s_+7}]"; L.wait(('O',k,T))
            a(sm(12+4*T,48+4*k,B))
            if f[0]=='lds': rdO()
        self.stamp(a,4)
        L2=[]
        for j in range(2):
            i=ldsops[j]; mm,tt,kk=ops[i]
            rdfrag((mm,kk,tt),slot_of[i],('W',i))
        a("s_nop 3")
        def pack4(T0,c):
            A_,B_,C_,D_=[12+4*(T0+x) for x in range(4)]
            for r in range(4): a(f"v_permlane32_swap_b32 v{A_+r}, v{B_+r}")
            for r in range(4): a(f"v_permlane32_swap_b32 v{C_+r}, v{D_+r}")
            for r in range(4): a(f"v_add_f32 v{A_+r}, v{A_+r}, v{B_+r}")
            for r in range(4): a(f"v_add_f32 v{C_+r}, v{C_+r}, v{D_+r}")
            cv(c,A_,A_+1); cv(c+1,A_+2,A_+3); cv(c+2,C_,C_+1); cv(c+3,C_+2,C_+3)
            a("s_nop 1")
            a(f"v_permlane16_swap_b32 v{c}, v{c+2}\n v_permlane16_swap_b32 v{c+1}, v{c+3}")
        pack4(0,48)
        a(f"buffer_store_dwordx4 v[48:51], v{vPst}, s[{sPM}:{sPM+3}], s{sPst} offen {self.stflag}")
        pack4(4,52)
        a(f"buffer_store_dwordx4 v[52:55], v{vPst}, s[{sPM}:{sPM+3}], s{sPst2} offen {self.stflag}")
        a(f"""
  v_permlane32_swap_b32 v44, v46
  v_permlane32_swap_b32 v45, v47
  v_add_f32 v44, v44, v46
  v_add_f32 v45, v45, v47
  v_cvt_pk_bf16_f32 v44, v44, v45
  buffer_store_dword v44, v{vP8}, s[{sPM}:{sPM+3}], s{sPst} offen {self.stflag}
""")
        self.stamp(a,5)
        a(f"""
  s_add_u32 s{sXK}, s{sXK}, {32*16384}
  s_add_u32 s{sXV}, s{sXV}, {32*16384}
  s_add_u32 s{sKMo}, s{sKMo}, {32*8192}
  s_mov_b32 s{sCNT}, 400000
""")
        if self.fused:
            a(f"""
  s_add_u32 s{sFKV}, s{sFKV}, 128
  s_add_u32 s{sFKM}, s{sFKV}, {C.F_KM-C.F_KV-128}
""")
        if self.isjob(w):
            a(f"""
  s_cmp_eq_u32 s{sJOB}, 0
  s_cbranch_scc1 {lab}_nojob
  v_mov_b32 v56, v{vSel}
  v_mov_b32 v57, v{vSel+1}
  v_mov_b32 v58, v{vSel}
  v_mov_b32 v59, v{vSel+1}
  v_mov_b32 v60, -1
  v_mov_b32 v61, -1
  v_mov_b32 v62, -1
  v_mov_b32 v63, -1
  v_permlane16_swap_b32 v56, v58
  v_permlane16_swap_b32 v57, v59
""")
            for k in range(4):
                a(f"buffer_store_dwordx4 v[60:63], v{vPld}, s[{sPM}:{sPM+3}], s{sPr+k} offen {self.stflag}")
            a(nops(self.d1))
            a(f"{lab}_poll1:")
            for k in range(4):
                a(f"buffer_load_dwordx4 v[{12+4*k}:{12+4*k+3}], v{vPld}, s[{sPM}:{sPM+3}], s{sPl+k} offen sc1")
            a(f"""
  s_waitcnt vmcnt(3)
  v_mfma_f32_16x16x32_bf16 v[28:31], v[12:15], v[56:59], 0
  s_waitcnt vmcnt(2)
  v_mfma_f32_16x16x32_bf16 v[32:35], v[16:19], v[56:59], 0
  s_waitcnt vmcnt(1)
  v_mfma_f32_16x16x32_bf16 v[28:31], v[20:23], v[56:59], v[28:31]
  s_waitcnt vmcnt(0)
  v_mfma_f32_16x16x32_bf16 v[32:35], v[24:27], v[56:59], v[32:35]
  s_nop 7
  v_add_f32 v28, v28, v32
  v_add_f32 v29, v29, v33
  v_add_f32 v30, v30, v34
  v_add_f32 v31, v31, v35
  s_nop 1
  v_permlane32_swap_b32 v28, v30
  v_permlane32_swap_b32 v29, v31
  v_add_f32 v28, v28, v30
  v_add_f32 v29, v29, v31
  v_cmp_u_f32 vcc, v28, v29
  v_cvt_pk_bf16_f32 v28, v28, v29
  s_cbranch_vccz {lab}_got1
  s_add_u32 s{sR1}, s{sR1}, 1
  s_sub_u32 s{sCNT}, s{sCNT}, 1
  s_cmp_lg_u32 s{sCNT}, 0
  s_cbranch_scc1 {lab}_poll1
  s_branch {lab}_exit
{lab}_got1:
  s_mov_b64 exec, s[{sMASK8}:{sMASK8+1}]
  buffer_store_dword v60, v{vPub}, s[{sPM}:{sPM+3}], s{sMR} offen {self.stflag}
  buffer_store_dword v28, v{vPub}, s[{sPM}:{sPM+3}], s{sMP} offen {self.stflag}
""")
            if self.dbgM:
                a(f"""
  s_mul_i32 s74, s{sSTEP}, 9216
  s_add_u32 s74, s74, {DBG_OFF}
  buffer_store_dword v28, v{vPub}, s[{sWSR}:{sWSR+3}], s74 offen
""")
            a("s_mov_b64 exec, -1")
            self.stamp(a,6)
            a(nops(self.d2j))
            a(f"s_branch {lab}_p2\n{lab}_nojob:")
        self.stamp(a,6)
        a(nops(self.d2n))
        b=MA
        a(f"""
{lab}_p2:
  buffer_load_dwordx4 v[{b}:{b+3}], v{vL16}, s[{sPM}:{sPM+3}], s{sMg} offen sc1
  buffer_load_dwordx4 v[{b+4}:{b+7}], v{vL16}, s[{sPM}:{sPM+3}], s{sMg+1} offen sc1
  s_mov_b64 exec, 0xffff
  buffer_load_dwordx4 v[{b+8}:{b+11}], v{vL16}, s[{sPM}:{sPM+3}], s{sMg+2} offen sc1
  s_mov_b64 exec, -1
  {f'buffer_load_dword v26, off, s[{sWSR}:{sWSR+3}], s{sFKV} sc1' if self.fused else ''}
  s_waitcnt vmcnt(0)
  v_max_u32 v24, v{b}, v{b+1}
  v_max3_u32 v24, v24, v{b+2}, v{b+3}
  v_max3_u32 v24, v24, v{b+4}, v{b+5}
  v_max3_u32 v24, v24, v{b+6}, v{b+7}
  v_max3_u32 v25, v{b+8}, v{b+9}, v{b+10}
  v_max_u32 v25, v25, v{b+11}
  v_cmp_eq_u32 vcc, -1, v24
  v_cmp_eq_u32 s[74:75], -1, v25
  s_and_b64 s[74:75], s[74:75], 0xffff
  s_or_b64 vcc, vcc, s[74:75]
  {'v_cmp_eq_u32 s[74:75], 0, v26' if self.fused else ''}
  {'s_or_b64 vcc, vcc, s[74:75]' if self.fused else ''}
  s_cbranch_vccz {lab}_got2
  s_add_u32 s{sR2}, s{sR2}, 1
  s_sub_u32 s{sCNT}, s{sCNT}, 1
  s_cmp_lg_u32 s{sCNT}, 0
  s_cbranch_scc1 {lab}_p2
  s_branch {lab}_exit
{lab}_got2:
""")
        self.stamp(a,7)
        self.stamp_acc(a,8)
        a(f"""
  s_add_u32 s{sSTEP}, s{sSTEP}, 1
  s_xor_b32 s{sPS}, s{sPS}, {PSLOT}
  s_xor_b32 s{sMP}, s{sMP}, {(MREL+MSLOT)^MREL}
  s_waitcnt lgkmcnt(0)
  s_branch {lab}_top
""")
    def isjob(self,w): return w<3
    xld=''
    tinst='s_memtime'

def rec_role(a,R,xcc_sgpr,lab='.Lrec'):
    T=getattr(R,'ts2',False)
    R.startup(a)
    if T: a("s_waitcnt vmcnt(0)\n s_memrealtime s[8:9]\n s_waitcnt lgkmcnt(0)")
    R.scalars(a)
    R.local_barrier(a,xcc_sgpr,lab+'_lb')
    if T: a("s_memrealtime s[10:11]\n s_waitcnt lgkmcnt(0)")
    R.load_m0(a)
    if R.fused:
        if hasattr(R,'pre_wait'): R.pre_wait(a)
        else:
            C.wait_word(a,sDBG,C.D_INIT,vt=(24,25))
            a(f"v_mov_b32 v24, s{sFKV}")
            C.wait_words(a,24,1,base=sWS,vt=25)
    if T: a("s_memrealtime s[12:13]\n s_waitcnt lgkmcnt(0)")
    if R.timing:
        for k in range(8): a(f"s_mov_b32 s{20+k}, 0")
        a("s_memtime s[96:97]")
    for w in range(1,4):
        a(f"s_cmp_eq_u32 s{sW}, {w}\n s_cbranch_scc1 {lab}_w{w}")
    for w in range(4):
        a(f"{lab}_w{w}:")
        R.loop(a,w,f"{lab}_w{w}")
        a(f"{lab}_w{w}_exit:")
        if w<3: a(f"s_branch {lab}_done")
    a(f"{lab}_done:")
    if R.fused:
        a(f"""
  s_waitcnt vmcnt(0)
  s_barrier
  s_cmp_lg_u32 s{sW}, 3
  s_cbranch_scc1 {lab}_fin
  s_lshl_b32 s74, s{sH}, 2
  s_add_u32 s74, s74, {C.F_KM+R.last*128}
  v_mov_b32 v24, 1
  s_mov_b64 exec, 1
  buffer_store_dword v24, off, s[{sWSR}:{sWSR+3}], s74 sc1
  s_mov_b64 exec, -1
{lab}_fin:
""")
def rec_kernel(name,R,stats=True):
    a=Asm()
    a(f"""
  s_load_dwordx2 s[6:7], s[0:1], 88
  s_getreg_b32 s20, hwreg(HW_REG_XCC_ID, 0, 4)
  s_cmp_ge_u32 s2, 256
  s_cbranch_scc1 .L{name}_end
  s_waitcnt lgkmcnt(0)
  s_lshl_b32 s21, s20, 2
  v_mov_b32 v1, s21
  v_mov_b32 v2, 1
  v_cmp_eq_u32 vcc, 0, v0
  s_and_saveexec_b64 s[30:31], vcc
  global_atomic_add v3, v1, v2, s[6:7] sc0
  s_waitcnt vmcnt(0)
  ds_write_b32 v0, v3
  s_waitcnt lgkmcnt(0)
  s_mov_b64 exec, s[30:31]
  s_barrier
  v_mov_b32 v9, 0
  ds_read_b32 v3, v9
  s_waitcnt lgkmcnt(0)
  v_readfirstlane_b32 s{sH}, v3
  s_cmp_lg_u32 s20, 0
  s_cbranch_scc1 .L{name}_end
  s_cmp_ge_u32 s{sH}, 32
  s_cbranch_scc1 .L{name}_end
  s_mov_b32 s90, s20
  s_barrier
  s_memtime s[92:93]
  s_waitcnt lgkmcnt(0)
""")
    rec_role(a,R,90,'.L'+name)
    if stats:
        a(f"""
  s_memtime s[94:95]
  s_waitcnt lgkmcnt(0)
  s_sub_u32 s94, s94, s92
  s_lshl_b32 s74, s{sH}, 2
  s_add_u32 s74, s74, s{sW}
  s_lshl_b32 s74, s74, 4
  s_add_u32 s74, s74, {DBG_OFF+1024*1024}
  v_mov_b32 v12, s94
  v_mov_b32 v13, s{sSTEP}
  v_mov_b32 v14, s{sR1}
  v_mov_b32 v15, s{sR2}
  v_mov_b32 v16, s74
  s_mov_b64 exec, 1
  buffer_store_dwordx4 v[12:15], v16, s[{sWSR}:{sWSR+3}], 0 offen
  s_mov_b64 exec, -1
""")
        if R.timing:
            a(f"""
  s_sub_u32 s96, s96, s92
  s_lshl_b32 s74, s{sH}, 2
  s_add_u32 s74, s74, s{sW}
  s_lshl_b32 s74, s74, 5
  s_add_u32 s74, s74, {DBG_OFF+1024*1024+4096}
  v_mov_b32 v16, s74
  v_mov_b32 v12, s20
  v_mov_b32 v13, s21
  v_mov_b32 v14, s22
  v_mov_b32 v15, s23
  v_mov_b32 v20, s24
  v_mov_b32 v21, s25
  v_mov_b32 v22, s26
  v_mov_b32 v23, s96
  s_mov_b64 exec, 1
  buffer_store_dwordx4 v[12:15], v16, s[{sWSR}:{sWSR+3}], 0 offen
  buffer_store_dwordx4 v[20:23], v16, s[{sWSR}:{sWSR+3}], 0 offen offset:16
  s_mov_b64 exec, -1
""")
    a(f".L{name}_end:\n s_endpgm")
    return a
```

```python
import sys
sys.path.insert(0,'gen')
from asmlib import *
import rec, rec2, rec3, sched
from rec import *
from rec2 import *
from rec3 import *
import common as C
MREL4=4*PSLOT
assert MREL4+4*MSLOT<=2*MB
sPRs=59
sMRs=87
sRM=82
class Rec5(Rec3):
    marks=['b1','sw','b2','b3']
    ringQK=(24,28,76); ringV=(24,28,20)
    def __init__(self, d1=0, g1=60, d2j=0, g2=100, d2n=700, dr=0, DG=3, DP=3, noex=0, **kw):
        self.noex=noex
        super().__init__(d1=d1,d2j=d2j,d2n=d2n,**kw)
        self.g1=g1; self.g2=g2; self.dr=dr; self.DG=DG; self.DP=DP
    def mreset_addr(self,a,d,t):
        a(f"""
  v_lshrrev_b32 v{d}, 7, v{vL16}
  v_lshlrev_b32 v{d}, 12, v{d}
  v_and_b32 v{t}, 0x70, v{vL16}
  v_add_u32 v{d}, v{d}, v{t}
""")
    def init_nan(self,a):
        a(f"""
  v_mov_b32 v64, -1
  v_mov_b32 v65, -1
  v_mov_b32 v66, -1
  v_mov_b32 v67, -1
  s_add_u32 s4, s{sWS}, {self.poff}
  s_addc_u32 s5, s{sWS+1}, 0
  s_mul_i32 s77, s{sW}, {PSLOT}
  s_mul_i32 s79, s{sH}, 9216
  s_add_u32 s77, s77, s79
  v_add_u32 v68, s77, v{vL16}
""")
        for k in range(9):
            a(f"global_store_dwordx4 v68, v[64:67], s[4:5] {self.stflag}\n v_add_u32 v68, 1024, v68")
        l=a.newlabel('n4')
        a(f"""
  s_cmp_lg_u32 s{sW}, 3
  s_cbranch_scc1 {l}
  s_mov_b32 s{sRM}, 0xffff
  s_cmp_lt_u32 s{sH}, 8
  s_cselect_b32 s{sRM}, 0xffffff, s{sRM}
  s_mov_b32 s{sRM+1}, 0
""")
        self.mreset_addr(a,68,69)
        a(f"""
  s_lshl_b32 s77, s{sH}, 7
  s_add_u32 s77, s77, {MREL4}
  v_add_u32 v68, s77, v68
  s_mov_b64 exec, s[{sRM}:{sRM+1}]
""")
        for k in range(4):
            a(f"global_store_dwordx4 v68, v[64:67], s[4:5] {self.stflag}\n v_add_u32 v68, {MSLOT}, v68")
        a(f"s_mov_b64 exec, -1\n{l}:")
    def scalars(self,a):
        super().scalars(a)
    def extra_top(self,n,w):
        class L(list):
            def __call__(s,txt):
                for l in txt.split('\n'):
                    if l.strip(): s.append(l.strip())
        L_=L(); self.slot_scalars(L_,w)
        for l in L_: n(l)
    def slot_scalars(self,a,w):
        a(f"""
  s_and_b32 s74, s{sSTEP}, 3
  s_mul_i32 s{sPS}, s74, {PSLOT}
  s_add_u32 s{sPst}, s{sPS}, s{sHP}
  s_add_u32 s{sPst2}, s{sPst}, 4096
  s_add_u32 s75, s{sSTEP}, 1
  s_and_b32 s75, s75, 3
  s_mul_i32 s75, s75, {MSLOT}
  s_add_u32 s{sMP}, s75, {MREL4}
  s_add_u32 s{sMg}, s{sMP}, s{sWK}
  s_add_u32 s{sMg+1}, s{sMg}, 4096
  s_add_u32 s{sMg+2}, s{sMP}, s{sWQ}
""")
        if self.isjob(w):
            for i in range(4): a(f"s_add_u32 s{sPl+i}, s{sPS}, {i*73728}")
        a(f"""
  s_add_u32 s76, s{sSTEP}, 3
  s_and_b32 s76, s76, 3
  s_mul_i32 s77, s76, {PSLOT}
  s_add_u32 s{sPRs}, s77, s{sHP}
  s_add_u32 s78, s{sPRs}, 4096
""")
        if w==2: a(f"s_add_u32 s79, s{sPRs}, 8192")
        if w==3:
            a(f"""
  s_mul_i32 s77, s76, {MSLOT}
  s_lshl_b32 s76, s{sH}, 7
  s_add_u32 s77, s77, s76
  s_add_u32 s{sMRs}, s77, {MREL4}
""")
    def extra_b3(self,n,w):
        PM=f"s[{sPM}:{sPM+3}]"
        if w==3:
            n(f"v_lshrrev_b32 v42, 7, v{vL16}"); n("v_lshlrev_b32 v42, 12, v42"); n(f"v_and_b32 v43, 0x70, v{vL16}"); n("v_add_u32 v42, v42, v43")
        n("v_mov_b64 v[44:45], -1"); n("v_mov_b64 v[46:47], -1")
        n(f"buffer_store_dwordx4 v[44:47], v{vL16}, {PM}, s{sPRs} offen offset:{w*1024} {self.stflag}")
        n(f"buffer_store_dwordx4 v[44:47], v{vL16}, {PM}, s78 offen offset:{w*1024} {self.stflag}")
        if w==2: n(f"buffer_store_dwordx4 v[44:47], v{vL16}, {PM}, s79 offen {self.stflag}")
        if w==3: n(f"s_mov_b64 exec, s[{sRM}:{sRM+1}]\n buffer_store_dwordx4 v[44:47], v42, {PM}, s{sMRs} offen {self.stflag}\n s_mov_b64 exec, -1")
    def jobshadow(self,a,w):
                    a(f"""
          v_mov_b32 v28, v{vSel}
          v_mov_b32 v29, v{vSel+1}
          v_mov_b32 v30, v{vSel}
          v_mov_b32 v31, v{vSel+1}
        """)
                    self.adv(a)
                    a("v_permlane16_swap_b32 v28, v30\n v_permlane16_swap_b32 v29, v31")
                    self.pref_frags(a,w); self.zero(a,36,46)
                    a(f"v_and_b32 v46, 0xf0, v{vL16}")
    def job_reduce_tail(self,a):
        a("""
  v_permlane32_swap_b32 v32, v34
  v_permlane32_swap_b32 v33, v35
  v_pk_add_f32 v[32:33], v[32:33], v[34:35]
  v_cmp_u_f32 vcc, v32, v33
""")
    def job_mfma(self,C,Q): return f"v_mfma_f32_16x16x32_bf16 v[32:35], v[{Q}:{Q+3}], v[28:31], {C}"
    def job_pack(self,a): a("v_cvt_pk_bf16_f32 v28, v32, v33")
    vG=vL16
    zextra=()
    def v46(self): return f"v_and_b32 v46, 0xf0, v{vL16}"
    def zero(self,a,lo,hi):
        for r in range(lo,hi,2): a(f"v_mov_b64 v[{r}:{r+1}], 0")
    def loop(self,a,w,lab):
        N=self.block(w)
        avail={}
        for r in R(12,12): avail[r]=0
        avail['b1']=70
        order,t=sched.schedule(N,avail=avail)
        print(f'wave {w}: predicted block cycles {t}, rest {self.rest}', ' '.join(f'{n.tag}:{n.t}' for n in order if n.tag))
        PM=f"s[{sPM}:{sPM+3}]"
        a(f"s_add_u32 s{sTCH}, s{sXK}, {32*16384+(w*2048 if self.touch==2 else 0)}\n s_mov_b32 m0, {LDS_SX+w*1024}")
        self.pref_frags(a,w); self.zero(a,32,46)
        if w==3: a(f"v_mov_b32 v{vPub}, 1")
        a(f"s_mov_b32 s{sCNT}, 400000\n s_waitcnt lgkmcnt(0)\n s_branch {lab}_g0")
        def gissue(q):
            a(f"buffer_load_dwordx4 v[{q[0]}:{q[0]+3}], v{self.vG}, {PM}, s{sMg} offen sc1")
            a(f"buffer_load_dwordx4 v[{q[1]}:{q[1]+3}], v{self.vG}, {PM}, s{sMg+1} offen sc1")
            a(f"buffer_load_dwordx4 v[{q[2]}:{q[2]+3}], v46, {PM}, s{sMg+2} offen sc1")
        def gcheck(q):
            a(f"""
  ds_write_b128 v{vMB}, v[{q[0]}:{q[0]+3}] offset:{w*1024}
  ds_write_b128 v{vMB}, v[{q[1]}:{q[1]+3}] offset:{(4+w)*1024}
  v_max3_u32 v24, v{q[0]}, v{q[0]+1}, v{q[0]+2}
  v_max3_u32 v26, v{q[0]+3}, v{q[1]}, v{q[1]+1}
  s_mov_b64 exec, 0xffff
  ds_write_b128 v{vMB}, v[{q[2]}:{q[2]+3}] offset:{8192+w*256}
  s_mov_b64 exec, -1
  v_max3_u32 v24, v24, v{q[1]+2}, v{q[1]+3}
  v_max3_u32 v26, v26, v{q[2]}, v{q[2]+1}
  v_max3_u32 v24, v24, v{q[2]+2}, v{q[2]+3}
  v_max_u32 v24, v24, v26
  v_cmp_eq_u32 vcc, -1, v24
""")
        G0=(12,16,20)
        def gcheck2(q):
            a(f"""
  v_max3_u32 v24, v{q[0]}, v{q[0]+1}, v{q[0]+2}
  v_max3_u32 v26, v{q[0]+3}, v{q[1]}, v{q[1]+1}
  v_max3_u32 v24, v24, v{q[1]+2}, v{q[1]+3}
  v_max3_u32 v26, v26, v{q[2]}, v{q[2]+1}
  v_max3_u32 v24, v24, v{q[2]+2}, v{q[2]+3}
  v_max_u32 v24, v24, v26
  v_cmp_eq_u32 vcc, -1, v24
""")
        a(f"{lab}_gl:")
        a("s_mov_b64 exec, vcc"); gissue(G0); a("s_mov_b64 exec, -1")
        a(f"s_add_u32 s{sR2}, s{sR2}, 1\n s_sub_u32 s{sCNT}, s{sCNT}, 1\n s_cmp_eq_u32 s{sCNT}, 0\n s_cbranch_scc1 {lab}_exit\n s_waitcnt vmcnt({3*(self.DG-1)})")
        a(f"{lab}_g0:")
        gcheck2(G0)
        a(f"s_cbranch_vccnz {lab}_gl")
        a(f"""
  ds_write_b128 v{vMB}, v[12:15] offset:{w*1024}
  ds_write_b128 v{vMB}, v[16:19] offset:{(4+w)*1024}
  s_mov_b64 exec, 0xffff
  ds_write_b128 v{vMB}, v[20:23] offset:{8192+w*256}
  s_mov_b64 exec, -1
""")
        a(f"{lab}_have:\n v_mov_b64 v[46:47], 0")
        self.stamp(a,0)
        if self.timing: a("s_waitcnt lgkmcnt(0)")
        hooks={}
        if self.timing:
            for k,tg in enumerate(self.marks): hooks[tg]=f"{self.tinst} s[{6+2*k}:{7+2*k}]"
        if getattr(self,'shortlast',0): hooks['vms']=f"s_cmp_eq_u32 s{sSTEP}, {self.steps-1}\n s_cbranch_scc1 {lab}_exit"
        sched.emit(a,order,ds_init=[R(56,4),R(60,4),R(64,4),R(68,4),set(),set(),(set(),'mw')],
                   vm_waw=[R(12,4),R(16,4),R(20,4)]*(self.DG-1),show_t=self.show,hooks=hooks)
        self.stamp(a,5)
        a(f"s_cmp_eq_u32 s{sSTEP}, {self.steps-1}\n s_cbranch_scc1 {lab}_exit")
        if self.fused and w==3:
            a(f"""
  s_cmp_eq_u64 s[{sNR}:{sNR+1}], 0
  s_cbranch_scc1 {lab}_fok
  s_mov_b32 s75, 4000000
{lab}_fpoll:
  buffer_load_dword v28, off, s[{sWSR}:{sWSR+3}], s{sFKV} sc1
  s_waitcnt vmcnt(0)
  v_readfirstlane_b32 s74, v28
  s_sub_u32 s75, s75, 1
  s_cmp_eq_u32 s75, 0
  s_cbranch_scc1 {lab}_fok
  s_cmp_eq_u32 s74, 0
  s_cbranch_scc1 {lab}_fpoll
{lab}_fok:
""")
        if self.noex:
            self.stamp(a,6); self.stamp(a,7); self.stamp_acc(a,8)
            self.adv(a); self.pref_frags(a,w); self.zero(a,32,46)
            for r in range(12,24): a(f"v_mov_b32 v{r}, 0x3c003c00")
            a(f"s_add_u32 s{sSTEP}, s{sSTEP}, 1\n s_branch {lab}_g0")
            return
        if self.isjob(w):
            if w==2: a(f"s_cmp_eq_u32 s{sJOB}, 0\n s_cbranch_scc1 {lab}_nojob")
            if self.d1 and self.DP>1: a(nops(self.d1))
            self.d1b=self.d1 if self.DP==1 else 0
            A=[12,16,20,24]
            def pissue(q):
                for k in range(4): a(f"buffer_load_dwordx4 v[{q[k]}:{q[k]+3}], v{vPld}, {PM}, s{sPl+k} offen sc1")
            def pcheck(q,base,prog):
                for k in range(4):
                    if prog or k==0: a(f"s_waitcnt vmcnt({base+(3-k if prog else 0)})")
                    a(self.job_mfma('0' if k==0 else 'v[32:35]',q[k]))
                a(f"""
  v_max3_u32 v48, v12, v13, v14
  v_max3_u32 v49, v15, v16, v17
  v_max3_u32 v48, v48, v18, v19
  v_max3_u32 v49, v49, v20, v21
  v_max3_u32 v48, v48, v22, v23
  v_max3_u32 v49, v49, v24, v25
  v_max3_u32 v48, v48, v26, v27
  v_max_u32 v48, v48, v49
  v_cmp_eq_u32 s[76:77], -1, v48
""")
                self.job_reduce_tail(a)
            if self.DP>1: pissue(A)
            self.jobshadow(a,w)
            if self.DP==1 and self.d1b: a(nops(self.d1b))
            for k in range(self.DP-2):
                if self.g1: a(nops(self.g1))
                pissue(A)
            a("s_mov_b64 s[76:77], -1")
            a(f"{lab}_pl:")
            a("s_mov_b64 exec, s[76:77]"); pissue(A); a("s_mov_b64 exec, -1")
            a(f"s_add_u32 s{sR1}, s{sR1}, 1\n s_sub_u32 s{sCNT}, s{sCNT}, 1\n s_cmp_eq_u32 s{sCNT}, 0\n s_cbranch_scc1 {lab}_exit")
            pcheck(A,4*(self.DP-1),True)
            a(f"s_cbranch_vccnz {lab}_pl")
            a(f"""
{lab}_pub:
""")
            self.job_pack(a)
            a(f"""
  s_mov_b64 exec, s[{sMASK8}:{sMASK8+1}]
  buffer_store_dword v28, v{vPub}, {PM}, s{sMP} offen {self.stflag}
""")
            if self.dbgM:
                a(f"""
  s_mul_i32 s74, s{sSTEP}, 9216
  s_add_u32 s74, s74, {DBG_OFF}
  buffer_store_dword v28, v{vPub}, s[{sWSR}:{sWSR+3}], s74 offen
""")
            a("s_mov_b64 exec, -1")
            self.stamp(a,6)
            self.zero(a,32,36)
            if self.d2j: a(nops(self.d2j))
            self.stamp(a,7); self.stamp_acc(a,8)
            a(f"s_branch {lab}_gpre")
            a(f"{lab}_nojob:")
        if w>=2:
            self.adv(a)
            self.pref_frags(a,w)
            self.zero(a,32,46)
            for r in self.zextra: a(f"v_mov_b64 v[{r}:{r+1}], 0")
            a(self.v46())
            self.stamp(a,6)
            if self.d2n: a(nops(self.d2n))
            self.stamp(a,7); self.stamp_acc(a,8)
        a(f"{lab}_gpre:")
        if self.team2: a(f"s_cmp_eq_u32 s{sSTEP}, {self.last}\n s_cbranch_scc1 {lab}_exit")
        if self.DG==1: a(f"s_add_u32 s{sSTEP}, s{sSTEP}, 1")
        for k in range(self.DG-1):
            gissue(G0)
            if k==0: a(f"s_add_u32 s{sSTEP}, s{sSTEP}, 1")
            if self.g2: a(nops(self.g2))
        a(f"s_mov_b64 vcc, -1\n s_branch {lab}_gl")
```

```python
import sys
sys.path.insert(0,'gen')
from asmlib import *
import rec, rec2, rec3, rec5, sched
from rec import *
from rec2 import *
from rec3 import *
from rec5 import *
from sched import mk
import common as C
vL4=7
sEVEN=84
sPst3=81
sLO=100
from rec3 import sTCH
class Rec6(Rec5):
    def consts(self,a):
        super().consts(a)
        a(f"""
  s_mov_b32 s{sLO}, -1
  s_mov_b32 s{sLO+1}, 0
  s_mov_b32 s{sEVEN}, 0x55555555
  s_mov_b32 s{sEVEN+1}, 0x55555555
  v_mov_b32 v36, 0xeeee
  v_mov_b32 v38, 0x4444
  v_cndmask_b32 v{vIdx}, v36, v38, s[{sEVEN}:{sEVEN+1}]
  v_lshrrev_b32 v36, 1, v13          ; n>>1
  v_and_b32 v37, 1, v13              ; n&1
  v_lshlrev_b32 v38, 1, v12          ; 2g
  v_mov_b32 v39, 0x3f803f80
  v_cmp_eq_u32 vcc, v36, v38
  v_cndmask_b32 v{vSel}, 0, v39, vcc
  v_add_u32 v38, 1, v38
  v_cmp_eq_u32 vcc, v36, v38
  v_cndmask_b32 v{vSel+1}, 0, v39, vcc
  v_lshlrev_b32 v38, 5, v36
  v_lshlrev_b32 v39, 3, v12
  v_add_u32 v38, v38, v39
  v_add_u32 v{vOw}, {LDS_O}, v38
  v_lshlrev_b32 v38, 3, v12
  v_add_u32 v38, v38, v36
  v_lshlrev_b32 v38, 3, v38
  v_add_u32 v{vSm}, {LDS_SM}, v38
  s_lshl_b32 s77, s{sW}, 5
  s_add_u32 s77, s77, s{sH}
  s_cmp_lt_u32 s77, 72
  s_cselect_b32 s77, s77, 0
  s_lshl_b32 s79, s77, 7             ; J*128
  v_and_b32 v38, 7, v13              ; u8
  v_lshrrev_b32 v39, 2, v38
  v_lshlrev_b32 v39, 6, v39          ; (u8>>2)*64
  v_and_b32 v38, 3, v38
  v_lshlrev_b32 v38, 3, v38          ; (u8&3)*8
  v_add_u32 v38, v38, v39
  v_lshrrev_b32 v39, 1, v12
  v_lshlrev_b32 v39, 5, v39          ; p*32
  v_add_u32 v38, v38, v39
  v_and_b32 v39, 1, v12
  v_lshlrev_b32 v39, 2, v39          ; (g&1)*4
  v_add_u32 v38, v38, v39
  v_add_u32 v{vPub}, s79, v38
  v_lshlrev_b32 v{vL4}, 2, v31
""")
    def load_m0(self,a,wait=True):
        if self.s0: return self.load_hand(a)
        a(f"""
  v_mov_b32 v{MA+8}, 0
  v_mov_b32 v{MA+9}, 0
  v_mov_b32 v{MA+10}, 0
  v_mov_b32 v{MA+11}, 0
  v_lshrrev_b32 v24, 4, v{vL16}      ; lane
  v_and_b32 v25, 15, v24             ; n
  v_lshrrev_b32 v26, 1, v25          ; row m
  v_mul_u32_u24 v26, 1152, v26
  v_and_b32 v25, 1, v25
  v_lshrrev_b32 v24, 4, v24          ; g
  v_lshlrev_b32 v24, 1, v24
  v_add_u32 v24, v24, v25            ; 2g+half
  v_lshlrev_b32 v24, 4, v24
  v_add_u32 v24, v24, v26
  s_lshl_b32 s74, s{sW}, 7           ; ks=w
  v_add_u32 v25, s74, v24
  global_load_dwordx4 v[{MA}:{MA+3}], v25, s[{sMEM}:{sMEM+1}]
  global_load_dwordx4 v[{MA+4}:{MA+7}], v25, s[{sMEM}:{sMEM+1}] offset:512
  s_lshl_b32 s74, s{sW}, 5
  s_add_u32 s74, s74, 1024
  v_add_u32 v25, s74, v24
  s_mov_b64 exec, 0xffff
  global_load_dwordx4 v[{MA+8}:{MA+11}], v25, s[{sMEM}:{sMEM+1}]
  s_mov_b64 exec, -1
  {'s_waitcnt vmcnt(0)' if wait else ''}
""")
    def load_hand(self,a):
        l=a.newlabel('hand'); mo=MREL4+(self.s0&3)*MSLOT
        a(f"""
  v_mov_b32 v24, {C.D_LBAR2}
  s_mov_b32 s75, 4000000
{l}_b:
  global_load_dword v25, v24, s[{sDBG}:{sDBG+1}] sc1
  s_waitcnt vmcnt(0)
  v_readfirstlane_b32 s76, v25
  s_sub_u32 s75, s75, 1
  s_cmp_eq_u32 s75, 0
  s_cbranch_scc1 {l}_bd
  s_cmp_lt_u32 s76, 32
  s_cbranch_scc1 {l}_b
{l}_bd:
  s_add_u32 s4, s{sWS}, {C.P2_OFF}
  s_addc_u32 s5, s{sWS+1}, 0
  s_mov_b32 s6, {2*1024*1024}
  s_mov_b32 s7, 0x00020000
  s_add_u32 s74, s{sWK}, {mo}
  s_add_u32 s76, s74, 4096
  s_add_u32 s77, s{sWQ}, {mo}
  {self.v46()}
  s_mov_b32 s75, 2000000
{l}_p:
  buffer_load_dwordx4 v[12:15], v{self.vG}, s[4:7], s74 offen sc1
  buffer_load_dwordx4 v[16:19], v{self.vG}, s[4:7], s76 offen sc1
  buffer_load_dwordx4 v[20:23], v46, s[4:7], s77 offen sc1
  s_waitcnt vmcnt(0)
  v_max3_u32 v24, v12, v13, v14
  v_max3_u32 v26, v15, v16, v17
  v_max3_u32 v24, v24, v18, v19
  v_max3_u32 v26, v26, v20, v21
  v_max3_u32 v24, v24, v22, v23
  v_max_u32 v24, v24, v26
  v_cmp_eq_u32 vcc, -1, v24
  s_cbranch_vccz {l}_ok
  s_sleep 2
  s_sub_u32 s75, s75, 1
  s_cmp_lg_u32 s75, 0
  s_cbranch_scc1 {l}_p
{l}_ok:
""")
    def slot_scalars(self,a,w):
        super().slot_scalars(a,w)
        a(f"s_add_u32 s{sPst3}, s{sPst}, 8192")
    def selr(self,a):
        a(f"""
  v_lshrrev_b32 v36, 4, v{vL16}
  v_and_b32 v37, 1, v36
  v_lshlrev_b32 v37, 4, v37
  v_mov_b32 v38, 0x3f80
  v_lshlrev_b32 v37, v37, v38
  v_bfe_u32 v36, v36, 1, 2
""")
        for r in range(4):
            a(f"v_cmp_eq_u32 vcc, {r}, v36\n v_cndmask_b32 v{28+r}, 0, v37, vcc")
    def jobshadow(self,a,w):
        self.selr(a)
        self.adv(a)
        self.pref_frags(a,w); self.zero(a,36,46)
        for r in self.zextra: a(f"v_mov_b64 v[{r}:{r+1}], 0")
        a(self.v46())
    zextra=()
    qfirst=0
    def block(self,w):
        N=[]
        def n(t,tag=None,after=(),p=0): N.append(mk(t,tag,after,p))
        fr=self.frag
        idx=f"v{vIdx}"
        EV=f"s[{sEVEN}:{sEVEN+1}]"
        QP="quad_perm:[1,0,3,2] row_mask:0xf bank_mask:0xf"
        sm=lambda d,A,B: f"v_smfmac_f32_16x16x64_bf16 v[{d}:{d+3}], v[{A}:{A+3}], {B}, {idx}"
        cv=lambda d,x,y: n(f"v_cvt_pk_bf16_f32 v{d}, v{x}, v{y}")
        pka=lambda d,x: n(f"v_pk_add_f32 v[{d}:{d+1}], v[{d}:{d+1}], v[{x}:{x+1}]")
        A0,A1,A2=12,16,20
        ring=list(self.ringQK)
        Q0,Q1,K0,K1=32,36,40,44
        KX=48; WB=[56,64]; V0,V1=56,60; VX=64; F=vPld; ONE=vPub
        acc={('q',0):Q0,('q',1):Q1,('k',0):K0,('k',1):K1,('v',0):V0,('v',1):V1}
        own=[w,4+w]
        isL=lambda m,ks: fr[(m,ks,0)][0]=='lds'
        others=[k for k in range(9) if k not in own]
        Ls=[k for k in others if isL('q',k) or isL('k',k)]; Rs=[k for k in others if k not in Ls]
        Ls.sort(key=lambda k:(k!=8,k))
        rest=[]
        while Ls or Rs:
            if Ls: rest.append(Ls.pop(0))
            if Rs: rest.append(Rs.pop(0))
        self.rest=rest
        x=self.xld
        n(f"buffer_load_dwordx4 v[{KX}:{KX+3}], v{vL16}, s[{sWSR}:{sWSR+3}], s{sXK} offen {x}",p=200)
        n(f"buffer_load_dwordx4 v[{KX+4}:{KX+7}], v{vL16}, s[{sWSR}:{sWSR+3}], s{sXK} offen offset:1024 {x}")
        if self.touch==3:
            n(f"v_lshlrev_b32 v6, 1, v{vL16}",p=200); n(f"buffer_load_dword v6, v6, s[{sWSR}:{sWSR+3}], s{sXV} offen {x}",p=200)
        self.extra_top(n,w)
        ops=[]
        def kops(ks): return [('q',0,ks),('q',1,ks),('k',0,ks),('k',1,ks)]
        o0=own[0] if (isL('q',own[0]) or isL('k',own[0])) else own[1]
        o1=own[1] if o0==own[0] else own[0]
        for ks in [o0,o1]+rest: ops+=kops(ks)
        lops=[o for o in ops if fr[(o[0],o[2],o[1])][0]=='lds']
        self.pref=lops[:2]
        slot={o:WB[i%2] for i,o in enumerate(lops)}
        def rdW(key,s_,tagp=None):
            off=fr[key][1]
            n(f"ds_read_b128 v[{s_}:{s_+3}], v{vFR} offset:{off}")
            n(f"ds_read_b128 v[{s_+4}:{s_+7}], v{vFR} offset:{off+1024}")
        abuf={own[0]:A0,own[1]:A1}
        nxtL=2
        barred=False
        ri=0
        def rdA(ks,r,after):
            n(f"ds_read_b128 v[{r}:{r+3}], v{vMB} offset:{ks*1024}",after=after)
        for (m,t,ks) in ops:
            if ks not in abuf:
                if not barred:
                    n("s_barrier",tag='b1',after=['mw']); barred=True
                r=ring[ri%3]; ri+=1
                rdA(ks,r,['b1']); abuf[ks]=r
            f=fr[(m,ks,t)]
            B=self.regstr(f[1]) if f[0]=='reg' else f"v[{slot[(m,t,ks)]}:{slot[(m,t,ks)]+7}]"
            qi=ops.index((m,t,ks))
            n(sm(acc[(m,t)],abuf[ks],B),tag={8:'q8',20:'q20',35:'q35'}.get(qi))
            if f[0]=='lds' and nxtL<len(lops):
                o=lops[nxtL]; rdW((o[0],o[2],o[1]),slot[o]); nxtL+=1
        inring={ks:abuf[ks] for ks in rest[-3:]}
        n(f"buffer_load_dwordx4 v[{VX}:{VX+3}], v{vL16}, s[{sWSR}:{sWSR+3}], s{sXV} offen {x}")
        n(f"buffer_load_dwordx4 v[{VX+4}:{VX+7}], v{vL16}, s[{sWSR}:{sWSR+3}], s{sXV} offen offset:1024 {x}")
        if self.touch==2:
            n(f"v_lshlrev_b32 v6, 2, v{vL16}"); n(f"buffer_load_dword v6, v6, s[{sWSR}:{sWSR+3}], s{sTCH} offen {self.tflag}")
        if self.fused and w==3:
            n(f"buffer_load_dword v{F}, off, s[{sWSR}:{sWSR+3}], s{sFKV} sc1")
            n(f"s_mov_b64 exec, 1\n buffer_store_dword v{ONE}, off, s[{sWSR}:{sWSR+3}], s{sFKM} sc1\n s_mov_b64 exec, -1",after=['b1'])
        for r in range(0,8,2): n(f"v_mov_b64 v[{V0+r}:{V0+r+1}], 0")
        tm=lambda d,A: n(f"v_mfma_f32_16x16x16_bf16 v[{d}:{d+3}], v[{A}:{A+1}], v[{vSel}:{vSel+1}], 0")
        for k,src in enumerate([Q0,Q1,K0,K1]):
            cv(12+2*k,src,src+1); cv(13+2*k,src+2,src+3)
        tm(32,12); tm(36,14); tm(40,16); tm(44,18)
        N[-1].tag='t4'
        cv(12,32,33); cv(13,34,35); cv(14,36,37); cv(15,38,39)
        cv(16,40,41); cv(17,42,43); cv(18,44,45); cv(19,46,47)
        n(f"buffer_store_dwordx4 v[16:19], v{vL16}, s[{sWSR}:{sWSR+3}], s{sKMo} offen {self.kmflag}")
        n(f"v_mfma_f32_16x16x32_bf16 v[36:39], v[{KX}:{KX+3}], v[12:15], 0")
        n(f"v_mfma_f32_16x16x32_bf16 v[40:43], v[{KX+4}:{KX+7}], v[12:15], 0")
        n(f"v_mfma_f32_16x16x32_bf16 v[32:35], v[16:19], v[12:15], 0")
        for r in range(4): n(f"v_cndmask_b32 v{36+r}, v{40+r}, v{36+r}, {EV}")
        n(f"ds_write_b128 v{vMB}, v[36:39] offset:{LDS_SX-LDS_M+w*1024}",tag='sx')
        n(f"s_mov_b64 exec, {EV}\n ds_write2_b32 v{vSm}, v32, v34 offset0:{w*64} offset1:{w*64+1}\n s_mov_b64 exec, -1",tag='sw')
        n("s_barrier",tag='b2',after=['sx','sw','b1'])
        ring=list(self.ringV)
        vorder=list(rest[-3:])+[k for k in [own[0],own[1]]+rest[:-3]]
        for ks in vorder:
            if ks in inring: r=inring[ks]
            else:
                r=ring[ri%3]; ri+=1
                rdA(ks,r,['b1','sx'])
            for t in range(2):
                f=fr[('v',ks,t)]; assert f[0]=='reg'
                n(sm(acc[('v',t)],r,self.regstr(f[1])),p=-int(self.vprio))
        oth=[k for k in range(4) if k!=w]
        for k,r in zip(oth,(40,44,48)): n(f"ds_read_b128 v[{r}:{r+3}], v{vMB} offset:{LDS_SX-LDS_M+k*1024}",after=['b2'])
        for k,r in zip(oth,(52,72,12)): n(f"ds_read_b64 v[{r}:{r+1}], v{vSm} offset:{k*256}",after=['b2'])
        N.append(mk("v_pk_add_f32 v[36:37], v[36:37], v[40:41]",'m1')); pka(38,42); pka(44,48); pka(46,50); pka(36,44); pka(38,46)
        pka(52,72); n("v_add_f32 v32, v32, v12"); n("v_add_f32 v34, v34, v13")
        n("v_add_f32 v32, v32, v52"); n("v_add_f32 v34, v34, v53")
        n("v_max3_f32 v72, v36, v37, v38"); n("v_max3_f32 v73, v39, v32, v34")
        n("v_max_f32 v72, v72, v73")
        n(f"v_max_f32_dpp v72, v72, v72 {QP}")
        for sw in ('16','32'):
            n("v_mov_b32 v73, v72"); n(f"v_permlane{sw}_swap_b32 v72, v73"); n("v_max_f32 v72, v72, v73")
        n(f"v_mul_f32 v72, s{sC}, v72",tag='m2')
        for b in (36,38):
            n(f"v_pk_fma_f32 v[{b}:{b+1}], v[{b}:{b+1}], s[{sC2}:{sC2+1}], v[72:73] op_sel_hi:[1,1,0] neg_lo:[0,0,1] neg_hi:[0,0,1]")
        for b in (32,34): n(f"v_fma_f32 v{b}, v{b}, s{sC}, -v72")
        for r in (36,37,38,39,32,34): n(f"v_exp_f32 v{r}, v{r}",tag='m3' if r==34 else None)
        cv(40,36,37); cv(41,38,39); cv(44,32,32); cv(45,34,34)
        n(f"v_mov_b32_dpp v42, v40 {QP}")
        n(f"v_mov_b32_dpp v43, v41 {QP}")
        n("v_add_f32 v73, v36, v37"); n("v_add_f32 v74, v38, v39"); n("v_add_f32 v75, v32, v34")
        n("v_add_f32 v73, v73, v74")
        n("v_fmac_f32 v73, 0.5, v75")
        n(f"v_add_f32_dpp v73, v73, v73 {QP}")
        for sw in ('16','32'):
            n("v_mov_b32 v74, v73"); n(f"v_permlane{sw}_swap_b32 v73, v74"); n("v_add_f32 v73, v73, v74")
        n("v_rcp_f32 v72, v73",tag='m4')
        cv(48,V0,V0+1); cv(49,V0+2,V0+3); cv(50,V1,V1+1); cv(51,V1+2,V1+3)
        n(f"buffer_store_dwordx4 v[48:51], v{vL16}, s[{sWSR}:{sWSR+3}], s{sKMo} offen offset:1024 {self.kmflag}",tag='vms')
        n(f"v_mfma_f32_16x16x32_bf16 v[52:55], v[{VX}:{VX+3}], v[40:43], 0",tag='p0')
        n(f"v_mfma_f32_16x16x32_bf16 v[12:15], v[{VX+4}:{VX+7}], v[40:43], 0",tag='p1')
        n(f"v_mfma_f32_16x16x16_bf16 v[52:55], v[48:49], v[44:45], v[52:55]",tag='p2')
        n(f"v_mfma_f32_16x16x16_bf16 v[12:15], v[50:51], v[44:45], v[12:15]",tag='p3')
        for b in (52,54,12,14): n(f"v_pk_mul_f32 v[{b}:{b+1}], v[{b}:{b+1}], v[72:73] op_sel_hi:[1,0]")
        cv(44,52,53); cv(45,54,55); cv(46,12,13); cv(47,14,15)
        n(f"s_mov_b64 exec, {EV}\n ds_write_b64 v{vOw}, v[44:45] offset:{(2*w)*256}\n ds_write_b64 v{vOw}, v[46:47] offset:{(2*w+1)*256}\n s_mov_b64 exec, -1",tag='ow')
        n("s_barrier",tag='b3',after=['ow','b2'])
        n(f"ds_read_b128 v[48:51], v{vMB} offset:{LDS_O-LDS_M}",after=['b3'])
        n(f"ds_read_b128 v[52:55], v{vMB} offset:{LDS_O-LDS_M+1024}",after=['b3'])
        if self.fused and w==3:
            n(f"v_cmp_eq_u32 s[{sNR}:{sNR+1}], 0, v{F}",after=['b3'])
        oorder=[(k,T) for p in range(4) for k in range(2) for T in (2*p,2*p+1)]+[(0,8),(1,8)]
        if self.t8first: oorder=oorder[-2:]+oorder[:-2]
        olds=[kt for kt in oorder if fr[('o',kt[0],kt[1])][0]=='lds']
        oslots=[56,64,72]
        oslot={kt:oslots[j%3] for j,kt in enumerate(olds)}
        self.extra_b3(n,w)
        for r in range(12,48,2): n(f"v_mov_b64 v[{r}:{r+1}], 0")
        for kt in olds[:3]: rdW(('o',kt[0],kt[1]),oslot[kt])
        onxt=3
        done=set(); packed=set()
        PM=f"s[{sPM}:{sPM+3}]"
        def pack(T):
            D=12+4*T
            n(f"v_add_f32 v{D}, v{D}, v{D+1}"); n(f"v_add_f32 v{D+2}, v{D+2}, v{D+3}")
            cv(D,D,D+2)
            tau=(8*(T//2)+2*w+(T&1)) if T<8 else 32+w
            off=tau*256
            so=(sPst,sPst2,sPst3)[off//4096]
            n(f"buffer_store_dword v{D}, v{vL4}, {PM}, s{so} offen offset:{off%4096} {self.stflag}")
        for (k,T) in oorder:
            f=fr[('o',k,T)]
            B=self.regstr(f[1]) if f[0]=='reg' else f"v[{oslot[(k,T)]}:{oslot[(k,T)]+7}]"
            n(sm(12+4*T,48+4*k,B),tag=('o1' if not done else ('o2' if len(done)==17 else ('o9' if len(done)==8 else None))))
            if f[0]=='lds' and onxt<len(olds):
                kt=olds[onxt]; onxt+=1; rdW(('o',kt[0],kt[1]),oslot[kt])
            done.add((k,T))
            if k==1: pack(T)
        return N
    def job_reduce_tail(self,a):
        for r in range(32,36): a(f"v_add_f32_dpp v{r}, v{r}, v{r} row_ror:8 row_mask:0xf bank_mask:0xf")
        a("v_cmp_u_f32 vcc, v32, v32")
    def job_mfma(self,C,Q): return f"v_mfma_f32_16x16x32_bf16 v[32:35], v[28:31], v[{Q}:{Q+3}], {C}"
    def job_pack(self,a):
        a("v_cvt_pk_bf16_f32 v28, v32, v34\n v_cvt_pk_bf16_f32 v29, v33, v35\n v_cndmask_b32 v28, v29, v28, s[%d:%d]"%(sLO,sLO+1))
```

```python
import sys
sys.path.insert(0,'gen')
from common import *
import common as C
import k_r1, r1, r3, r4, r5, rec, rec2, rec3, rec5, rec6, sched, hazard
LDSSET=[('q',5),('q',6),('q',7),('q',8),('k',8),('o',0,0),('o',1,0),('o',0,2),('o',1,2)]
NB=96
SPEC=0; FORCEL=0; EARLY=0
D_T0=128
def prologue(a,name,fake_xcc=None):
    load_ptrs(a)
    a(f"""
  s_cmp_ge_u32 s2, 256
  s_cbranch_scc1 .L{name}_end
  s_getreg_b32 s30, hwreg(HW_REG_XCC_ID, 0, 4)
  {'s_memrealtime s[62:63]' if 'ts' in sys.argv else ''}
""")
    if fake_xcc: fake_xcc(a)
    GR=SPEC
    if GR:
        a(f"""
  s_add_u32 s98, s30, 1
  s_cmp_lg_u32 s{sW}, 0
  s_cbranch_scc1 .L{name}_bar
  s_mov_b64 exec, 1
  v_mov_b32 v3, 1
  s_cmp_lg_u32 s30, 0
  s_cbranch_scc1 .L{name}_grace
  v_mov_b32 v2, {D_T0}
  global_atomic_add v4, v2, v3, s[{sDBG}:{sDBG+1}] sc0
  s_waitcnt vmcnt(0)
  v_readfirstlane_b32 s31, v4
  s_cmp_ge_u32 s31, 32
  s_cbranch_scc1 .L{name}_shadow
  s_cmp_lg_u32 s31, 31
  s_cbranch_scc1 .L{name}_cand
  v_mov_b32 v2, {D_HOME}
  v_mov_b32 v6, 1
  v_mov_b32 v7, 0
  {'s_nop 0' if FORCEL else f'global_atomic_cmpswap v2, v[6:7], s[{sDBG}:{sDBG+1}]'}
.L{name}_cand:
  s_add_u32 s31, s31, 224
  v_mov_b32 v4, s31
  s_branch .L{name}_wr
.L{name}_grace:
  v_mov_b32 v2, {D_HOME}
  s_mov_b32 s33, {GR}
.L{name}_gp:
  global_load_dword v5, v2, s[{sDBG}:{sDBG+1}] sc1
  s_waitcnt vmcnt(0)
  v_readfirstlane_b32 s34, v5
  s_cmp_lg_u32 s34, 0
  s_cbranch_scc1 .L{name}_shadow
  s_sleep 4
  s_sub_u32 s33, s33, 1
  s_cmp_lg_u32 s33, 0
  s_cbranch_scc1 .L{name}_gp
""")
    else:
        a(f"""
  s_cmp_lg_u32 s{sW}, 0
  s_cbranch_scc1 .L{name}_bar
  s_mov_b64 exec, 1
""")
    a(f"""
  s_lshl_b32 s31, s30, 2
  v_mov_b32 v2, s31
  v_mov_b32 v3, 1
  global_atomic_add v4, v2, v3, s[{sDBG}:{sDBG+1}] sc0
  s_waitcnt vmcnt(0)
  v_readfirstlane_b32 s31, v4         ; ticket
  s_add_u32 s32, s30, 1               ; xcc+1
  v_mov_b32 v2, {D_HOME}
  s_cmp_lg_u32 s31, 31
  s_cbranch_scc1 .L{name}_nocas
  v_mov_b32 v6, s32
  v_mov_b32 v7, 0
  global_atomic_cmpswap v2, v[6:7], s[{sDBG}:{sDBG+1}]
.L{name}_nocas:
  s_cmp_ge_u32 s31, 32
  s_cbranch_scc1 .L{name}_shadow
  s_mov_b32 s33, 4000000
.L{name}_hp:
  global_load_dword v5, v2, s[{sDBG}:{sDBG+1}] sc1
  s_waitcnt vmcnt(0)
  v_readfirstlane_b32 s34, v5
  s_cmp_lg_u32 s34, 0
  s_cbranch_scc1 .L{name}_hd
  s_sub_u32 s33, s33, 1
  s_cmp_lg_u32 s33, 0
  s_cbranch_scc1 .L{name}_hp
.L{name}_hd:
  s_cmp_lg_u32 s34, s32
  s_cbranch_scc1 .L{name}_shadow
  s_add_u32 s31, s31, 224
  v_mov_b32 v4, s31
  s_branch .L{name}_wr
.L{name}_aband:                       ; a candidate of the preferred XCD that lost the election becomes a shadow
  s_waitcnt vmcnt(0) lgkmcnt(0)
  s_barrier
  v_lshrrev_b32 v0, 4, v0
  s_lshl_b32 s74, s{rec.sW}, 6
  v_add_u32 v0, s74, v0
""")
    load_ptrs(a)
    a(f"""
  s_cmp_lg_u32 s{sW}, 0
  s_cbranch_scc1 .L{name}_bar
  s_mov_b64 exec, 1
  v_mov_b32 v3, 1
.L{name}_shadow:
  v_mov_b32 v2, {D_RANK}
  global_atomic_add v4, v2, v3, s[{sDBG}:{sDBG+1}] sc0
  s_waitcnt vmcnt(0)
  v_readfirstlane_b32 s31, v4
  s_cmp_ge_u32 s31, 224
  s_cselect_b32 s31, 256, s31
  v_mov_b32 v4, s31
.L{name}_wr:
  v_mov_b32 v2, 0
  ds_write_b32 v2, v4
  s_waitcnt lgkmcnt(0)
  s_mov_b64 exec, -1
.L{name}_bar:
  s_barrier
  v_mov_b32 v2, 0
  ds_read_b32 v4, v2
  s_waitcnt lgkmcnt(0)
  v_readfirstlane_b32 s{sRANK}, v4
  s_barrier
""")
def flag1(a,base_srd,off_sreg):
    l=a.newlabel('f1')
    a(f"""
  s_cmp_lg_u32 s{sW}, 0
  s_cbranch_scc1 {l}
  v_mov_b32 v250, 1
  s_mov_b64 exec, 1
  buffer_store_dword v250, off, s[{base_srd}:{base_srd+3}], s{off_sreg} sc1
  s_mov_b64 exec, -1
{l}:
""")
def wait_phase(a,base,n):
    l=a.newlabel('wp')
    a(f"""
  s_cmp_lg_u32 s{sW}, 0
  s_cbranch_scc1 {l}
  v_lshlrev_b32 v248, 2, v{vLANE}
  v_add_u32 v248, {base}, v248
""")
    wait_words(a,248,(1<<min(n,64))-1,sleep=4)
    if n>64:
        a("v_add_u32 v248, 256, v248")
        wait_words(a,248,(1<<(n-64))-1,sleep=4)
    a(f"""
  buffer_inv sc1
  s_waitcnt vmcnt(0)
{l}:
  s_barrier
""")
def fused_kernel(name,ts=False,R=None,R2=None,t2lo=192,fake_xcc=None,NKV=3,NQ=6,NREP=3,NXA=32,NAO=16):
    a=Asm()
    L='.L'+name
    prologue(a,name,fake_xcc)
    st=lambda k,**kw: stamp(a,k,on=ts,**kw)
    a(f"s_cmp_ge_u32 s{sRANK}, 256\n s_cbranch_scc1 {L}_end")
    st(0)
    if ts:
        a(f"""
  s_lshl_b32 s94, s{sRANK}, 6
  s_add_u32 s94, s94, {TS_OFF+28}
  v_mov_b32 v254, s94
  v_mov_b32 v255, s30
  global_store_dword v254, v255, s[{sWS}:{sWS+1}]
  v_mov_b32 v255, s62
  global_store_dword v254, v255, s[{sWS}:{sWS+1}] offset:20
""")
    a(f"s_cmp_ge_u32 s{sRANK}, 224\n s_cbranch_scc1 {L}_rec")
    winit=lambda a: wait_word(a,sDBG,D_INIT)
    def wr3(l):
        if not ts: return
        a(f"""
  s_cmp_lg_u32 s{rec.sW}, 0
  s_cbranch_scc1 {l}
  s_lshl_b32 s94, s99, 6
  s_add_u32 s94, s94, {TS_OFF+32}
  v_mov_b32 v12, s8
  v_mov_b32 v13, s10
  v_mov_b32 v14, s12
  v_mov_b32 v15, 0
  v_mov_b32 v16, s94
  s_mov_b64 exec, 1
  global_store_dwordx4 v16, v[12:15], s[{rec.sWS}:{rec.sWS+1}]
  s_mov_b64 exec, -1
{l}:
""")
    if R2 is not None:
        R2.ts2=ts
        a(f"s_sub_u32 s91, s{sRANK}, {t2lo}\n s_cmp_ge_u32 s91, 32\n s_cbranch_scc1 {L}_not2")
        a(f"s_mov_b32 s{rec.sH}, s91\n s_mov_b32 s99, s{sRANK}")
        rec2.rec_role(a,R2,30,L+'t2')
        wr3(L+'w3b')
        a(f"v_lshrrev_b32 v0, 4, v0\n s_lshl_b32 s74, s{rec.sW}, 6\n v_add_u32 v0, s74, v0")
        load_ptrs(a)
        a(f"s_mov_b32 s{sRANK}, s99\n s_barrier")
        st(6)
        a(f"{L}_not2:")
    a(f"""
  s_cmp_lg_u32 s{sRANK}, 0
  s_cbranch_scc1 {L}_noinit
  v_lshlrev_b32 v2, 4, v0
  v_add_u32 v2, {FL_OFF}, v2
  v_mov_b32 v4, 0
  v_mov_b32 v5, 0
  v_mov_b32 v6, 0
  v_mov_b32 v7, 0
""")
    for i in range(FL_BYTES//4096):
        a(f"global_store_dwordx4 v2, v[4:7], s[{sWS}:{sWS+1}] sc1\n v_add_u32 v2, 4096, v2")
    a(f"""
  s_waitcnt vmcnt(0)
  s_barrier
  s_cmp_lg_u32 s{sW}, 0
  s_cbranch_scc1 {L}_noinit
  v_mov_b32 v2, {D_INIT}
  v_mov_b32 v4, 1
  s_mov_b64 exec, 1
  global_store_dword v2, v4, s[{sDBG}:{sDBG+1}] sc1
  s_mov_b64 exec, -1
{L}_noinit:
  s_cmp_ge_u32 s{sRANK}, {NB}
  s_cbranch_scc1 {L}_A
""")
    assert 32*NKV<=NB and 16*NQ<=NB and 18*NREP+NXA<=NB
    a(f"s_mov_b32 s{sTASK}, s{sRANK}\n s_cmp_ge_u32 s{sTASK}, {32*NKV}\n s_cbranch_scc1 {L}_kvx")
    k_r1.r1_task(a,'kv',L+'kv',stflag='sc1',NTG=NKV,flags=True,after_w=winit)
    a(f"{L}_kvx:"); st(1)
    a(f"s_mov_b32 s{sTASK}, s{sRANK}\n s_cmp_ge_u32 s{sTASK}, {16*NQ}\n s_cbranch_scc1 {L}_qx")
    k_r1.r1_task(a,'qq',L+'qq',stflag='sc1',NTG=NQ,flags=True,after_w=winit)
    a(f"{L}_qx:"); st(2)
    a(f"s_cmp_ge_u32 s{sRANK}, {18*NREP}\n s_cbranch_scc1 {L}_xa")
    a(f"s_mov_b32 s{sTASK}, s{sRANK}")
    winit(a)
    r5.r5_role(a,L+'bo',sTASK,nrep=NREP)
    st(3)
    a(f"s_branch {L}_end\n{L}_xa:")
    a(f"s_cmp_ge_u32 s{sRANK}, {18*NREP+NXA}\n s_cbranch_scc1 {L}_end")
    a(f"s_sub_u32 s{sTASK}, s{sRANK}, {18*NREP}")
    winit(a)
    r4.r4_role(a,L+'xat',sTASK,nwaves=4*NXA)
    st(3)
    a(f"s_branch {L}_end")
    a(f"{L}_A:\n s_sub_u32 s91, s{sRANK}, {NB}")
    a(f"s_cmp_ge_u32 s91, 64\n s_cbranch_scc1 {L}_avv\n s_mov_b32 s{sTASK}, s91")
    k_r1.r1_task(a,'aqk',L+'aqk',stflag='sc1',NTG=8,after_w=winit)
    a(f"s_branch {L}_apf\n{L}_avv:")
    a(f"s_cmp_ge_u32 s91, 96\n s_cbranch_scc1 {L}_apx\n s_sub_u32 s{sTASK}, s91, 64")
    k_r1.r1_task(a,'avv',L+'avv',stflag='sc1',NTG=8,after_w=winit)
    a(f"{L}_apf:\n s_lshl_b32 s60, s91, 2\n s_add_u32 s60, s60, {F_AP}")
    flag1(a,44,60)
    a(f"s_branch {L}_apw\n{L}_apx:")
    winit(a)
    a(f"{L}_apw:"); st(1)
    wait_phase(a,F_AP,96); st(2)
    a(f"s_mov_b32 s{sTASK}, s91")
    r3.r3_task(a,L+'att',stflag='sc1',nq=2,qstep=4)
    a(f"s_lshl_b32 s60, s91, 2\n s_add_u32 s60, s60, {F_AT}")
    flag1(a,32,60); st(3)
    a(f"s_cmp_ge_u32 s91, {3*NAO}\n s_cbranch_scc1 {L}_end\n s_mov_b32 s{sTASK}, s91")
    wait_phase(a,F_AT,128); st(4)
    k_r1.r1_task(a,'aout',L+'aout',NTG=NAO,stflag=r5.OST)
    st(5)
    a(f"s_branch {L}_end")
    a(f"{L}_rec:\n s_sub_u32 s{rec.sH}, s{sRANK}, 224\n s_mov_b32 s99, s{sRANK}")
    R=R or rec2.Rec2(LDSSET,fused=True)
    R.ts2=ts
    if SPEC: R.spec='.L'+name+'_aband'; R.early=EARLY
    rec2.rec_role(a,R,30,L+'rec')
    wr3(L+'w3a')
    if ts:
        stamp(a,1,slot=99,base=rec.sWS,w=rec.sW)
        a(f"""
  s_cmp_lg_u32 s{rec.sW}, 0
  s_cbranch_scc1 {L}_end
  s_lshl_b32 s94, s99, 6
  s_add_u32 s94, s94, {TS_OFF+16}
  v_mov_b32 v12, s{rec.sSTEP}
  v_mov_b32 v13, s{rec2.sR1}
  v_mov_b32 v14, s{rec2.sR2}
  v_mov_b32 v15, 0
  v_mov_b32 v16, s94
  s_mov_b64 exec, 1
  global_store_dwordx4 v16, v[12:15], s[{rec.sWS}:{rec.sWS+1}]
  s_mov_b64 exec, -1
""")
    a(f"{L}_end:\n s_endpgm")
    a.lines=hazard.fix(a.lines)
    return a
NAME='concat_heads__mha_block__memory_aug_recurrent_mem_tr__prompt'
def header_lines():
    ref=open(f'cdna_kernels/{NAME}.s.ref').read().split('\n')
    return '\n'.join(l for l in ref[:ref.index([l for l in ref if l.startswith('; Override')][0])])+'\n'
def build(path,**kw):
    n=NAME+'_kernel'
    a=fused_kernel(n,**kw)
    t=wrap([(n,a.text())],[(n,256,163840)],header_lines(),single=True)
    open(path,'w').write(t)
    print('bytes',len(t),'lines',len(a.lines))
if __name__=='__main__':
    kw={k:int(v) for k,v in (x.split('=') for x in sys.argv[2:] if '=' in x)}
    ver=kw.pop('v',3)
    rec3.Rec3.t8first=bool(kw.pop('t8first',0))
    sched.LOOK=kw.pop('look',12)
    r4.KM6=(ver>=6)
    r5.OST=['','sc1','sc0 sc1','nt','sc0 sc1 nt'][kw.pop('owt',0)]
    t2n=kw.pop('t2n',0); t2d1=kw.pop('t2d1',600); t2d2=kw.pop('t2d2',1200); t2lo=kw.pop('t2lo',192)
    SPEC=kw.pop('spec',0); FORCEL=kw.pop('forcelose',0); EARLY=kw.pop('early',0)
    R2=None
    R={3:rec3.Rec3,5:rec5.Rec5,6:rec6.Rec6}[ver](fused=True,**kw)
    if t2n:
        kw2=dict(kw); kw2.update(d1=t2d1,d2n=t2d2,stflag='sc1')
        R2=rec6.Rec6(fused=True,**kw2); R2.team2=True; R2.poff=P2_OFF; R2.lbar=D_LBAR2; R2.last=t2n-1
        R.s0=t2n
    build(sys.argv[1] if len(sys.argv)>1 else f'cdna_kernels/{NAME}.s', ts=('ts' in sys.argv), R=R, R2=R2, t2lo=t2lo)
```

```python
import sys
sys.path.insert(0,'gen')
from asmlib import *

MB=1<<20
XKV_OFF=0
QX_OFF=32*MB
KMVM_OFF=48*MB
P_OFF=64*MB
PSLOT=32*9216
M_OFF=65*MB
MSLOT=9216
DBG_OFF=66*MB
LDS_M=147456
LDS_O=LDS_M+9216
LDS_SX=LDS_O+2048
LDS_SM=LDS_SX+4096
LDS_END=163840
assert LDS_SM+1024==LDS_END
WROW=8192
SCALE=128**-0.5
LOG2E=1.4426950408889634
import struct
D_HOME=64
def f2u(x): return struct.unpack('<I',struct.pack('<f',x))[0]

def chunk_list(lds_set):
    allc=[('q',k) for k in range(9)]+[('k',k) for k in range(9)]+[('v',k) for k in range(9)]
    allc+=[('o',k,u) for k in range(2) for u in range(4)]+[('o8',)]
    regc=[c for c in allc if c not in lds_set]
    assert len(regc)==27 and len(lds_set)==9
    return regc+list(lds_set)
def frag_key(c,t):
    if c[0] in 'qkv' and len(c)==2: return (c[0],c[1],t)
    if c[0]=='o': return ('o',c[1],2*c[2]+t)
    return ('o',t,8)

vL16=0; vFR=1; vMB=2; vIdx=3; vSel=4
vPst=6; vP8=7; vPld=8; vOw=9; vSm=10; vT1=11; vPub=11
MA=12
ACC=24
KX=48; VX=56; WB=64
sWS=28; sDBG=30; sMEM=32; sH=34; sW=35; sSTEP=36; sJOB=37
sPST=40
sPLD=44
sPUB=52
sMRS=54
sMLD=56
sXKV=58
sKM=60
sPRS=62
sMASK8=70
sRETRY=72
sT=74
sC=80
sJM=82
sJM8=84
sTM=86
sMLD2=88

class Rec:
    def __init__(self, lds_set, dbg=False, stflag='', steps=64, timing=False):
        self.lds_set=list(lds_set)
        self.chunks=chunk_list(self.lds_set)
        self.dbg=dbg; self.stflag=stflag; self.steps=steps; self.timing=timing
        self.frag={}
        n=0
        for ci,c in enumerate(self.chunks[:27]):
            for t in range(2):
                if n<22: base=('v',80+8*n)
                else: base=('a',8*(n-22))
                self.frag[frag_key(c,t)]=('reg',base); n+=1
        for k,c in enumerate(self.chunks[27:]):
            for t in range(2):
                self.frag[frag_key(c,t)]=('lds',k*4096+t*2048)


    def startup(self,a):
        a(f"""
  s_load_dwordx2 s[4:5], s[0:1], 40
  s_load_dwordx2 s[6:7], s[0:1], 48
  s_load_dwordx2 s[8:9], s[0:1], 56
  s_load_dwordx2 s[10:11], s[0:1], 64
  s_load_dwordx2 s[{sMEM}:{sMEM+1}], s[0:1], 32
  s_load_dwordx2 s[{sWS}:{sWS+1}], s[0:1], 96
  s_load_dwordx2 s[{sDBG}:{sDBG+1}], s[0:1], 88
  v_lshrrev_b32 v12, 6, v0
  v_and_b32 v31, 63, v0
  v_readfirstlane_b32 s{sW}, v12
  s_waitcnt lgkmcnt(0)
""")
        for i,b in enumerate((12,16,20,24)):
            a(f"""
  s_mov_b32 s{b}, s{4+2*i}
  s_mov_b32 s{b+1}, s{5+2*i}
  s_mov_b32 s{b+2}, {576*8192}
  s_mov_b32 s{b+3}, 0x00020000
""")
        a(f"""
  v_lshrrev_b32 v12, 4, v31         ; rr / g
  v_and_b32 v13, 15, v31            ; c16 / n
  v_and_b32 v14, 1, v12
  v_lshlrev_b32 v14, 1, v14         ; 2*(rr&1)
  v_xor_b32 v14, v13, v14           ; c16 ^ 2(rr&1)
""")
        for q in range(4):
            a(f"""
  v_xor_b32 v15, {4*q}, v14
  v_add_u32 v28, {4*q}, v12
  v_lshlrev_b32 v29, 13, v28
  v_lshlrev_b32 v30, 4, v15
  v_add_u32 v{16+q}, v29, v30
  v_mul_u32_u24 v29, 1152, v28
  v_add_u32 v{20+q}, v29, v30
  v_lshrrev_b32 v36, 1, v15
  v_and_b32 v36, 1, v36             ; t
  v_mul_u32_u24 v36, {64*1152}, v36
  v_add_u32 v29, v29, v36
  v_lshrrev_b32 v36, 2, v15         ; w'
  v_lshlrev_b32 v36, 1, v36
  v_and_b32 v37, 1, v15
  v_add_u32 v36, v36, v37
  v_lshlrev_b32 v36, 4, v36
  v_add_u32 v29, v29, v36
  v_add_u32 v{24+q}, 1024, v29
""")
        a(f"""
  s_lshl_b32 s74, s{sW}, 17         ; 16w*8192
  s_lshl_b32 s75, s{sH}, 8
  s_add_u32 s74, s74, s75           ; qkv scalar base
  s_mul_i32 s75, s{sH}, 147456
  s_mul_i32 s76, s{sW}, {16*1152}
  s_add_u32 s75, s75, s76
  s_mul_i32 s76, s{sW}, 36864
""")
        D=int(__import__("os").environ.get("RD","8"))
        def dma(ci):
            c=self.chunks[ci]; slot=ci%9
            if c[0] in 'qkv' and len(c)==2:
                srd={'q':12,'k':16,'v':20}[c[0]]; vb=16; so=f"s_add_u32 s78, s74, {c[1]*64*8192}"
            elif c[0]=='o':
                srd=24; vb=20; so=f"s_add_u32 s78, s75, {c[1]*64*1152+c[2]*256}"
            else:
                srd=24; vb=24; so="s_mov_b32 s78, s75"
            a(so)
            for q in range(4):
                a(f"s_add_u32 m0, s76, {slot*4096+q*1024}")
                a("s_nop 0")
                a(f"buffer_load_dwordx4 v{vb+q}, s[{srd}:{srd+3}], s78 offen lds")
        for ci in range(D): dma(ci)
        a(f"""
  v_lshrrev_b32 v36, 2, v13         ; r = p>>2
  v_and_b32 v47, 3, v13             ; c
  v_lshrrev_b32 v38, 1, v12         ; gb>>1
  v_and_b32 v39, 1, v12             ; gb&1
  v_mul_u32_u24 v40, 36864, v38
  v_lshrrev_b32 v41, 1, v36         ; r>>1
  v_and_b32 v42, 1, v36             ; r&1
  v_lshlrev_b32 v43, 3, v41
  v_lshlrev_b32 v44, 2, v39
  v_add_u32 v43, v43, v44
  v_add_u32 v43, v43, v42
  v_lshlrev_b32 v43, 8, v43
  v_add_u32 v40, v40, v43
  v_lshlrev_b32 v43, 1, v42
  v_add_u32 v43, v43, v44
  v_lshlrev_b32 v45, 3, v41
  v_add_u32 v43, v43, v45           ; s
  v_lshrrev_b32 v45, 1, v47         ; c>>1
  s_lshl_b32 s77, s{sW}, 2
  v_add_u32 v45, s77, v45           ; 4w + (c>>1)
  v_xor_b32 v45, v45, v43
  v_lshlrev_b32 v45, 4, v45
  v_and_b32 v46, 1, v47
  v_lshlrev_b32 v46, 3, v46
  v_add_u32 v45, v45, v46
  v_add_u32 v32, v40, v45
  v_xor_b32 v45, 32, v45
  v_add_u32 v33, v40, v45
  v_add_u32 v34, 73728, v32
  v_add_u32 v35, 73728, v33
""")
        self.consts(a)
        spec=getattr(self,'spec',None)
        if not spec: self.init_nan(a)
        for ci,c in enumerate(self.chunks):
            slot=ci%9
            nleft=min(len(self.chunks)-1-ci, D-1)
            a(f"s_waitcnt vmcnt({4*nleft}) lgkmcnt(0)")
            a("s_barrier")
            early=spec and getattr(self,'early',0)
            if spec and ci==8:
                if early: a(f"v_mov_b32 v59, {D_HOME}\n global_load_dwordx4 v[60:63], v59, s[{sDBG}:{sDBG+1}] sc1\n v_mov_b32 v61X, {D_HOME}".split('\n v_mov_b32 v61X')[0])
                else: a(f"v_mov_b32 v59, {D_HOME}\n global_load_dword v60, v59, s[{sDBG}:{sDBG+1}] sc1")
            if early and ci==8+2*D+1:
                l=a.newlabel('ar')
                a(f"""
  s_cmp_lg_u32 s{sW}, 0
  s_cbranch_scc1 {l}
  v_mov_b32 v64, {self.lbar}
  v_mov_b32 v65, 1
  s_mov_b64 exec, 1
  global_atomic_add v64, v65, s[{sDBG}:{sDBG+1}]
  s_mov_b64 exec, -1
{l}:
""")
            if early and ci==28:
                self.load_m0(a,wait=False)
                a(f"""
  v_lshlrev_b32 v66, 3, v{vL16}
  s_lshl_b32 s77, s{sH}, 2
  s_add_u32 s77, s77, {self.fkv0}
  v_add_u32 v66, s77, v66
  s_mov_b64 exec, 3
  global_load_dword v65, v66, s[{sWS}:{sWS+1}] sc1
  s_mov_b64 exec, -1
""")
            if early and ci==33:
                a(f"v_mov_b32 v66, {self.lbar}\n global_load_dword v64, v66, s[{sDBG}:{sDBG+1}] sc1")
            if spec and ci==8+D:
                l=a.newlabel('sp')
                a(f"""
  s_mov_b32 s77, 4000000
{l}:
  v_readfirstlane_b32 s79, v60
  s_cmp_eq_u32 s79, s98
  s_cbranch_scc1 {l}_ok
  s_cmp_lg_u32 s79, 0
  s_cbranch_scc1 {spec}
  global_load_dword v60, v59, s[{sDBG}:{sDBG+1}] sc1
  s_waitcnt vmcnt(0)
  s_sub_u32 s77, s77, 1
  s_cmp_lg_u32 s77, 0
  s_cbranch_scc1 {l}
  s_branch {spec}
{l}_ok:
  v_readfirstlane_b32 s97, v62
""")
                self.init_nan(a)
            if ci+D<len(self.chunks): dma(ci+D)
            for t in range(2):
                f=self.frag[frag_key(c,t)]
                for i in range(4):
                    av=32+t+2*(i>>1)
                    off=slot*4096+(i&1)*512
                    if f[0]=='reg':
                        b=f[1]; d=f"{b[0]}[{b[1]+2*i}:{b[1]+2*i+1}]"
                    else:
                        d=f"v[{48+8*t+2*i}:{48+8*t+2*i+1}]"
                    a(f"ds_read_b64_tr_b16 {d}, v{av} offset:{off}")
            if ci>=27:
                a("s_waitcnt lgkmcnt(0)\n s_barrier")
                for t in range(2):
                    for hf in range(2):
                        a(f"ds_write_b128 v{vFR}, v[{48+8*t+4*hf}:{48+8*t+4*hf+3}] offset:{slot*4096+t*2048+hf*1024}")
        a("s_waitcnt lgkmcnt(0)")

    def consts(self,a):
        a(f"""
  v_lshlrev_b32 v{vL16}, 4, v31
  v_add_u32 v{vFR}, s76, v{vL16}
  v_add_u32 v{vMB}, {LDS_M}, v{vL16}
  v_mov_b32 v36, 0x4444
  v_mov_b32 v38, 0xeeee
  v_cmp_gt_u32 vcc, 8, v13
  s_mov_b32 s{sMASK8}, 0x00ff00ff
  s_mov_b32 s{sMASK8+1}, 0x00ff00ff
  v_cndmask_b32 v{vIdx}, v38, v36, vcc
  v_and_b32 v36, 7, v13             ; n&7
  v_and_b32 v38, 1, v12
  v_lshlrev_b32 v38, 2, v38         ; 4*(gb&1)
  v_sub_u32 v38, v36, v38
  v_mov_b32 v39, 0x3f80
  v_mov_b32 v40, 0x3f800000
  v_cmp_eq_u32 vcc, 0, v38
  v_cndmask_b32 v{vSel}, 0, v39, vcc
  v_cmp_eq_u32 vcc, 1, v38
  v_cndmask_b32 v{vSel}, v{vSel}, v40, vcc
  v_cmp_eq_u32 vcc, 2, v38
  v_cndmask_b32 v{vSel+1}, 0, v39, vcc
  v_cmp_eq_u32 vcc, 3, v38
  v_cndmask_b32 v{vSel+1}, v{vSel+1}, v40, vcc
  v_and_b32 v38, 1, v12
  v_lshlrev_b32 v38, 4, v38
  v_lshrrev_b32 v39, 1, v12
  v_lshlrev_b32 v39, 1, v39
  v_add_u32 v38, v38, v39
  v_lshrrev_b32 v39, 3, v13
  v_add_u32 v38, v38, v39
  s_lshl_b32 s77, s{sW}, 2
  v_add_u32 v38, s77, v38
  v_lshlrev_b32 v38, 7, v38
  v_lshlrev_b32 v36, 4, v36         ; (n&7)*16
  v_add_u32 v{vPst}, v38, v36
  ; pattern = (n&7)*16 + {{0,8,4,12}}[g]
  v_and_b32 v38, 1, v12
  v_lshlrev_b32 v38, 3, v38
  v_lshrrev_b32 v39, 1, v12
  v_lshlrev_b32 v39, 2, v39
  v_add_u32 v38, v38, v39
  v_add_u32 v38, v38, v36           ; pattern
  v_lshrrev_b32 v39, 3, v13
  s_lshl_b32 s77, s{sW}, 1
  s_add_u32 s77, s77, 64
  v_add_u32 v39, s77, v39
  v_lshlrev_b32 v39, 7, v39
  v_add_u32 v{vP8}, v39, v38
  s_lshl_b32 s77, s{sW}, 5
  s_add_u32 s77, s77, s{sH}
  s_cmp_lt_u32 s77, 72
  s_cselect_b32 s{sJOB}, 1, 0
  s_cselect_b64 s[{sJM}:{sJM+1}], -1, 0
  s_cselect_b32 s77, s77, 0
  s_and_b64 s[{sJM8}:{sJM8+1}], s[{sJM}:{sJM+1}], s[{sMASK8}:{sMASK8+1}]
  s_lshl_b32 s79, s77, 7             ; J*128
  v_add_u32 v{vPub}, s79, v38
  v_lshrrev_b32 v39, 3, v31
  v_mul_u32_u24 v39, 9216, v39
  v_add_u32 v39, v39, v36
  v_add_u32 v{vPld}, s79, v39
  v_lshrrev_b32 v39, 1, v12
  v_lshlrev_b32 v39, 7, v39
  v_and_b32 v38, 1, v12
  v_lshlrev_b32 v38, 3, v38
  v_add_u32 v39, v39, v38
  v_add_u32 v39, v39, v36
  v_add_u32 v{vOw}, {LDS_O}, v39
  v_and_b32 v38, 1, v12
  v_lshlrev_b32 v38, 7, v38
  v_add_u32 v38, v38, v36
  v_add_u32 v{vSm}, {LDS_SM}, v38
  s_mov_b32 s{sC}, {f2u(SCALE*LOG2E):#x}
""")

    def init_nan(self,a):
        a(f"""
  v_mov_b32 v64, -1
  v_mov_b32 v65, -1
  v_mov_b32 v66, -1
  v_mov_b32 v67, -1
  s_add_u32 s4, s{sWS}, {P_OFF}
  s_addc_u32 s5, s{sWS+1}, 0
  s_cmp_eq_u32 s{sJOB}, 0
  s_cbranch_scc1 .Lnan_skip{id(self)%100000}
""")
        for sl in range(2):
            for i in range(4):
                a(f"v_add_u32 v68, {sl*PSLOT+i*73728}, v{vPld}")
                a(f"global_store_dwordx4 v68, v[64:67], s[4:5] {self.stflag}")
        a(f"""
  s_add_u32 s4, s{sWS}, {M_OFF}
  s_addc_u32 s5, s{sWS+1}, 0
  v_add_u32 v68, {MSLOT}, v{vPub}
  s_mov_b64 exec, s[{sMASK8}:{sMASK8+1}]
  global_store_dword v{vPub}, v64, s[4:5] {self.stflag}
  global_store_dword v68, v64, s[4:5] {self.stflag}
  s_mov_b64 exec, -1
.Lnan_skip{id(self)%100000}:
""")

    def start_sync(self,a,xcc_sgpr):
        a(f"""
  s_waitcnt vmcnt(0)
  s_barrier
  s_lshl_b32 s74, s{xcc_sgpr}, 2
  s_add_u32 s74, s74, 32
  v_mov_b32 v12, s74
  v_mov_b32 v13, 1
  s_cmp_lg_u32 s{sW}, 0
  s_cbranch_scc1 .Lrs_skip
  s_mov_b64 exec, 1
  global_atomic_add v12, v13, s[{sDBG}:{sDBG+1}]
  s_mov_b32 s75, 2000000
.Lrs_poll:
  global_load_dword v14, v12, s[{sDBG}:{sDBG+1}] sc1
  s_waitcnt vmcnt(0)
  v_readfirstlane_b32 s76, v14
  s_sub_u32 s75, s75, 1
  s_cmp_eq_u32 s75, 0
  s_cbranch_scc1 .Lrs_done
  s_cmp_lt_u32 s76, 32
  s_cbranch_scc1 .Lrs_poll
.Lrs_done:
  s_mov_b64 exec, -1
.Lrs_skip:
  s_barrier
""")
        a(f"""
  v_lshrrev_b32 v24, 4, v{vL16}      ; lane
  v_and_b32 v25, 7, v24
  v_mul_u32_u24 v25, 1152, v25
  v_lshrrev_b32 v24, 3, v24
  v_lshlrev_b32 v24, 4, v24
  v_add_u32 v24, v24, v25            ; r8*1152 + (lane>>3)*16
  s_lshl_b32 s74, s{sW}, 7
  v_add_u32 v25, s74, v24
  global_load_dwordx4 v[{MA}:{MA+3}], v25, s[{sMEM}:{sMEM+1}]
  global_load_dwordx4 v[{MA+4}:{MA+7}], v25, s[{sMEM}:{sMEM+1}] offset:512
  s_lshl_b32 s74, s{sW}, 5
  s_add_u32 s74, s74, 1024
  v_add_u32 v25, s74, v24
  s_mov_b64 exec, 0xffff
  global_load_dwordx4 v[{MA+8}:{MA+11}], v25, s[{sMEM}:{sMEM+1}]
  s_mov_b64 exec, -1
""")
        a(f"""
  s_mov_b32 s{sSTEP}, 0
  s_mul_i32 s74, s{sH}, 9216
  s_add_u32 s74, s74, {P_OFF}
  s_add_u32 s{sPST}, s{sWS}, s74
  s_addc_u32 s{sPST+1}, s{sWS+1}, 0
  s_add_u32 s{sPST+2}, s{sPST}, 4096
  s_addc_u32 s{sPST+3}, s{sPST+1}, 0
""")
        for i in range(4):
            a(f"""
  s_add_u32 s{sPLD+2*i}, s{sWS}, {P_OFF+i*73728}
  s_addc_u32 s{sPLD+2*i+1}, s{sWS+1}, 0
  s_add_u32 s{sPRS+2*i}, s{sWS}, {P_OFF+PSLOT+i*73728}
  s_addc_u32 s{sPRS+2*i+1}, s{sWS+1}, 0
""")
        a(f"""
  s_add_u32 s{sPUB}, s{sWS}, {M_OFF+MSLOT}
  s_addc_u32 s{sPUB+1}, s{sWS+1}, 0
  s_add_u32 s{sMRS}, s{sWS}, {M_OFF}
  s_addc_u32 s{sMRS+1}, s{sWS+1}, 0
  s_lshl_b32 s74, s{sW}, 10
  s_add_u32 s74, s74, {M_OFF+MSLOT}
  s_add_u32 s{sMLD}, s{sWS}, s74
  s_addc_u32 s{sMLD+1}, s{sWS+1}, 0
  s_lshl_b32 s74, s{sW}, 8
  s_add_u32 s74, s74, {M_OFF+MSLOT+8192}
  s_add_u32 s{sMLD2}, s{sWS}, s74
  s_addc_u32 s{sMLD2+1}, s{sWS+1}, 0
  s_lshl_b32 s74, s{sH}, 14
  s_lshl_b32 s75, s{sW}, 11
  s_add_u32 s74, s74, s75
  s_add_u32 s74, s74, {XKV_OFF}
  s_add_u32 s{sXKV}, s{sWS}, s74
  s_addc_u32 s{sXKV+1}, s{sWS+1}, 0
  s_lshl_b32 s74, s{sH}, 13
  s_lshl_b32 s75, s{sW}, 11
  s_add_u32 s74, s74, s75
  s_add_u32 s74, s74, {KMVM_OFF}
  s_add_u32 s{sKM}, s{sWS}, s74
  s_addc_u32 s{sKM+1}, s{sWS+1}, 0
  s_waitcnt vmcnt(0)
""")
```

```python
import sys
sys.path.insert(0,'gen')
from asmlib import *
import rec
from rec import *
import common as C
sFKM=90; sFKV=91
sPM=40
sWSR=44
sPS=48
sMP=49
sPst=50; sPst2=51
sPl=52
sPr=56
sMR=60
sMg=61
sXK=64
sXV=65
sKMo=66
sHP=67
sCNT=68
sR1=69; sR2=73
MREL=M_OFF-P_OFF
class Q:
    def __init__(s,a,name,maxv): s.a=a; s.name=name; s.maxv=maxv; s.n=0; s.pos={}
    def issue(s,tag=None,k=1):
        s.n+=k
        if tag is not None: s.pos[tag]=s.n
    def wait(s,tag):
        c=min(s.n-s.pos[tag],s.maxv)
        s.a(f"s_waitcnt {s.name}({c})")
    def reset(s): s.n=0; s.pos={}
def nops(cyc):
    out=[]; n=cyc//4
    while n>0:
        k=min(n,8); out.append(f"s_nop {k-1}"); n-=k
    return "\n".join(out)

class Rec2(Rec):
    fkv0=C.F_KV; s0=0; poff=P_OFF; lbar=C.D_LBAR; last=63; t2n=0; team2=False
    def __init__(self, lds_set, d1=240, d2j=200, d2n=900, stflag='', kmflag='', steps=64, dbgM=False, timing=False, fused=False):
        super().__init__(lds_set,stflag=stflag)
        self.fused=fused
        if fused: kmflag='sc1'; self.xld='sc1'
        self.d1=d1; self.d2j=d2j; self.d2n=d2n; self.stflag=stflag; self.kmflag=kmflag; self.steps=steps; self.dbgM=dbgM; self.timing=timing
    def fr(self,key):
        return self.frag[key]
    def regstr(self,b): return f"{b[0]}[{b[1]}:{b[1]+7}]"
    def scalars(self,a):
        a(f"""
  s_mov_b32 s{sSTEP}, {self.s0}
  s_add_u32 s{sPM}, s{sWS}, {self.poff}
  s_addc_u32 s{sPM+1}, s{sWS+1}, 0
  s_mov_b32 s{sPM+2}, {2*1024*1024}
  s_mov_b32 s{sPM+3}, 0x00020000
  s_mov_b32 s{sWSR}, s{sWS}
  s_mov_b32 s{sWSR+1}, s{sWS+1}
  s_mov_b32 s{sWSR+2}, 0x10000000
  s_mov_b32 s{sWSR+3}, 0x00020000
  s_mov_b32 s{sPS}, 0
  s_mov_b32 s{sMP}, {MREL+MSLOT}
  s_mul_i32 s{sHP}, s{sH}, 9216
  s_lshl_b32 s74, s{sH}, 14
  s_lshl_b32 s75, s{sW}, 11
  s_add_u32 s{sXK}, s74, s75
  s_add_u32 s{sXK}, s{sXK}, {XKV_OFF+self.s0*32*16384}
  s_add_u32 s{sXV}, s{sXK}, 8192
  s_lshl_b32 s74, s{sH}, 13
  s_add_u32 s{sKMo}, s74, s75
  s_add_u32 s{sKMo}, s{sKMo}, {KMVM_OFF+self.s0*32*8192}
  s_mov_b32 s{sR1}, 0
  s_mov_b32 s{sR2}, 0
""")
        if self.fused:
            a(f"""
  s_mov_b32 s{sFKM}, {C.NULLOFF}
  s_lshl_b32 s74, s{sH}, 2
  s_add_u32 s{sFKV}, s74, {C.F_KV+self.s0*128}
""")
    def step_scalars(self,a):
        a(f"""
  s_add_u32 s{sPst}, s{sPS}, s{sHP}
  s_add_u32 s{sPst2}, s{sPst}, 4096
  s_xor_b32 s74, s{sPS}, {PSLOT}
""")
        for i in range(4):
            a(f"s_add_u32 s{sPl+i}, s{sPS}, {i*73728}\n s_add_u32 s{sPr+i}, s74, {i*73728}")
        a(f"""
  s_xor_b32 s{sMR}, s{sMP}, {(MREL+MSLOT)^MREL}
  s_lshl_b32 s74, s{sW}, 10
  s_add_u32 s{sMg}, s{sMP}, s74
  s_add_u32 s{sMg+1}, s{sMg}, 4096
  s_lshl_b32 s74, s{sW}, 8
  s_add_u32 s74, s74, 8192
  s_add_u32 s{sMg+2}, s{sMP}, s74
""")
    def load_m0(self,a):
        a(f"""
  v_mov_b32 v{MA+8}, 0
  v_mov_b32 v{MA+9}, 0
  v_mov_b32 v{MA+10}, 0
  v_mov_b32 v{MA+11}, 0
  v_lshrrev_b32 v24, 4, v{vL16}      ; lane
  v_and_b32 v25, 7, v24
  v_mul_u32_u24 v25, 1152, v25
  v_lshrrev_b32 v24, 3, v24
  v_lshlrev_b32 v24, 4, v24
  v_add_u32 v24, v24, v25            ; r8*1152 + (lane>>3)*16
  s_lshl_b32 s74, s{sW}, 7
  v_add_u32 v25, s74, v24
  global_load_dwordx4 v[{MA}:{MA+3}], v25, s[{sMEM}:{sMEM+1}]
  global_load_dwordx4 v[{MA+4}:{MA+7}], v25, s[{sMEM}:{sMEM+1}] offset:512
  s_lshl_b32 s74, s{sW}, 5
  s_add_u32 s74, s74, 1024
  v_add_u32 v25, s74, v24
  s_mov_b64 exec, 0xffff
  global_load_dwordx4 v[{MA+8}:{MA+11}], v25, s[{sMEM}:{sMEM+1}]
  s_mov_b64 exec, -1
  s_waitcnt vmcnt(0)
""")
    def local_barrier(self,a,xcc_sgpr,lab):
        a(f"""
  s_waitcnt vmcnt(0)
  s_barrier
  {f's_mov_b32 s74, {self.lbar}' if self.fused else f's_lshl_b32 s74, s{xcc_sgpr}, 2'}
  {'s_nop 0' if self.fused else 's_add_u32 s74, s74, 32'}
  v_mov_b32 v12, s74
  v_mov_b32 v13, 1
  s_cmp_lg_u32 s{sW}, 0
  s_cbranch_scc1 {lab}_skip
  s_mov_b64 exec, 1
  global_atomic_add v12, v13, s[{sDBG}:{sDBG+1}]
  s_mov_b32 s75, 2000000
{lab}_poll:
  global_load_dword v14, v12, s[{sDBG}:{sDBG+1}] sc1
  s_waitcnt vmcnt(0)
  v_readfirstlane_b32 s76, v14
  s_sub_u32 s75, s75, 1
  s_cmp_eq_u32 s75, 0
  s_cbranch_scc1 {lab}_done
  s_cmp_lt_u32 s76, 32
  s_cbranch_scc1 {lab}_poll
{lab}_done:
  s_mov_b64 exec, -1
{lab}_skip:
  s_barrier
""")
    def stamp(self,a,k):
        if self.timing: a(f"{self.tinst} s[{4+2*k}:{5+2*k}]")
    def stamp_acc(self,a,n):
        if not self.timing: return
        a("s_waitcnt lgkmcnt(0)")
        for k in range(n-1):
            a(f"s_sub_u32 s74, s{4+2*(k+1)}, s{4+2*k}\n s_add_u32 s{20+k}, s{20+k}, s74")
        if getattr(self,'trace',False):
            l=a.newlabel('tr')
            a(f"""
  s_sub_u32 s74, s{sSTEP}, 30
  s_cmp_ge_u32 s74, 4
  s_cbranch_scc1 {l}
  s_lshl_b32 s75, s{sH}, 2
  s_add_u32 s75, s75, s{sW}
  s_lshl_b32 s75, s75, 2
  s_add_u32 s75, s75, s74
  s_lshl_b32 s75, s75, 5
  s_add_u32 s75, s75, {DBG_OFF+1024*1024+16384}
  v_mov_b32 v48, s4
  v_mov_b32 v49, s6
  v_mov_b32 v50, s8
  v_mov_b32 v51, s10
  v_mov_b32 v52, s75
  s_mov_b64 exec, 1
  buffer_store_dwordx4 v[48:51], v52, s[{sWSR}:{sWSR+3}], 0 offen
  s_nop 1
  v_mov_b32 v48, s12
  v_mov_b32 v49, s14
  v_mov_b32 v50, s16
  v_mov_b32 v51, s18
  buffer_store_dwordx4 v[48:51], v52, s[{sWSR}:{sWSR+3}], 0 offen offset:16
  s_mov_b64 exec, -1
{l}:
""")
    def loop(self,a,w,lab):
        L=Q(a,'lgkmcnt',15)
        sm=lambda d,A,B: f"v_smfmac_f32_16x16x64_bf16 v[{d}:{d+3}], v[{A}:{A+3}], {B}, v{vIdx}"
        Q0,Q1,K0,K1,V0,V1=24,28,32,36,40,44
        accs={('q',0):Q0,('q',1):Q1,('k',0):K0,('k',1):K1,('v',0):V0,('v',1):V1}
        own=[w,4+w]
        rest=[k for k in [8]+list(range(8)) if k not in own]
        order=own+rest
        mats=[('q',0),('k',0),('v',0),('q',1),('k',1),('v',1)]
        ops=[(m,t,ks) for ks in order for (m,t) in mats]
        ldsops=[i for i,(m,t,ks) in enumerate(ops) if self.frag[(m,ks,t)][0]=='lds']
        WBS=[64,72]
        slot_of={}
        for j,i in enumerate(ldsops): slot_of[i]=WBS[j%2]
        def rdfrag(key,slot,tag):
            off=self.frag[key][1]
            a(f"ds_read_b128 v[{slot}:{slot+3}], v{vFR} offset:{off}")
            a(f"ds_read_b128 v[{slot+4}:{slot+7}], v{vFR} offset:{off+1024}")
            L.issue(tag,2)
        for j in range(2):
            i=ldsops[j]; mm,tt,kk=ops[i]
            rdfrag((mm,kk,tt),slot_of[i],None)
        a("s_waitcnt lgkmcnt(0)"); L.reset()
        a(f"{lab}_top:")
        self.stamp(a,0)
        self.step_scalars(a)
        for r in range(24): a(f"v_mov_b32 v{24+r}, 0")
        a(f"ds_write_b128 v{vMB}, v[{MA}:{MA+3}] offset:{w*1024}"); L.issue()
        a(f"ds_write_b128 v{vMB}, v[{MA+4}:{MA+7}] offset:{(4+w)*1024}"); L.issue()
        a(f"s_mov_b64 exec, 0xffff\n ds_write_b128 v{vMB}, v[{MA+8}:{MA+11}] offset:{8192+w*256}\n s_mov_b64 exec, -1"); L.issue('mw')
        a(f"buffer_load_dwordx4 v[{KX}:{KX+3}], v{vL16}, s[{sWSR}:{sWSR+3}], s{sXK} offen {self.xld}")
        a(f"buffer_load_dwordx4 v[{KX+4}:{KX+7}], v{vL16}, s[{sWSR}:{sWSR+3}], s{sXK} offen offset:1024 {self.xld}")
        a(f"buffer_load_dwordx4 v[{VX}:{VX+3}], v{vL16}, s[{sWSR}:{sWSR+3}], s{sXV} offen {self.xld}")
        a(f"buffer_load_dwordx4 v[{VX+4}:{VX+7}], v{vL16}, s[{sWSR}:{sWSR+3}], s{sXV} offen offset:1024 {self.xld}")
        abuf={own[0]:MA,own[1]:MA+4}
        ring=[MA+8,MA,MA+4]
        nxt=2
        rdA=0
        def issueA():
            nonlocal rdA
            if rdA<len(rest):
                ks=rest[rdA]; b=ring[rdA%3]; abuf[ks]=b
                a(f"ds_read_b128 v[{b}:{b+3}], v{vMB} offset:{ks*1024}"); L.issue(('A',ks)); rdA+=1
        resets=[]
        if self.isjob(w):
            resets=[f"s_mov_b64 exec, s[{sJM}:{sJM+1}]\n buffer_store_dwordx4 v[60:63]X"]
        for i,(m,t,ks) in enumerate(ops):
            if i==6:
                L.wait('mw'); a("s_barrier")
                issueA(); issueA()
            if i==12: issueA()
            if i>=18 and i%6==0: issueA_now=True
            else: issueA_now=False
            if i%6==0 and ks not in own: L.wait(('A',ks))
            f=self.frag[(m,ks,t)]
            if f[0]=='reg': B=self.regstr(f[1])
            else:
                s_=slot_of[i]; B=f"v[{s_}:{s_+7}]"
                if ('W',i) in L.pos: L.wait(('W',i))
            a(sm(accs[(m,t)],abuf[ks],B))
            if f[0]=='lds' and nxt<len(ldsops):
                j=ldsops[nxt]; mm,tt,kk=ops[j]
                rdfrag((mm,kk,tt),slot_of[j],('W',j)); nxt+=1
            if issueA_now: issueA()
            if self.isjob(w) and i in (20,26,32,38):
                k=(i-20)//6
                a(f"s_mov_b64 exec, s[{sJM}:{sJM+1}]\n buffer_store_dwordx4 v[76:79], v{vPld}, s[{sPM}:{sPM+3}], s{sPr+k} offen\n s_mov_b64 exec, -1") if False else None
        self.stamp(a,1)
        a("s_nop 7")
        cv=lambda d,x,y: a(f"v_cvt_pk_bf16_f32 v{d}, v{x}, v{y}")
        for k,src in enumerate([Q0,Q1,K0,K1,V0,V1]):
            cv(12+2*k,src,src+1); cv(13+2*k,src+2,src+3)
        oorder=[(k,T) for T in range(9) for k in range(2)]
        olds=[(k,T) for (k,T) in oorder if self.frag[('o',k,T)][0]=='lds']
        oslots=[64,72,56]
        oslot={}
        for j,kt in enumerate(olds): oslot[kt]=oslots[j%3]
        onxt=0
        def rdO():
            nonlocal onxt
            if onxt<len(olds):
                k,T=olds[onxt]; rdfrag(('o',k,T),oslot[(k,T)],('O',k,T)); onxt+=1
        rdO(); rdO()
        tm=lambda d,A: a(f"v_mfma_f32_16x16x16_bf16 v[{d}:{d+3}], v[{A}:{A+1}], v[{vSel}:{vSel+1}], 0")
        a("s_nop 0")
        tm(24,12); tm(28,14); tm(32,16); tm(36,18)
        a("s_nop 5")
        cv(12,24,25); cv(13,26,27); cv(14,28,29); cv(15,30,31)
        cv(16,32,33); cv(17,34,35); cv(18,36,37); cv(19,38,39)
        a(f"buffer_store_dwordx4 v[16:19], v{vL16}, s[{sWSR}:{sWSR+3}], s{sKMo} offen {self.kmflag}")
        a(f"buffer_store_dwordx4 v[20:23], v{vL16}, s[{sWSR}:{sWSR+3}], s{sKMo} offen offset:1024 {self.kmflag}")
        pub=self.fused and w==3
        if pub:
            a(f"v_mov_b32 v24, 1\n s_mov_b64 exec, 1\n buffer_store_dword v24, off, s[{sWSR}:{sWSR+3}], s{sFKM} sc1\n s_mov_b64 exec, -1")
        a(f"s_cmp_eq_u32 s{sSTEP}, {self.steps-1}\n s_cbranch_scc1 {lab}_exit")
        a(f"s_waitcnt vmcnt({3 if pub else 2})")
        a(f"v_mfma_f32_16x16x32_bf16 v[24:27], v[16:19], v[12:15], 0")
        a(f"v_mfma_f32_16x16x32_bf16 v[28:31], v[{KX}:{KX+3}], v[12:15], 0")
        a(f"v_mfma_f32_16x16x32_bf16 v[32:35], v[{KX+4}:{KX+7}], v[12:15], 0")
        a("s_nop 7")
        for r in range(4): a(f"v_cndmask_b32 v{28+r}, v{32+r}, v{28+r}, s[{sMASK8}:{sMASK8+1}]")
        a(f"ds_write_b128 v{vMB}, v[28:31] offset:{LDS_SX-LDS_M+w*1024}"); L.issue()
        a(f"s_mov_b64 exec, 0x00ff00ff\n ds_write_b128 v{vSm}, v[24:27] offset:{w*256}\n s_mov_b64 exec, -1"); L.issue('sw')
        L.wait('sw'); a("s_barrier")
        self.stamp(a,2)
        for k in range(4):
            a(f"ds_read_b128 v[{24+4*k}:{24+4*k+3}], v{vMB} offset:{LDS_SX-LDS_M+k*1024}"); L.issue(('sx',k))
        for k in range(4):
            a(f"ds_read_b128 v[{40+4*k}:{40+4*k+3}], v{vSm} offset:{k*256}"); L.issue(('sm',k))
        L.wait(('sx',3))
        for r in range(4): a(f"v_add_f32 v{24+r}, v{24+r}, v{28+r}\n v_add_f32 v{32+r}, v{32+r}, v{36+r}")
        for r in range(4): a(f"v_add_f32 v{24+r}, v{24+r}, v{32+r}")
        L.wait(('sm',3))
        for r in range(4): a(f"v_add_f32 v{40+r}, v{40+r}, v{44+r}\n v_add_f32 v{48+r}, v{48+r}, v{52+r}")
        for r in range(4): a(f"v_add_f32 v{40+r}, v{40+r}, v{48+r}")
        a(f"""
  v_max3_f32 v12, v24, v25, v26
  v_max3_f32 v13, v27, v40, v41
  v_max3_f32 v12, v12, v42, v43
  v_max_f32 v12, v12, v13
  s_nop 1
  v_max_f32_dpp v12, v12, v12 row_ror:8 row_mask:0xf bank_mask:0xf
  v_mov_b32 v13, v12
  s_nop 1
  v_permlane16_swap_b32 v12, v13
  v_max_f32 v12, v12, v13
  v_mov_b32 v13, v12
  s_nop 1
  v_permlane32_swap_b32 v12, v13
  v_max_f32 v12, v12, v13
  v_mul_f32 v12, s{sC}, v12
""")
        for r in range(4):
            a(f"v_fma_f32 v{24+r}, v{24+r}, s{sC}, -v12\n v_fma_f32 v{40+r}, v{40+r}, s{sC}, -v12")
        for r in range(4): a(f"v_exp_f32 v{24+r}, v{24+r}")
        for r in range(4): a(f"v_exp_f32 v{40+r}, v{40+r}")
        a(f"""
  v_cvt_pk_bf16_f32 v16, v24, v25
  v_cvt_pk_bf16_f32 v17, v26, v27
  v_cvt_pk_bf16_f32 v14, v40, v41
  v_cvt_pk_bf16_f32 v15, v42, v43
  v_mov_b32_dpp v18, v16 row_ror:8 row_mask:0xf bank_mask:0xf
  v_mov_b32_dpp v19, v17 row_ror:8 row_mask:0xf bank_mask:0xf
  v_add_f32 v12, v24, v25
  v_add_f32 v13, v26, v27
  v_add_f32 v44, v40, v41
  v_add_f32 v45, v42, v43
  v_mfma_f32_16x16x16_bf16 v[28:31], v[20:21], v[14:15], 0
  v_mfma_f32_16x16x16_bf16 v[32:35], v[22:23], v[14:15], 0
  v_add_f32 v12, v12, v13
  v_add_f32 v44, v44, v45
  v_fmac_f32 v12, 0x3e800000, v44
  v_mfma_f32_16x16x32_bf16 v[28:31], v[{VX}:{VX+3}], v[16:19], v[28:31]
  v_mfma_f32_16x16x32_bf16 v[32:35], v[{VX+4}:{VX+7}], v[16:19], v[32:35]
  v_add_f32_dpp v12, v12, v12 row_ror:8 row_mask:0xf bank_mask:0xf
  v_mov_b32 v13, v12
  s_nop 1
  v_permlane16_swap_b32 v12, v13
  v_add_f32 v12, v12, v13
  v_mov_b32 v13, v12
  s_nop 1
  v_permlane32_swap_b32 v12, v13
  v_add_f32 v12, v12, v13
  v_rcp_f32 v12, v12
""")
        rdO()
        a("s_nop 1")
        for r in range(8): a(f"v_mul_f32 v{28+r}, v{28+r}, v12")
        cv(36,28,29); cv(37,30,31); cv(38,32,33); cv(39,34,35)
        a(f"s_mov_b64 exec, s[{sMASK8}:{sMASK8+1}]")
        a(f"ds_write_b64 v{vOw}, v[36:37] offset:{(4*w)*128}"); L.issue()
        a(f"ds_write_b64 v{vOw}, v[38:39] offset:{(4*w+2)*128}"); L.issue('ow')
        a("s_mov_b64 exec, -1")
        L.wait('ow'); a("s_barrier")
        self.stamp(a,3)
        a(f"ds_read_b128 v[48:51], v{vMB} offset:{LDS_O-LDS_M}"); L.issue('oa0')
        a(f"ds_read_b128 v[52:55], v{vMB} offset:{LDS_O-LDS_M+1024}"); L.issue('oa1')
        for r in range(36): a(f"v_mov_b32 v{12+r}, 0")
        L.wait('oa1')
        for (k,T) in oorder:
            f=self.frag[('o',k,T)]
            if f[0]=='reg': B=self.regstr(f[1])
            else:
                s_=oslot[(k,T)]; B=f"v[{s_}:{s_+7}]"; L.wait(('O',k,T))
            a(sm(12+4*T,48+4*k,B))
            if f[0]=='lds': rdO()
        self.stamp(a,4)
        L2=[]
        for j in range(2):
            i=ldsops[j]; mm,tt,kk=ops[i]
            rdfrag((mm,kk,tt),slot_of[i],('W',i))
        a("s_nop 3")
        def pack4(T0,c):
            A_,B_,C_,D_=[12+4*(T0+x) for x in range(4)]
            for r in range(4): a(f"v_permlane32_swap_b32 v{A_+r}, v{B_+r}")
            for r in range(4): a(f"v_permlane32_swap_b32 v{C_+r}, v{D_+r}")
            for r in range(4): a(f"v_add_f32 v{A_+r}, v{A_+r}, v{B_+r}")
            for r in range(4): a(f"v_add_f32 v{C_+r}, v{C_+r}, v{D_+r}")
            cv(c,A_,A_+1); cv(c+1,A_+2,A_+3); cv(c+2,C_,C_+1); cv(c+3,C_+2,C_+3)
            a("s_nop 1")
            a(f"v_permlane16_swap_b32 v{c}, v{c+2}\n v_permlane16_swap_b32 v{c+1}, v{c+3}")
        pack4(0,48)
        a(f"buffer_store_dwordx4 v[48:51], v{vPst}, s[{sPM}:{sPM+3}], s{sPst} offen {self.stflag}")
        pack4(4,52)
        a(f"buffer_store_dwordx4 v[52:55], v{vPst}, s[{sPM}:{sPM+3}], s{sPst2} offen {self.stflag}")
        a(f"""
  v_permlane32_swap_b32 v44, v46
  v_permlane32_swap_b32 v45, v47
  v_add_f32 v44, v44, v46
  v_add_f32 v45, v45, v47
  v_cvt_pk_bf16_f32 v44, v44, v45
  buffer_store_dword v44, v{vP8}, s[{sPM}:{sPM+3}], s{sPst} offen {self.stflag}
""")
        self.stamp(a,5)
        a(f"""
  s_add_u32 s{sXK}, s{sXK}, {32*16384}
  s_add_u32 s{sXV}, s{sXV}, {32*16384}
  s_add_u32 s{sKMo}, s{sKMo}, {32*8192}
  s_mov_b32 s{sCNT}, 400000
""")
        if self.fused:
            a(f"""
  s_add_u32 s{sFKV}, s{sFKV}, 128
  s_add_u32 s{sFKM}, s{sFKV}, {C.F_KM-C.F_KV-128}
""")
        if self.isjob(w):
            a(f"""
  s_cmp_eq_u32 s{sJOB}, 0
  s_cbranch_scc1 {lab}_nojob
  v_mov_b32 v56, v{vSel}
  v_mov_b32 v57, v{vSel+1}
  v_mov_b32 v58, v{vSel}
  v_mov_b32 v59, v{vSel+1}
  v_mov_b32 v60, -1
  v_mov_b32 v61, -1
  v_mov_b32 v62, -1
  v_mov_b32 v63, -1
  v_permlane16_swap_b32 v56, v58
  v_permlane16_swap_b32 v57, v59
""")
            for k in range(4):
                a(f"buffer_store_dwordx4 v[60:63], v{vPld}, s[{sPM}:{sPM+3}], s{sPr+k} offen {self.stflag}")
            a(nops(self.d1))
            a(f"{lab}_poll1:")
            for k in range(4):
                a(f"buffer_load_dwordx4 v[{12+4*k}:{12+4*k+3}], v{vPld}, s[{sPM}:{sPM+3}], s{sPl+k} offen sc1")
            a(f"""
  s_waitcnt vmcnt(3)
  v_mfma_f32_16x16x32_bf16 v[28:31], v[12:15], v[56:59], 0
  s_waitcnt vmcnt(2)
  v_mfma_f32_16x16x32_bf16 v[32:35], v[16:19], v[56:59], 0
  s_waitcnt vmcnt(1)
  v_mfma_f32_16x16x32_bf16 v[28:31], v[20:23], v[56:59], v[28:31]
  s_waitcnt vmcnt(0)
  v_mfma_f32_16x16x32_bf16 v[32:35], v[24:27], v[56:59], v[32:35]
  s_nop 7
  v_add_f32 v28, v28, v32
  v_add_f32 v29, v29, v33
  v_add_f32 v30, v30, v34
  v_add_f32 v31, v31, v35
  s_nop 1
  v_permlane32_swap_b32 v28, v30
  v_permlane32_swap_b32 v29, v31
  v_add_f32 v28, v28, v30
  v_add_f32 v29, v29, v31
  v_cmp_u_f32 vcc, v28, v29
  v_cvt_pk_bf16_f32 v28, v28, v29
  s_cbranch_vccz {lab}_got1
  s_add_u32 s{sR1}, s{sR1}, 1
  s_sub_u32 s{sCNT}, s{sCNT}, 1
  s_cmp_lg_u32 s{sCNT}, 0
  s_cbranch_scc1 {lab}_poll1
  s_branch {lab}_exit
{lab}_got1:
  s_mov_b64 exec, s[{sMASK8}:{sMASK8+1}]
  buffer_store_dword v60, v{vPub}, s[{sPM}:{sPM+3}], s{sMR} offen {self.stflag}
  buffer_store_dword v28, v{vPub}, s[{sPM}:{sPM+3}], s{sMP} offen {self.stflag}
""")
            if self.dbgM:
                a(f"""
  s_mul_i32 s74, s{sSTEP}, 9216
  s_add_u32 s74, s74, {DBG_OFF}
  buffer_store_dword v28, v{vPub}, s[{sWSR}:{sWSR+3}], s74 offen
""")
            a("s_mov_b64 exec, -1")
            self.stamp(a,6)
            a(nops(self.d2j))
            a(f"s_branch {lab}_p2\n{lab}_nojob:")
        self.stamp(a,6)
        a(nops(self.d2n))
        b=MA
        a(f"""
{lab}_p2:
  buffer_load_dwordx4 v[{b}:{b+3}], v{vL16}, s[{sPM}:{sPM+3}], s{sMg} offen sc1
  buffer_load_dwordx4 v[{b+4}:{b+7}], v{vL16}, s[{sPM}:{sPM+3}], s{sMg+1} offen sc1
  s_mov_b64 exec, 0xffff
  buffer_load_dwordx4 v[{b+8}:{b+11}], v{vL16}, s[{sPM}:{sPM+3}], s{sMg+2} offen sc1
  s_mov_b64 exec, -1
  {f'buffer_load_dword v26, off, s[{sWSR}:{sWSR+3}], s{sFKV} sc1' if self.fused else ''}
  s_waitcnt vmcnt(0)
  v_max_u32 v24, v{b}, v{b+1}
  v_max3_u32 v24, v24, v{b+2}, v{b+3}
  v_max3_u32 v24, v24, v{b+4}, v{b+5}
  v_max3_u32 v24, v24, v{b+6}, v{b+7}
  v_max3_u32 v25, v{b+8}, v{b+9}, v{b+10}
  v_max_u32 v25, v25, v{b+11}
  v_cmp_eq_u32 vcc, -1, v24
  v_cmp_eq_u32 s[74:75], -1, v25
  s_and_b64 s[74:75], s[74:75], 0xffff
  s_or_b64 vcc, vcc, s[74:75]
  {'v_cmp_eq_u32 s[74:75], 0, v26' if self.fused else ''}
  {'s_or_b64 vcc, vcc, s[74:75]' if self.fused else ''}
  s_cbranch_vccz {lab}_got2
  s_add_u32 s{sR2}, s{sR2}, 1
  s_sub_u32 s{sCNT}, s{sCNT}, 1
  s_cmp_lg_u32 s{sCNT}, 0
  s_cbranch_scc1 {lab}_p2
  s_branch {lab}_exit
{lab}_got2:
""")
        self.stamp(a,7)
        self.stamp_acc(a,8)
        a(f"""
  s_add_u32 s{sSTEP}, s{sSTEP}, 1
  s_xor_b32 s{sPS}, s{sPS}, {PSLOT}
  s_xor_b32 s{sMP}, s{sMP}, {(MREL+MSLOT)^MREL}
  s_waitcnt lgkmcnt(0)
  s_branch {lab}_top
""")
    def isjob(self,w): return w<3
    xld=''
    tinst='s_memtime'

def rec_role(a,R,xcc_sgpr,lab='.Lrec'):
    T=getattr(R,'ts2',False)
    R.startup(a)
    if T: a("s_waitcnt vmcnt(0)\n s_memrealtime s[8:9]\n s_waitcnt lgkmcnt(0)")
    R.scalars(a)
    early=getattr(R,'spec',None) and getattr(R,'early',0)
    if early:
        a(f"""
  s_waitcnt vmcnt(0)
  v_readfirstlane_b32 s76, v64
  s_cmp_ge_u32 s76, 32
  s_cbranch_scc1 {lab}_e1
  v_mov_b32 v24, {R.lbar}
  s_mov_b32 s75, 2000000
{lab}_e0:
  global_load_dword v25, v24, s[{sDBG}:{sDBG+1}] sc1
  s_waitcnt vmcnt(0)
  v_readfirstlane_b32 s76, v25
  s_sub_u32 s75, s75, 1
  s_cmp_eq_u32 s75, 0
  s_cbranch_scc1 {lab}_e1
  s_cmp_lt_u32 s76, 32
  s_cbranch_scc1 {lab}_e0
{lab}_e1:
""")
        if T: a("s_memrealtime s[10:11]\n s_waitcnt lgkmcnt(0)")
        a(f"""
  s_cmp_eq_u32 s97, 0
  s_cbranch_scc1 {lab}_e2
  s_mov_b64 exec, 3
  v_cmp_eq_u32 vcc, 0, v65
  s_mov_b64 exec, -1
  s_cbranch_vccz {lab}_e3
{lab}_e2:
""")
        R.pre_wait(a)
        a(f"{lab}_e3:")
    else:
        R.local_barrier(a,xcc_sgpr,lab+'_lb')
        if T: a("s_memrealtime s[10:11]\n s_waitcnt lgkmcnt(0)")
        R.load_m0(a)
        if R.fused:
            if hasattr(R,'pre_wait'): R.pre_wait(a)
            else:
                C.wait_word(a,sDBG,C.D_INIT,vt=(24,25))
                a(f"v_mov_b32 v24, s{sFKV}")
                C.wait_words(a,24,1,base=sWS,vt=25)
    if T: a("s_memrealtime s[12:13]\n s_waitcnt lgkmcnt(0)")
    if R.timing:
        for k in range(8): a(f"s_mov_b32 s{20+k}, 0")
        a("s_memtime s[96:97]")
    for w in range(1,4):
        a(f"s_cmp_eq_u32 s{sW}, {w}\n s_cbranch_scc1 {lab}_w{w}")
    for w in range(4):
        a(f"{lab}_w{w}:")
        R.loop(a,w,f"{lab}_w{w}")
        a(f"{lab}_w{w}_exit:")
        if w<3: a(f"s_branch {lab}_done")
    a(f"{lab}_done:")
    if R.fused:
        a(f"""
  s_waitcnt vmcnt(0)
  s_barrier
  s_cmp_lg_u32 s{sW}, 3
  s_cbranch_scc1 {lab}_fin
  s_lshl_b32 s74, s{sH}, 2
  s_add_u32 s74, s74, {C.F_KM+R.last*128}
  v_mov_b32 v24, 1
  s_mov_b64 exec, 1
  buffer_store_dword v24, off, s[{sWSR}:{sWSR+3}], s74 sc1
  s_mov_b64 exec, -1
{lab}_fin:
""")
def rec_kernel(name,R,stats=True):
    a=Asm()
    a(f"""
  s_load_dwordx2 s[6:7], s[0:1], 88
  s_getreg_b32 s20, hwreg(HW_REG_XCC_ID, 0, 4)
  s_cmp_ge_u32 s2, 256
  s_cbranch_scc1 .L{name}_end
  s_waitcnt lgkmcnt(0)
  s_lshl_b32 s21, s20, 2
  v_mov_b32 v1, s21
  v_mov_b32 v2, 1
  v_cmp_eq_u32 vcc, 0, v0
  s_and_saveexec_b64 s[30:31], vcc
  global_atomic_add v3, v1, v2, s[6:7] sc0
  s_waitcnt vmcnt(0)
  ds_write_b32 v0, v3
  s_waitcnt lgkmcnt(0)
  s_mov_b64 exec, s[30:31]
  s_barrier
  v_mov_b32 v9, 0
  ds_read_b32 v3, v9
  s_waitcnt lgkmcnt(0)
  v_readfirstlane_b32 s{sH}, v3
  s_cmp_lg_u32 s20, 0
  s_cbranch_scc1 .L{name}_end
  s_cmp_ge_u32 s{sH}, 32
  s_cbranch_scc1 .L{name}_end
  s_mov_b32 s90, s20
  s_barrier
  s_memtime s[92:93]
  s_waitcnt lgkmcnt(0)
""")
    rec_role(a,R,90,'.L'+name)
    if stats:
        a(f"""
  s_memtime s[94:95]
  s_waitcnt lgkmcnt(0)
  s_sub_u32 s94, s94, s92
  s_lshl_b32 s74, s{sH}, 2
  s_add_u32 s74, s74, s{sW}
  s_lshl_b32 s74, s74, 4
  s_add_u32 s74, s74, {DBG_OFF+1024*1024}
  v_mov_b32 v12, s94
  v_mov_b32 v13, s{sSTEP}
  v_mov_b32 v14, s{sR1}
  v_mov_b32 v15, s{sR2}
  v_mov_b32 v16, s74
  s_mov_b64 exec, 1
  buffer_store_dwordx4 v[12:15], v16, s[{sWSR}:{sWSR+3}], 0 offen
  s_mov_b64 exec, -1
""")
        if R.timing:
            a(f"""
  s_sub_u32 s96, s96, s92
  s_lshl_b32 s74, s{sH}, 2
  s_add_u32 s74, s74, s{sW}
  s_lshl_b32 s74, s74, 5
  s_add_u32 s74, s74, {DBG_OFF+1024*1024+4096}
  v_mov_b32 v16, s74
  v_mov_b32 v12, s20
  v_mov_b32 v13, s21
  v_mov_b32 v14, s22
  v_mov_b32 v15, s23
  v_mov_b32 v20, s24
  v_mov_b32 v21, s25
  v_mov_b32 v22, s26
  v_mov_b32 v23, s96
  s_mov_b64 exec, 1
  buffer_store_dwordx4 v[12:15], v16, s[{sWSR}:{sWSR+3}], 0 offen
  buffer_store_dwordx4 v[20:23], v16, s[{sWSR}:{sWSR+3}], 0 offen offset:16
  s_mov_b64 exec, -1
""")
    a(f".L{name}_end:\n s_endpgm")
    return a
```

```python
from common import *
SCALE=128**-0.5
KM6=False
Q=8
K=40
V=72
KM=104
VM=120
SX=136
SM=148
PX=156
PM=164
OT=168
TM=232
def r4_consts(a):
    a(f"""
  v_lshlrev_b32 v2, 4, v{vLANE}          ; lane*16
  v_and_b32 v3, 15, v{vLANE}             ; q
  v_lshrrev_b32 v4, 4, v{vLANE}          ; g
  v_lshrrev_b32 v5, 1, v4
  v_lshlrev_b32 v5, 10, v5
  v_and_b32 v6, 1, v4
  v_lshlrev_b32 v6, 9, v6
  v_add_u32 v5, v5, v6
  v_lshlrev_b32 v6, 4, v3
  v_add_u32 v5, v5, v6                   ; v5
  v_lshlrev_b32 v6, 2, v4
""")
    for r in range(4):
        a(f"v_add_u32 v7, {r}, v6\n v_cmp_le_u32 s[{40+2*r}:{41+2*r}], v7, v3")
    a(f"""
  s_mov_b32 s48, {f2u(SCALE*LOG2E):#x}
  v_mov_b32 v6, 0xff800000
  v_cmp_gt_u32 s[50:51], 32, v{vLANE}     ; lanes g<2
""")
XPRE=0
def r4_loads(a,sU,ld='',kmld='',part=0):
    a(f"""
  s_lshl_b32 s52, s{sU}, 13
  s_add_u32 s53, s52, {QX_OFF}
  s_add_u32 s54, s52, {KMVM_OFF}
  s_lshl_b32 s55, s{sU}, 14
  s_add_u32 s55, s55, {XKV_OFF}
""")
    def grp(dst,sreg,n,base):
        for i in range(n):
            off=base+i*1024
            if off%4096==0 and off>0 or (i==0 and base>0 and False): pass
            so=off//4096
            if so>0:
                a(f"s_add_u32 s56, s{sreg}, {so*4096}")
                a(f"buffer_load_dwordx4 v[{dst+4*i}:{dst+4*i+3}], v2, s[32:35], s56 offen offset:{off%4096} {ld}")
            else:
                a(f"buffer_load_dwordx4 v[{dst+4*i}:{dst+4*i+3}], v2, s[32:35], s{sreg} offen offset:{off} {ld}")
    if part in (0,1): grp(Q,53,8,0); grp(K,55,8,0); grp(V,55,8,8192)
    if part in (0,2):
        for w in range(4):
            so=w*2048
            a(f"s_add_u32 s56, s54, {so}")
            a(f"buffer_load_dwordx4 v[{KM+4*w}:{KM+4*w+3}], v2, s[32:35], s56 offen {kmld}")
            a(f"buffer_load_dwordx4 v[{VM+4*w}:{VM+4*w+3}], v2, s[32:35], s56 offen offset:1024 {kmld}")
def red4(a,op,r,t):
    a(f"""
  v_mov_b32 v{t}, v{r}
  s_nop 1
  v_permlane16_swap_b32 v{r}, v{t}
  {op} v{r}, v{r}, v{t}
  v_mov_b32 v{t}, v{r}
  s_nop 1
  v_permlane32_swap_b32 v{r}, v{t}
  {op} v{r}, v{r}, v{t}
""")
def r4_compute(a,sU,stflag=''):
    q=lambda w,qt: f"v[{Q+(w*2+qt)*4}:{Q+(w*2+qt)*4+3}]"
    k=lambda w,kt: f"v[{K+(w*2+kt)*4}:{K+(w*2+kt)*4+3}]"
    sx={(0,0):SX,(0,1):SX+4,(1,1):SX+8}
    a("s_waitcnt vmcnt(16)")
    for w in range(4):
        for (kt,qt),d in sx.items():
            C='0' if w==0 else f"v[{d}:{d+3}]"
            a(f"v_mfma_f32_16x16x32_bf16 v[{d}:{d+3}], {k(w,kt)}, {q(w,qt)}, {C}")
    a("s_waitcnt vmcnt(0)")
    for w in range(4):
        for qt in range(2):
            d=SM+4*qt
            C='0' if w==0 else f"v[{d}:{d+3}]"
            a(f"v_mfma_f32_16x16x32_bf16 v[{d}:{d+3}], v[{KM+4*w}:{KM+4*w+3}], {q(w,qt)}, {C}")
    a("s_nop 7")
    for d in (sx[(0,0)],sx[(1,1)]):
        for r in range(4): a(f"v_cndmask_b32 v{d+r}, v6, v{d+r}, s[{40+2*r}:{41+2*r}]")
    for qt in range(2):
        tiles=[SM+4*qt]+([sx[(0,0)]] if qt==0 else [sx[(0,1)],sx[(1,1)]])
        m=TM+qt; t=TM+2+qt; l=TM+4+qt
        regs=[x+r for x in tiles for r in range(4)]
        a(f"v_max3_f32 v{m}, v{regs[0]}, v{regs[1]}, v{regs[2]}")
        i=3
        while i<len(regs):
            if i+1<len(regs): a(f"v_max3_f32 v{m}, v{m}, v{regs[i]}, v{regs[i+1]}"); i+=2
            else: a(f"v_max_f32 v{m}, v{m}, v{regs[i]}"); i+=1
        red4(a,'v_max_f32',m,t)
        a(f"v_mul_f32 v{m}, s48, v{m}")
        for x in regs: a(f"v_fma_f32 v{x}, v{x}, s48, -v{m}")
        for x in regs: a(f"v_exp_f32 v{x}, v{x}")
        sm=SM+4*qt
        if KM6:
            a(f"v_add_f32 v{l}, v{sm}, v{sm+2}")
        else:
            a(f"v_add_f32 v{l}, v{sm}, v{sm+1}\n v_add_f32 v{t}, v{sm+2}, v{sm+3}\n v_add_f32 v{l}, v{l}, v{t}")
            a(f"v_cndmask_b32 v{l}, 0, v{l}, s[50:51]")
        for x in regs[4:]: a(f"v_add_f32 v{l}, v{l}, v{x}")
        red4(a,'v_add_f32',l,t)
        a(f"v_rcp_f32 v{l}, v{l}")
        a(f"v_cvt_pk_bf16_f32 v{PM+2*qt}, v{sm}, v{sm+1}\n v_cvt_pk_bf16_f32 v{PM+2*qt+1}, v{sm+2}, v{sm+3}")
        p=PX+4*qt
        d0=sx[(0,qt)]
        a(f"v_cvt_pk_bf16_f32 v{p}, v{d0}, v{d0+1}\n v_cvt_pk_bf16_f32 v{p+1}, v{d0+2}, v{d0+3}")
        if qt==0: a(f"v_mov_b32 v{p+2}, 0\n v_mov_b32 v{p+3}, 0")
        else:
            d1=sx[(1,1)]
            a(f"v_cvt_pk_bf16_f32 v{p+2}, v{d1}, v{d1+1}\n v_cvt_pk_bf16_f32 v{p+3}, v{d1+2}, v{d1+3}")
    a("s_nop 1")
    for qt in range(2):
        for w in range(4):
            for t in range(2):
                d=OT+qt*32+(w*2+t)*4
                a(f"v_mfma_f32_16x16x32_bf16 v[{d}:{d+3}], v[{V+(w*2+t)*4}:{V+(w*2+t)*4+3}], v[{PX+4*qt}:{PX+4*qt+3}], 0")
        for w in range(4):
            for t in range(2):
                d=OT+qt*32+(w*2+t)*4
                a(f"v_mfma_f32_16x16x16_bf16 v[{d}:{d+3}], v[{VM+4*w+2*t}:{VM+4*w+2*t+1}], v[{PM+2*qt}:{PM+2*qt+1}], v[{d}:{d+3}]")
    a(f"s_lshl_b32 s52, s{sU}, 13\n s_add_u32 s52, s52, {OX_OFF}\n s_nop 6")
    for qt in range(2):
        l=TM+4+qt
        for w in range(4):
            b=OT+qt*32+w*8
            for r in range(8): a(f"v_mul_f32 v{b+r}, v{b+r}, v{l}")
            o=TM+8+4*(w&1)
            for k2 in range(4): a(f"v_cvt_pk_bf16_f32 v{o+k2}, v{b+2*k2}, v{b+2*k2+1}")
            off=w*2048+qt*256
            if off>=4096:
                a(f"s_add_u32 s56, s52, 4096\n buffer_store_dwordx4 v[{o}:{o+3}], v5, s[32:35], s56 offen offset:{off-4096} {stflag}")
            else:
                a(f"buffer_store_dwordx4 v[{o}:{o+3}], v5, s[32:35], s52 offen offset:{off} {stflag}")
def r4_kernel(name,nwg=256):
    a=Asm(); load_ptrs(a)
    a(f"s_cmp_ge_u32 s2, {nwg}\n s_cbranch_scc1 .L{name}_end")
    srd(a,32,sWS,WS_BYTES)
    r4_consts(a)
    a(f"s_lshl_b32 s60, s2, 2\n s_add_u32 s60, s60, s{sW}\n.L{name}_loop:")
    r4_loads(a,60)
    r4_compute(a,60)
    a(f"s_add_u32 s60, s60, {4*nwg}\n s_cmp_lt_u32 s60, 2048\n s_cbranch_scc1 .L{name}_loop")
    a(f".L{name}_end:\n s_endpgm")
    return a,nwg

def r4_role(a,lab,sIDX,nwaves=128,stamp_fn=None):
    nj=nwaves//32
    srd(a,32,sWS,WS_BYTES)
    r4_consts(a)
    a(f"""
  s_lshl_b32 s60, s{sIDX}, 2
  s_add_u32 s60, s60, s{sW}          ; u
  s_and_b32 s61, s60, 31             ; h
  s_lshr_b32 s62, s60, 5             ; seg
  v_mov_b32 v249, 1
{lab}_loop:
  s_lshl_b32 s63, s62, 7
  s_lshl_b32 s64, s61, 2
  s_add_u32 s64, s64, s63
  s_add_u32 s64, s64, {F_KM}         ; F_KM[s][h]
  s_lshr_b32 s65, s61, 1
  s_lshl_b32 s65, s65, 2
  s_add_u32 s65, s65, s63
  s_add_u32 s65, s65, {F_Q}          ; F_Q[s][h>>1]
  v_mov_b32 v248, s64
  v_mov_b32 v250, s65
  v_cmp_eq_u32 vcc, 0, v{vLANE}
  s_nop 1
  v_cndmask_b32 v248, v250, v248, vcc
""")
    if XPRE:
        a(f"v_mov_b32 v250, {F_KV-F_KM}\n v_cndmask_b32 v250, 0, v250, vcc\n v_add_u32 v247, v248, v250")
        wait_words(a,247,3,sleep=2)
        a(f"s_lshl_b32 s60, s62, 5\n s_add_u32 s60, s60, s61")
        r4_loads(a,60,ld='sc1',kmld='sc1',part=1)
        wait_words(a,248,1,sleep=1)
        r4_loads(a,60,ld='sc1',kmld='sc1',part=2)
    else:
        wait_words(a,248,3,sleep=2)
        a(f"s_lshl_b32 s60, s62, 5\n s_add_u32 s60, s60, s61")
        r4_loads(a,60,ld='sc1',kmld='sc1')
    r4_compute(a,60,stflag='sc1')
    a(f"""
  s_add_u32 s64, s64, {F_OX-F_KM}
  s_waitcnt vmcnt(0)
  s_mov_b64 exec, 1
  buffer_store_dword v249, off, s[32:35], s64 sc1
  s_mov_b64 exec, -1
  s_add_u32 s62, s62, {nj}
  s_cmp_lt_u32 s62, 64
  s_cbranch_scc1 {lab}_loop
""")
```

```python
import sys
sys.path.insert(0,'gen')
from common import *
import common as C
import k_r1, r1, r3, r4, r5, rec, rec2, rec3, rec5, rec6, sched, hazard
LDSSET=[('q',5),('q',6),('q',7),('q',8),('k',8),('o',0,0),('o',1,0),('o',0,2),('o',1,2)]
NB=96
SPEC=0; FORCEL=0; EARLY=0; ADELAY=0
D_T0=128
def prologue(a,name,fake_xcc=None):
    load_ptrs(a)
    a(f"""
  s_cmp_ge_u32 s2, 256
  s_cbranch_scc1 .L{name}_end
  s_getreg_b32 s30, hwreg(HW_REG_XCC_ID, 0, 4)
  {'s_memrealtime s[62:63]' if 'ts' in sys.argv else ''}
""")
    if fake_xcc: fake_xcc(a)
    GR=SPEC
    if GR:
        a(f"""
  s_add_u32 s98, s30, 1
  s_cmp_lg_u32 s{sW}, 0
  s_cbranch_scc1 .L{name}_bar
  s_mov_b64 exec, 1
  v_mov_b32 v3, 1
  s_cmp_lg_u32 s30, 0
  s_cbranch_scc1 .L{name}_grace
  v_mov_b32 v2, {D_T0}
  global_atomic_add v4, v2, v3, s[{sDBG}:{sDBG+1}] sc0
  s_waitcnt vmcnt(0)
  v_readfirstlane_b32 s31, v4
  s_cmp_ge_u32 s31, 32
  s_cbranch_scc1 .L{name}_shadow
  s_cmp_lg_u32 s31, 31
  s_cbranch_scc1 .L{name}_cand
  v_mov_b32 v2, {D_HOME}
  v_mov_b32 v6, 1
  v_mov_b32 v7, 0
  {'s_nop 0' if FORCEL else f'global_atomic_cmpswap v2, v[6:7], s[{sDBG}:{sDBG+1}]'}
.L{name}_cand:
  s_add_u32 s31, s31, 224
  v_mov_b32 v4, s31
  s_branch .L{name}_wr
.L{name}_grace:
  v_mov_b32 v2, {D_HOME}
  s_mov_b32 s33, {GR}
.L{name}_gp:
  global_load_dword v5, v2, s[{sDBG}:{sDBG+1}] sc1
  s_waitcnt vmcnt(0)
  v_readfirstlane_b32 s34, v5
  s_cmp_lg_u32 s34, 0
  s_cbranch_scc1 .L{name}_shadow
  s_sleep 4
  s_sub_u32 s33, s33, 1
  s_cmp_lg_u32 s33, 0
  s_cbranch_scc1 .L{name}_gp
""")
    else:
        a(f"""
  s_cmp_lg_u32 s{sW}, 0
  s_cbranch_scc1 .L{name}_bar
  s_mov_b64 exec, 1
""")
    a(f"""
  s_lshl_b32 s31, s30, 2
  v_mov_b32 v2, s31
  v_mov_b32 v3, 1
  global_atomic_add v4, v2, v3, s[{sDBG}:{sDBG+1}] sc0
  s_waitcnt vmcnt(0)
  v_readfirstlane_b32 s31, v4         ; ticket
  s_add_u32 s32, s30, 1               ; xcc+1
  v_mov_b32 v2, {D_HOME}
  s_cmp_lg_u32 s31, 31
  s_cbranch_scc1 .L{name}_nocas
  v_mov_b32 v6, s32
  v_mov_b32 v7, 0
  global_atomic_cmpswap v2, v[6:7], s[{sDBG}:{sDBG+1}]
.L{name}_nocas:
  s_cmp_ge_u32 s31, 32
  s_cbranch_scc1 .L{name}_shadow
  s_mov_b32 s33, 4000000
.L{name}_hp:
  global_load_dword v5, v2, s[{sDBG}:{sDBG+1}] sc1
  s_waitcnt vmcnt(0)
  v_readfirstlane_b32 s34, v5
  s_cmp_lg_u32 s34, 0
  s_cbranch_scc1 .L{name}_hd
  s_sub_u32 s33, s33, 1
  s_cmp_lg_u32 s33, 0
  s_cbranch_scc1 .L{name}_hp
.L{name}_hd:
  s_cmp_lg_u32 s34, s32
  s_cbranch_scc1 .L{name}_shadow
  s_add_u32 s31, s31, 224
  v_mov_b32 v4, s31
  s_branch .L{name}_wr
.L{name}_aband:                       ; a candidate of the preferred XCD that lost the election becomes a shadow
  s_waitcnt vmcnt(0) lgkmcnt(0)
  s_barrier
  v_lshrrev_b32 v0, 4, v0
  s_lshl_b32 s74, s{rec.sW}, 6
  v_add_u32 v0, s74, v0
""")
    load_ptrs(a)
    a(f"""
  s_cmp_lg_u32 s{sW}, 0
  s_cbranch_scc1 .L{name}_bar
  s_mov_b64 exec, 1
  v_mov_b32 v3, 1
.L{name}_shadow:
  v_mov_b32 v2, {D_RANK}
  global_atomic_add v4, v2, v3, s[{sDBG}:{sDBG+1}] sc0
  s_waitcnt vmcnt(0)
  v_readfirstlane_b32 s31, v4
  s_cmp_ge_u32 s31, 224
  s_cselect_b32 s31, 256, s31
  v_mov_b32 v4, s31
.L{name}_wr:
  v_mov_b32 v2, 0
  ds_write_b32 v2, v4
  s_waitcnt lgkmcnt(0)
  s_mov_b64 exec, -1
.L{name}_bar:
  s_barrier
  v_mov_b32 v2, 0
  ds_read_b32 v4, v2
  s_waitcnt lgkmcnt(0)
  v_readfirstlane_b32 s{sRANK}, v4
  s_barrier
""")
def flag1(a,base_srd,off_sreg):
    l=a.newlabel('f1')
    a(f"""
  s_cmp_lg_u32 s{sW}, 0
  s_cbranch_scc1 {l}
  v_mov_b32 v250, 1
  s_mov_b64 exec, 1
  buffer_store_dword v250, off, s[{base_srd}:{base_srd+3}], s{off_sreg} sc1
  s_mov_b64 exec, -1
{l}:
""")
def wait_phase(a,base,n):
    l=a.newlabel('wp')
    a(f"""
  s_cmp_lg_u32 s{sW}, 0
  s_cbranch_scc1 {l}
  v_lshlrev_b32 v248, 2, v{vLANE}
  v_add_u32 v248, {base}, v248
""")
    wait_words(a,248,(1<<min(n,64))-1,sleep=4)
    if n>64:
        a("v_add_u32 v248, 256, v248")
        wait_words(a,248,(1<<(n-64))-1,sleep=4)
    a(f"""
  buffer_inv sc1
  s_waitcnt vmcnt(0)
{l}:
  s_barrier
""")
def fused_kernel(name,ts=False,R=None,R2=None,t2lo=192,fake_xcc=None,NKV=3,NQ=6,NREP=3,NXA=32,NAO=16):
    a=Asm()
    L='.L'+name
    prologue(a,name,fake_xcc)
    st=lambda k,**kw: stamp(a,k,on=ts,**kw)
    a(f"s_cmp_ge_u32 s{sRANK}, 256\n s_cbranch_scc1 {L}_end")
    st(0)
    if ts:
        a(f"""
  s_lshl_b32 s94, s{sRANK}, 6
  s_add_u32 s94, s94, {TS_OFF+28}
  v_mov_b32 v254, s94
  v_mov_b32 v255, s30
  global_store_dword v254, v255, s[{sWS}:{sWS+1}]
  v_mov_b32 v255, s62
  global_store_dword v254, v255, s[{sWS}:{sWS+1}] offset:20
""")
    a(f"s_cmp_ge_u32 s{sRANK}, 224\n s_cbranch_scc1 {L}_rec")
    winit=lambda a: wait_word(a,sDBG,D_INIT)
    def wr3(l):
        if not ts: return
        a(f"""
  s_cmp_lg_u32 s{rec.sW}, 0
  s_cbranch_scc1 {l}
  s_lshl_b32 s94, s99, 6
  s_add_u32 s94, s94, {TS_OFF+32}
  v_mov_b32 v12, s8
  v_mov_b32 v13, s10
  v_mov_b32 v14, s12
  v_mov_b32 v15, 0
  v_mov_b32 v16, s94
  s_mov_b64 exec, 1
  global_store_dwordx4 v16, v[12:15], s[{rec.sWS}:{rec.sWS+1}]
  s_mov_b64 exec, -1
{l}:
""")
    if R2 is not None:
        R2.ts2=ts
        a(f"s_sub_u32 s91, s{sRANK}, {t2lo}\n s_cmp_ge_u32 s91, 32\n s_cbranch_scc1 {L}_not2")
        a(f"s_mov_b32 s{rec.sH}, s91\n s_mov_b32 s99, s{sRANK}")
        rec2.rec_role(a,R2,30,L+'t2')
        wr3(L+'w3b')
        a(f"v_lshrrev_b32 v0, 4, v0\n s_lshl_b32 s74, s{rec.sW}, 6\n v_add_u32 v0, s74, v0")
        load_ptrs(a)
        a(f"s_mov_b32 s{sRANK}, s99\n s_barrier")
        st(6)
        a(f"{L}_not2:")
    a(f"""
  s_cmp_lg_u32 s{sRANK}, 0
  s_cbranch_scc1 {L}_noinit
  v_lshlrev_b32 v2, 4, v0
  v_add_u32 v2, {FL_OFF}, v2
  v_mov_b32 v4, 0
  v_mov_b32 v5, 0
  v_mov_b32 v6, 0
  v_mov_b32 v7, 0
""")
    for i in range(FL_BYTES//4096):
        a(f"global_store_dwordx4 v2, v[4:7], s[{sWS}:{sWS+1}] sc1\n v_add_u32 v2, 4096, v2")
    a(f"""
  s_waitcnt vmcnt(0)
  s_barrier
  s_cmp_lg_u32 s{sW}, 0
  s_cbranch_scc1 {L}_noinit
  v_mov_b32 v2, {D_INIT}
  v_mov_b32 v4, 1
  s_mov_b64 exec, 1
  global_store_dword v2, v4, s[{sDBG}:{sDBG+1}] sc1
  s_mov_b64 exec, -1
{L}_noinit:
  s_cmp_ge_u32 s{sRANK}, {NB}
  s_cbranch_scc1 {L}_A
""")
    assert 32*NKV<=NB and 16*NQ<=NB and 18*NREP+NXA<=NB
    a(f"s_mov_b32 s{sTASK}, s{sRANK}\n s_cmp_ge_u32 s{sTASK}, {32*NKV}\n s_cbranch_scc1 {L}_kvx")
    k_r1.r1_task(a,'kv',L+'kv',stflag='sc1',NTG=NKV,flags=True,after_w=winit)
    a(f"{L}_kvx:"); st(1)
    a(f"s_mov_b32 s{sTASK}, s{sRANK}\n s_cmp_ge_u32 s{sTASK}, {16*NQ}\n s_cbranch_scc1 {L}_qx")
    k_r1.r1_task(a,'qq',L+'qq',stflag='sc1',NTG=NQ,flags=True,after_w=winit)
    a(f"{L}_qx:"); st(2)
    a(f"s_cmp_ge_u32 s{sRANK}, {18*NREP}\n s_cbranch_scc1 {L}_xa")
    a(f"s_mov_b32 s{sTASK}, s{sRANK}")
    winit(a)
    r5.r5_role(a,L+'bo',sTASK,nrep=NREP)
    st(3)
    a(f"s_branch {L}_end\n{L}_xa:")
    a(f"s_cmp_ge_u32 s{sRANK}, {18*NREP+NXA}\n s_cbranch_scc1 {L}_end")
    a(f"s_sub_u32 s{sTASK}, s{sRANK}, {18*NREP}")
    winit(a)
    r4.r4_role(a,L+'xat',sTASK,nwaves=4*NXA)
    st(3)
    a(f"s_branch {L}_end")
    a(f"{L}_A:\n s_sub_u32 s91, s{sRANK}, {NB}")
    if ADELAY:
        a(f"""
  s_cmp_lg_u32 s{sW}, 0
  s_cbranch_scc1 {L}_adx
  v_mov_b32 v250, {D_LBAR}
  s_mov_b32 s95, 200000
{L}_adl:
  global_load_dword v251, v250, s[{sDBG}:{sDBG+1}] sc1
  s_waitcnt vmcnt(0)
  v_readfirstlane_b32 s94, v251
  s_cmp_ge_u32 s94, {ADELAY}
  s_cbranch_scc1 {L}_adx
  s_sleep 16
  s_sub_u32 s95, s95, 1
  s_cmp_lg_u32 s95, 0
  s_cbranch_scc1 {L}_adl
{L}_adx:
  s_barrier
""")
    a(f"s_cmp_ge_u32 s91, 64\n s_cbranch_scc1 {L}_avv\n s_mov_b32 s{sTASK}, s91")
    k_r1.r1_task(a,'aqk',L+'aqk',stflag='sc1',NTG=8,after_w=winit)
    a(f"s_branch {L}_apf\n{L}_avv:")
    a(f"s_cmp_ge_u32 s91, 96\n s_cbranch_scc1 {L}_apx\n s_sub_u32 s{sTASK}, s91, 64")
    k_r1.r1_task(a,'avv',L+'avv',stflag='sc1',NTG=8,after_w=winit)
    a(f"{L}_apf:\n s_lshl_b32 s60, s91, 2\n s_add_u32 s60, s60, {F_AP}")
    flag1(a,44,60)
    a(f"s_branch {L}_apw\n{L}_apx:")
    winit(a)
    a(f"{L}_apw:"); st(1)
    wait_phase(a,F_AP,96); st(2)
    a(f"s_mov_b32 s{sTASK}, s91")
    r3.r3_task(a,L+'att',stflag='sc1',nq=2,qstep=4)
    a(f"s_lshl_b32 s60, s91, 2\n s_add_u32 s60, s60, {F_AT}")
    flag1(a,32,60); st(3)
    a(f"s_cmp_ge_u32 s91, {3*NAO}\n s_cbranch_scc1 {L}_end\n s_mov_b32 s{sTASK}, s91")
    wait_phase(a,F_AT,128); st(4)
    k_r1.r1_task(a,'aout',L+'aout',NTG=NAO,stflag=r5.OST)
    st(5)
    a(f"s_branch {L}_end")
    a(f"{L}_rec:\n s_sub_u32 s{rec.sH}, s{sRANK}, 224\n s_mov_b32 s99, s{sRANK}")
    R=R or rec2.Rec2(LDSSET,fused=True)
    R.ts2=ts
    if SPEC: R.spec='.L'+name+'_aband'; R.early=EARLY
    rec2.rec_role(a,R,30,L+'rec')
    wr3(L+'w3a')
    if ts:
        stamp(a,1,slot=99,base=rec.sWS,w=rec.sW)
        a(f"""
  s_cmp_lg_u32 s{rec.sW}, 0
  s_cbranch_scc1 {L}_end
  s_lshl_b32 s94, s99, 6
  s_add_u32 s94, s94, {TS_OFF+16}
  v_mov_b32 v12, s{rec.sSTEP}
  v_mov_b32 v13, s{rec2.sR1}
  v_mov_b32 v14, s{rec2.sR2}
  v_mov_b32 v15, 0
  v_mov_b32 v16, s94
  s_mov_b64 exec, 1
  global_store_dwordx4 v16, v[12:15], s[{rec.sWS}:{rec.sWS+1}]
  s_mov_b64 exec, -1
""")
    a(f"{L}_end:\n s_endpgm")
    a.lines=hazard.fix(a.lines)
    return a
NAME='concat_heads__mha_block__memory_aug_recurrent_mem_tr__prompt'
def header_lines():
    ref=open(f'cdna_kernels/{NAME}.s.ref').read().split('\n')
    return '\n'.join(l for l in ref[:ref.index([l for l in ref if l.startswith('; Override')][0])])+'\n'
def build(path,**kw):
    n=NAME+'_kernel'
    a=fused_kernel(n,**kw)
    t=wrap([(n,a.text())],[(n,256,163840)],header_lines(),single=True)
    open(path,'w').write(t)
    print('bytes',len(t),'lines',len(a.lines))
if __name__=='__main__':
    kw={k:int(v) for k,v in (x.split('=') for x in sys.argv[2:] if '=' in x)}
    ver=kw.pop('v',3)
    rec3.Rec3.t8first=bool(kw.pop('t8first',0))
    sched.LOOK=kw.pop('look',12)
    r4.KM6=(ver>=6)
    r5.OST=['','sc1','sc0 sc1','nt','sc0 sc1 nt'][kw.pop('owt',0)]
    t2n=kw.pop('t2n',0); t2d1=kw.pop('t2d1',600); t2d2=kw.pop('t2d2',1200); t2lo=kw.pop('t2lo',192)
    SPEC=kw.pop('spec',0); FORCEL=kw.pop('forcelose',0); EARLY=kw.pop('early',0); ADELAY=kw.pop('adelay',0)
    r4.XPRE=kw.pop('xpre',0); SHL=kw.pop('shortlast',0)
    R2=None
    R={3:rec3.Rec3,5:rec5.Rec5,6:rec6.Rec6}[ver](fused=True,**kw)
    R.shortlast=SHL
    if t2n:
        kw2=dict(kw); kw2.update(d1=t2d1,d2n=t2d2,stflag='sc1')
        R2=rec6.Rec6(fused=True,**kw2); R2.team2=True; R2.poff=P2_OFF; R2.lbar=D_LBAR2; R2.last=t2n-1
        R.s0=t2n
    build(sys.argv[1] if len(sys.argv)>1 else f'cdna_kernels/{NAME}.s', ts=('ts' in sys.argv), R=R, R2=R2, t2lo=t2lo)
```
